```python
import torch

def _softmax(x, axis=-1):
    return torch.softmax(x, dim=axis)
def _gelu(x):
    return torch.nn.functional.gelu(x, approximate="tanh")
def _silu(x):
    return torch.nn.functional.silu(x)
def _sigmoid(x):
    return torch.sigmoid(x)
def _layernorm(x, axis=-1, eps=1e-5):
    m = x.mean(dim=axis, keepdim=True)
    v = x.var(dim=axis, keepdim=True, unbiased=False)
    return (x - m) / torch.sqrt(v + eps)
def _scatter_add(tgt, idx, src, axis=0):
    return tgt.clone().index_add_(axis, idx, src)
def _segment_sum(src, seg, n):
    out = torch.zeros((n,) + src.shape[1:], dtype=src.dtype)
    return out.index_add_(0, seg, src)
def _pad(x, pw):
    flat = tuple(v for pair in reversed(pw) for v in pair)
    return torch.nn.functional.pad(x, flat)

kernel_name = 'parallel_sum__gqa_block_cached__swiglu_ffn__decode'

def setup_inputs():

    _w = (lambda a: (lambda t: t.to(torch.bfloat16) if t.is_floating_point() else t)(torch.as_tensor(a)))
    def _A_setup():
        B, Sq, D = 8, 1, 576
        Hq, Hkv, Sk, Dh = 32, 16, 8192, 128
        assert Hq % Hkv == 0, (Hq, Hkv)
        return {
            "x": _w((lambda *s: torch.randn(*s, dtype=torch.bfloat16) * 0.05)(B, Sq, D)),
            "k_cache": _w((lambda *s: torch.randn(*s, dtype=torch.bfloat16) * 3.2)(B, Hkv, Sk, Dh)),
            "v_cache": _w((lambda *s: torch.randn(*s, dtype=torch.bfloat16) * 1.6)(B, Hkv, Sk, Dh)),
            "wq": _w((lambda *s: torch.randn(*s, dtype=torch.bfloat16) * 3.2)(D, Hq * Dh) * (D ** -0.5)),
            "wo": _w((lambda *s: torch.randn(*s, dtype=torch.bfloat16) * 1.6)(Hq * Dh, D) * ((Hq * Dh) ** -0.5)),
        }
    _A_in = _A_setup()

    def _B_setup():
        B, S, D, F = 8, 1, 576, 4608
        return {
            "x": _w((lambda *s: torch.randn(*s, dtype=torch.bfloat16) * 0.05)(B, S, D)),
            "w_gate": _w((lambda *s: torch.randn(*s, dtype=torch.bfloat16) * 0.05)(D, F)),
            "w_up": _w((lambda *s: torch.randn(*s, dtype=torch.bfloat16) * 0.05)(D, F)),
            "w_down": _w((lambda *s: torch.randn(*s, dtype=torch.bfloat16) * 0.05)(F, D)),
        }
    _B_in = _B_setup()

    return {
        "A_x": _A_in["x"],
        "A_k_cache": _A_in["k_cache"],
        "A_v_cache": _A_in["v_cache"],
        "A_wq": _A_in["wq"],
        "A_wo": _A_in["wo"],
        "B_x": _B_in["x"],
        "B_w_gate": _B_in["w_gate"],
        "B_w_up": _B_in["w_up"],
        "B_w_down": _B_in["w_down"],
    }

def reference(A_x, A_k_cache, A_v_cache, A_wq, A_wo, B_x, B_w_gate, B_w_up, B_w_down):
    def _A_ref(x, k_cache, v_cache, wq, wo):
        B, Sq, D = x.shape
        Hq, Dh = 32, 128
        Hkv = k_cache.shape[1]
        rep = Hq // Hkv
        q = (lambda x, *d: x.permute(*d))((x @ wq).reshape(B, Sq, Hq, Dh), 0, 2, 1, 3)
        k = (lambda x, n, axis: torch.repeat_interleave(x, n, dim=axis))(k_cache, rep, axis=1)
        v = (lambda x, n, axis: torch.repeat_interleave(x, n, dim=axis))(v_cache, rep, axis=1)
        scores = torch.einsum("bhqd,bhkd->bhqk", q, k) * (Dh ** -0.5)
        p = _softmax(scores, axis=-1)
        o = torch.einsum("bhqk,bhkd->bhqd", p, v)
        return (lambda x, *d: x.permute(*d))(o, 0, 2, 1, 3).reshape(B, Sq, Hq * Dh) @ wo

    def _B_ref(x, w_gate, w_up, w_down):
        g = _silu(x @ w_gate)
        u = x @ w_up
        return (g * u) @ w_down

    x = A_x
    xn = _layernorm(x, axis=-1)
    return x + _A_ref(xn, A_k_cache, A_v_cache, A_wq, A_wo) + _B_ref(xn, B_w_gate, B_w_up, B_w_down)
```

```python
import re

def vr(a, n=1):
    return f"v{a}" if n == 1 else f"v[{a}:{a+n-1}]"
def sr(a, n=1):
    return f"s{a}" if n == 1 else f"s[{a}:{a+n-1}]"

_reg_re = re.compile(r"(?<![\w.])([vsa])(\d+)(?![\w\[])|(?<![\w.])([vsa])\[(\d+):(\d+)\]|\b(vcc|exec|m0|scc)\b|\b(vcc_lo|vcc_hi|exec_lo|exec_hi)\b")

def regs_in(text):
    out = []
    for m in _reg_re.finditer(text):
        if m.group(1):
            out.append((m.group(1), int(m.group(2))))
        elif m.group(3):
            for k in range(int(m.group(4)), int(m.group(5)) + 1):
                out.append((m.group(3), k))
        elif m.group(6):
            out.append((m.group(6), 0))
        elif m.group(7):
            out.append((m.group(7)[:-3], 0))
    return out

TRANS = ("v_exp_f32", "v_log_f32", "v_rcp_f32", "v_rsq_f32", "v_sqrt_f32", "v_sin_f32", "v_cos_f32", "v_rcp_iflag_f32")

class Inst:
    __slots__ = ("text", "op", "dst", "src", "kind", "ws", "is_label", "dpp", "comment")
    def __init__(self, text):
        self.text = text
        t = text.split(";")[0].strip()
        self.is_label = t.endswith(":")
        self.dst = []; self.src = []; self.kind = "other"; self.ws = 1; self.dpp = False
        if self.is_label or not t or t.startswith("."):
            self.op = None; self.ws = 0; self.kind = "label" if self.is_label else "none"
            return
        parts = t.split(None, 1)
        op = parts[0]; self.op = op
        rest = parts[1] if len(parts) > 1 else ""
        ops = [o.strip() for o in re.split(r",(?![^\[]*\])", rest)]
        base = op.replace("_e32", "").replace("_e64", "").replace("_dpp", "").replace("_sdwa", "")
        R = regs_in
        if op == "s_nop":
            self.kind = "nop"; self.ws = int(ops[0], 0) + 1
        elif op.startswith("v_mfma"):
            self.kind = "mfma"
            self.dst = R(ops[0])
            self.src = R(ops[1]) + R(ops[2]) + R(ops[3])
            self.comment = (R(ops[1]) + R(ops[2]), R(ops[3]))
        elif op.startswith("v_cmp"):
            self.kind = "valu"
            self.dst = R(ops[0]); self.src = sum((R(o) for o in ops[1:]), [])
            if op.startswith("v_cmpx"): self.dst += [("exec", 0)]
        elif base in ("v_readfirstlane_b32", "v_readlane_b32"):
            self.kind = "readlane"
            self.dst = R(ops[0]); self.src = sum((R(o) for o in ops[1:]), [])
        elif base == "v_writelane_b32":
            self.kind = "valu"; self.dst = R(ops[0]); self.src = sum((R(o) for o in ops), [])
        elif op.startswith("v_permlane") and "swap" in op:
            self.kind = "permlane"
            self.dst = R(ops[0]) + R(ops[1]); self.src = list(self.dst)
        elif op.startswith("v_"):
            self.kind = "trans" if base in TRANS else "valu"
            self.dst = R(ops[0]); srcs = ops[1:]
            if base in ("v_add_co_u32", "v_sub_co_u32", "v_subrev_co_u32", "v_addc_co_u32", "v_subb_co_u32", "v_div_scale_f32", "v_mad_u64_u32"):
                self.dst += R(ops[1]); srcs = ops[2:]
            self.src = sum((R(o) for o in srcs), [])
            if base in ("v_fmac_f32", "v_mac_f32", "v_pk_fmac_f16", "v_dot2c_f32_bf16", "v_fmac_f64"):
                self.src += R(ops[0])
            if base == "v_cndmask_b32" and len(ops) == 3:
                self.src += [("vcc", 0)]
            if base in ("v_div_fmas_f32",): self.src += [("vcc", 0)]
            if "quad_perm" in t or "row_" in t or "wave_" in t or "_dpp" in op:
                self.dpp = True
        elif op.startswith("buffer_load") or op.startswith("global_load") or op.startswith("flat_load"):
            self.kind = "vmem"
            if " lds" in t or "_lds_" in op:
                self.src = sum((R(o) for o in ops), [])
            else:
                self.dst = R(ops[0]); self.src = sum((R(o) for o in ops[1:]), [])
        elif op.startswith("buffer_store") or op.startswith("global_store") or op.startswith("flat_store"):
            self.kind = "vstore"; self.src = sum((R(o) for o in ops), [])
            if op.startswith("buffer_store"): self.comment = R(ops[0])
            else: self.comment = R(ops[1])
        elif op.startswith("buffer_atomic") or op.startswith("global_atomic"):
            self.kind = "vmem"; self.src = sum((R(o) for o in ops), [])
            if " sc0" in t: self.dst = R(ops[0])
        elif op.startswith("buffer_") :
            self.kind = "vmem"
        elif op.startswith("ds_read") or op.startswith("ds_bpermute") or op.startswith("ds_permute") or op.startswith("ds_swizzle") or (op.startswith("ds_") and "_rtn" in op):
            self.kind = "ds"; self.dst = R(ops[0]); self.src = sum((R(o) for o in ops[1:]), [])
        elif op.startswith("ds_"):
            self.kind = "ds"; self.src = sum((R(o) for o in ops), [])
        elif op.startswith("s_load") or op.startswith("s_memtime") or op.startswith("s_memrealtime") or op.startswith("s_buffer_load"):
            self.kind = "smem"; self.dst = R(ops[0]); self.src = sum((R(o) for o in ops[1:]), [])
        elif op.startswith("s_cmp") or op.startswith("s_bitcmp"):
            self.kind = "salu"; self.src = sum((R(o) for o in ops), []); self.dst = [("scc", 0)]
        elif op.startswith("s_cbranch") or op in ("s_branch", "s_barrier", "s_endpgm", "s_waitcnt", "s_sleep", "s_setprio", "s_setpc_b64"):
            self.kind = "ctrl"
        elif op.startswith("s_getpc"):
            self.kind = "salu"; self.dst = R(ops[0])
        elif op.startswith("s_"):
            self.kind = "salu"; self.dst = R(ops[0]); self.src = sum((R(o) for o in ops[1:]), [])
            if "saveexec" in op: self.dst += [("exec", 0)]
        else:
            raise ValueError("unknown instruction: " + text)

VALU_KINDS = ("valu", "trans", "permlane", "readlane")

def need_ws(p, c):
    n = 0
    pd = set(p.dst); cs = set(c.src); cd = set(c.dst)
    pv = {r for r in pd if r[0] in "va" and len(r[0]) == 1}
    ps = {r for r in pd if r[0] in ("s", "vcc")}
    if p.kind in ("valu", "trans", "permlane", "readlane"):
        if c.kind == "mfma" and pv & cs: n = max(n, 2)
        if c.kind == "mfma" and ("exec", 0) in pd: n = max(n, 4)
        if c.dpp and pv & cs: n = max(n, 2)
        if c.dpp and ("exec", 0) in pd: n = max(n, 5)
        if c.kind == "permlane" and pv & cs: n = max(n, 2)
        if c.kind == "readlane" and pv & cs: n = max(n, 1)
        if ps & cs:
            if c.kind in ("valu", "trans", "permlane", "mfma"): n = max(n, 2)
            if c.kind == "readlane": n = max(n, 4)
            if c.kind in ("vmem", "vstore"): n = max(n, 5)
            if c.kind == "salu": n = max(n, 1)
        if p.kind == "trans" and c.kind in ("valu", "permlane", "readlane", "mfma", "trans") and pv & cs: n = max(n, 1)
        if p.kind == "trans" and c.kind in ("vstore", "ds", "vmem") and pv & cs: n = max(n, 1)
        if ("exec", 0) in pd and c.kind in ("readlane", "permlane"): n = max(n, 4)
    if p.kind == "mfma":
        passes = 8 if "32x32" in p.op else 4
        big = {4: 8, 8: 12}[passes]
        if c.kind == "mfma":
            ab, cc = c.comment
            if pv & set(ab): n = max(n, big)
            if pv & set(cc):
                if set(cc) == pv and c.op == p.op: pass
                else: n = max(n, {4: 6, 8: 10}[passes])
            if pv & cd and not (set(cc) == pv): n = max(n, {4: 6, 8: 10}[passes])
        elif c.kind in VALU_KINDS or c.kind in ("vmem", "vstore", "ds"):
            if pv & (cs | cd): n = max(n, big)
        ab, cc = p.comment
        if c.kind in VALU_KINDS and set(cc) & cd: n = max(n, {4: 3, 8: 7}[passes])
    if p.kind == "vstore" and ("x3" in p.op or "x4" in p.op):
        if set(p.comment) & cd and c.kind in VALU_KINDS: n = max(n, 2)
        elif set(p.comment) & cd: n = max(n, 1)
    if p.kind == "salu" and ("m0", 0) in pd and c.kind in ("vmem", "ds") and (" lds" in c.text or "addtid" in c.op or "_lds_" in c.op): n = max(n, 1)
    return n

class Asm:
    def __init__(self):
        self.lines = []
        self.uid = 0
    def __call__(self, text):
        for l in text.strip("\n").split("\n"):
            self.lines.append(l.strip() if l.strip().endswith(":") else "  " + l.strip())
    def label(self, name): self.lines.append(name + ":")
    def newlabel(self, stem="L"):
        self.uid += 1
        return f"{stem}_{self.uid}"
    def raw(self, text): self.lines.append(text)
    def finish(self, window=24):
        insts = [Inst(l) for l in self.lines]
        labels = {i.text.strip()[:-1]: k for k, i in enumerate(insts) if i.is_label}
        out = []
        ninserted = 0
        def check(prev, c):
            dist = 0; need = 0
            for p in reversed(prev[-window:]):
                if p.op is not None:
                    w = need_ws(p, c)
                    if w > dist: need = max(need, w - dist)
                dist += p.ws
                if dist > 24: break
            return need
        for k, c in enumerate(insts):
            if c.op is not None:
                need = check(out, c)
                if need > 0:
                    while need > 0:
                        n = min(need, 16)
                        out.append(Inst(f"  s_nop {n-1}")); need -= n; ninserted += 1
            out.append(c)
            if c.op is not None and (c.op.startswith("s_cbranch") or c.op == "s_branch"):
                tgt = c.text.split(";")[0].split()[1]
                tk = labels[tgt]
                seq = list(out)
                dist_used = 0
                worst = 0
                for t in insts[tk:tk + window]:
                    if t.op is not None:
                        nd = check(seq, t)
                        worst = max(worst, nd)
                        if t.op == "s_branch" or t.op == "s_endpgm": break
                    seq.append(t)
                if worst > 0:
                    br = out.pop()
                    need = worst
                    while need > 0:
                        n = min(need, 16)
                        out.append(Inst(f"  s_nop {n-1}")); need -= n; ninserted += 1
                    out.append(br)
        self.ninserted = ninserted
        return "\n".join(i.text for i in out) + "\n"
```

```python
import sys
from dsl import Asm, vr, sr

NAME = "parallel_sum__gqa_block_cached__swiglu_ffn__decode"
LOG2E = 0x3fb8aa3b
SCALE = 0x3db504f3
SENT = 0xFFFFFFFF

XN_STRIDE = 1312
LDS_XN = 0
LDS_QPART = LDS_XN + 8 * XN_STRIDE
LDS_Q = LDS_QPART + 8 * 512
LDS_SP = LDS_Q + 512
SP_STRIDE = 1040
LDS_O = LDS_SP + 8 * SP_STRIDE
O_STRIDE = 544
LDS_CNT = LDS_O + 8 * O_STRIDE
LDS_H = LDS_CNT + 64
H_STRIDE = 352
LDS_FP = LDS_H + 8 * H_STRIDE
LDS_WO = LDS_FP + 8 * 4096
LDS_TOTAL = LDS_WO + 65536

REC_STRIDE = 2048
WS_REC = 0
WS_P2 = 256 * REC_STRIDE
WS_F2 = WS_P2 + 16 * 5 * 4096
WS_DBG = WS_F2 + 36 * 5 * 4096
WS_SIZE = WS_DBG + (1 << 20)

S_WAVE = 3
S_X, S_K, S_V, S_WQ, S_WO, S_BX, S_WG, S_WU = 4, 6, 8, 10, 12, 14, 16, 18
S_WD, S_OUT, S_DBG, S_WS = 20, 22, 24, 26
S_HKV, S_B, S_SPLIT, S_J = 28, 29, 30, 31
SRD_K, SRD_V, SRD_W, SRD_WS = 32, 36, 40, 44
S_SEL_LO, S_SEL_HI = 48, 49
S_OFF, S_OFF2, S_CNT = 50, 51, 52
S_STRIDE, S_UOFF, S_USTEP, S_ASTEP, S_T0 = 53, 54, 55, 56, 57
S_HW, S_JOB, S_F, S_T1, S_T2, S_T3 = 58, 59, 60, 61, 62, 63
S_LOG2E, S_SCALE, S_MASKHI, S_SENTM1 = 64, 65, 66, 67
S_EX = 68
S_EX2 = 70
SRD_X = 72
SRD_O = 76
S_SPIN = 80
S_R = 81
S_CB = 82

class Gen:
    def __init__(self, debug=False):
        self.a = Asm()
        self.debug = debug

    def srd(self, dst, base, size, off_sgpr=None, off_imm=None):
        a = self.a
        if off_sgpr is not None:
            a(f"s_add_u32 s{dst}, s{base}, s{off_sgpr}")
            a(f"s_addc_u32 s{dst+1}, s{base+1}, 0")
        elif off_imm:
            a(f"s_add_u32 s{dst}, s{base}, {off_imm}")
            a(f"s_addc_u32 s{dst+1}, s{base+1}, 0")
        else:
            a(f"s_mov_b32 s{dst}, s{base}")
            a(f"s_mov_b32 s{dst+1}, s{base+1}")
        if isinstance(size, str):
            a(f"s_mov_b32 s{dst+2}, {size}")
        else:
            a(f"s_mov_b32 s{dst+2}, {size}")
        a(f"s_mov_b32 s{dst+3}, 0x20000")

    def wave_sum(self, x, t):
        a = self.a
        for pat in ("quad_perm:[1,0,3,2]", "quad_perm:[2,3,0,1]", "row_half_mirror", "row_mirror"):
            a(f"v_add_f32_dpp v{x}, v{x}, v{x} {pat} row_mask:0xf bank_mask:0xf")
        a(f"v_mov_b32 v{t}, v{x}")
        a(f"v_permlane16_swap_b32 v{x}, v{t}")
        a(f"v_add_f32 v{x}, v{x}, v{t}")
        a(f"v_mov_b32 v{t}, v{x}")
        a(f"v_permlane32_swap_b32 v{x}, v{t}")
        a(f"v_add_f32 v{x}, v{x}, v{t}")

    def rne(self, x):
        a = self.a
        a(f"v_cvt_pk_bf16_f32 v{x}, v{x}, v{x}")
        a(f"v_and_b32 v{x}, 0xffff0000, v{x}")

    def prologue(self):
        a = self.a
        a(f"s_cmp_ge_u32 s2, 256")
        a("s_cbranch_scc1 L_end")
        a("s_load_dwordx16 s[4:19], s[0:1], 0")
        a("s_load_dwordx8 s[20:27], s[0:1], 64")
        a("v_lshrrev_b32 v1, 6, v0")
        a("v_and_b32 v0, 63, v0")
        a(f"v_readfirstlane_b32 s{S_WAVE}, v1")
        a(f"s_and_b32 s{S_HKV}, s2, 7")
        a(f"s_lshr_b32 s{S_T0}, s2, 3")
        a(f"s_and_b32 s{S_T1}, s{S_T0}, 1")
        a(f"s_lshl_b32 s{S_HKV}, s{S_HKV}, 1")
        a(f"s_add_u32 s{S_HKV}, s{S_HKV}, s{S_T1}")
        a(f"s_lshr_b32 s{S_T0}, s{S_T0}, 1")
        a(f"s_and_b32 s{S_B}, s{S_T0}, 7")
        a(f"s_lshr_b32 s{S_SPLIT}, s{S_T0}, 3")
        a(f"s_lshl_b32 s{S_J}, s{S_B}, 1")
        a(f"s_add_u32 s{S_J}, s{S_J}, s{S_SPLIT}")
        a(f"s_mov_b32 s{S_SEL_LO}, 0x05040100")
        a(f"s_mov_b32 s{S_SEL_HI}, 0x07060302")
        a(f"s_mov_b32 s{S_LOG2E}, {LOG2E:#x}")
        a(f"s_mov_b32 s{S_SCALE}, {SCALE:#x}")
        a(f"s_mov_b32 s{S_MASKHI}, 0xffff0000")
        a(f"s_mov_b32 s{S_SENTM1}, 0xfffffffe")
        a("s_waitcnt lgkmcnt(0)")
        self.srd(SRD_WS, S_WS, WS_SIZE)
        a(f"s_cmp_ge_u32 s{S_WAVE}, 8")
        a("s_cbranch_scc1 L_helper")

    def stream(self):
        a = self.a
        VK, VV, M, L, P, S, Q, O, KB, VB = 0, 1, 2, 3, 4, 8, 16, 32, 64, 96
        a(f"s_lshl_b32 s{S_T0}, s{S_B}, 4")
        a(f"s_add_u32 s{S_T0}, s{S_T0}, s{S_HKV}")
        a(f"s_lshl_b32 s{S_T0}, s{S_T0}, 1")
        a(f"s_add_u32 s{S_T0}, s{S_T0}, s{S_SPLIT}")
        a(f"s_lshl_b32 s{S_T0}, s{S_T0}, 20")
        self.srd(SRD_K, S_K, 0x100000, off_sgpr=S_T0)
        self.srd(SRD_V, S_V, 0x100000, off_sgpr=S_T0)
        a("v_and_b32 v4, 15, v0")
        a("v_lshrrev_b32 v5, 4, v0")
        a("v_lshlrev_b32 v6, 10, v5")
        a("v_lshl_add_u32 v1, v4, 4, v6")
        a("v_lshlrev_b32 v6, 4, v5")
        a("v_and_b32 v7, 1, v0")
        a("v_lshl_add_u32 v7, v7, 8, v6")
        a("v_lshl_add_u32 v0, v4, 8, v6")
        a(f"s_lshl_b32 s{S_OFF}, s{S_WAVE}, 13")
        a(f"s_add_u32 s{S_OFF2}, s{S_OFF}, 4096")
        def issueK():
            for u in range(2):
                for s in range(4):
                    r = KB + (u * 4 + s) * 4
                    a(f"buffer_load_dwordx4 {vr(r,4)}, v{VK}, {sr(SRD_K,4)}, s{S_OFF if u == 0 else S_OFF2} offen offset:{s*64} nt")
        def issueV():
            for u in range(2):
                for r_ in range(4):
                    r = VB + (u * 4 + r_) * 4
                    a(f"buffer_load_dwordx4 {vr(r,4)}, v{VV}, {sr(SRD_V,4)}, s{S_OFF if u == 0 else S_OFF2} offen offset:{r_*256} nt")
        issueK(); issueV()
        for k in range(32):
            a(f"v_mov_b32 v{O+k}, 0")
        a(f"v_mov_b32 v{M}, 0xff800000")
        a(f"v_mov_b32 v{L}, 0")
        a("s_barrier")
        a("s_barrier")
        a("s_barrier")
        for s in range(4):
            a(f"ds_read_b128 {vr(Q+4*s,4)}, v7 offset:{LDS_Q + s*64}")
        a(f"s_mov_b32 s{S_CNT}, 16")
        a("s_waitcnt lgkmcnt(0)")
        a.label("L_sloop")
        a(f"s_add_u32 s{S_OFF}, s{S_OFF}, 65536")
        a(f"s_add_u32 s{S_OFF2}, s{S_OFF}, 4096")
        a("s_waitcnt vmcnt(8)")
        for s in range(4):
            for u in range(2):
                c = "0" if s == 0 else vr(S + 4 * u, 4)
                a(f"v_mfma_f32_16x16x32_bf16 {vr(S+4*u,4)}, {vr(KB+(u*4+s)*4,4)}, {vr(Q+4*s,4)}, {c}")
        issueK()
        for p in range(4):
            a(f"v_cvt_pk_bf16_f32 v{P+p}, v{S+2*p}, v{S+2*p+1}")
        for p in range(4):
            a(f"v_lshlrev_b32 v{S+2*p}, 16, v{P+p}")
            a(f"v_and_b32 v{S+2*p+1}, s{S_MASKHI}, v{P+p}")
        for k in range(8):
            a(f"v_mul_f32 v{S+k}, s{S_SCALE}, v{S+k}")
        for p in range(4):
            a(f"v_cvt_pk_bf16_f32 v{P+p}, v{S+2*p}, v{S+2*p+1}")
        for p in range(4):
            a(f"v_lshlrev_b32 v{S+2*p}, 16, v{P+p}")
            a(f"v_and_b32 v{S+2*p+1}, s{S_MASKHI}, v{P+p}")
        a(f"v_max3_f32 v{P}, v{S}, v{S+1}, v{S+2}")
        a(f"v_max3_f32 v{P+1}, v{S+3}, v{S+4}, v{S+5}")
        a(f"v_max3_f32 v{P}, v{P}, v{S+6}, v{S+7}")
        a(f"v_max_f32 v{P}, v{P}, v{P+1}")
        a(f"v_cmp_gt_f32 vcc, v{P}, v{M}")
        a("s_cbranch_vccz L_nores")
        a(f"v_mov_b32 v{P+1}, v{P}")
        a(f"v_permlane16_swap_b32 v{P}, v{P+1}")
        a(f"v_max_f32 v{P}, v{P}, v{P+1}")
        a(f"v_mov_b32 v{P+1}, v{P}")
        a(f"v_permlane32_swap_b32 v{P}, v{P+1}")
        a(f"v_max3_f32 v{P}, v{P}, v{P+1}, v{M}")
        a(f"v_sub_f32 v{P+2}, v{M}, v{P}")
        a(f"v_mul_f32 v{P+2}, s{S_LOG2E}, v{P+2}")
        a(f"v_exp_f32 v{P+2}, v{P+2}")
        a(f"v_mov_b32 v{M}, v{P}")
        a(f"v_mov_b32 v{P+3}, v{P+2}")
        a(f"v_mul_f32 v{L}, v{L}, v{P+2}")
        for k in range(16):
            a(f"v_pk_mul_f32 {vr(O+2*k,2)}, {vr(O+2*k,2)}, {vr(P+2,2)}")
        a.label("L_nores")
        a(f"v_mul_f32 v{P}, s{S_LOG2E}, v{M}")
        for k in range(8):
            a(f"v_fma_f32 v{S+k}, v{S+k}, s{S_LOG2E}, -v{P}")
        for k in range(8):
            a(f"v_exp_f32 v{S+k}, v{S+k}")
        a(f"v_add_f32 v{P+1}, v{S}, v{S+1}")
        a(f"v_add_f32 v{P+2}, v{S+2}, v{S+3}")
        a(f"v_add_f32 v{P+3}, v{S+4}, v{S+5}")
        a(f"v_add_f32 v{P}, v{S+6}, v{S+7}")
        a(f"v_add_f32 v{P+1}, v{P+1}, v{P+2}")
        a(f"v_add_f32 v{P+3}, v{P+3}, v{P}")
        a(f"v_add_f32 v{L}, v{L}, v{P+1}")
        a(f"v_add_f32 v{L}, v{L}, v{P+3}")
        for p in range(4):
            a(f"v_cvt_pk_bf16_f32 v{P+p}, v{S+2*p}, v{S+2*p+1}")
        a("s_waitcnt vmcnt(8)")
        def perms(c, e):
            for p in range(4):
                a(f"v_perm_b32 v{S+4*e+p}, v{VB+(2*p+1)*4+c}, v{VB+(2*p)*4+c}, s{S_SEL_LO if e == 0 else S_SEL_HI}")
        def pv(c, e):
            j = 2 * c + e
            a(f"v_mfma_f32_16x16x32_bf16 {vr(O+4*j,4)}, {vr(S+4*e,4)}, {vr(P,4)}, {vr(O+4*j,4)}")
        perms(0, 0); perms(0, 1)
        for c in range(4):
            pv(c, 0)
            if c < 3: perms(c + 1, 0)
            pv(c, 1)
            if c < 3: perms(c + 1, 1)
        issueV()
        a(f"s_sub_u32 s{S_CNT}, s{S_CNT}, 1")
        a(f"s_cmp_lg_u32 s{S_CNT}, 0")
        a("s_cbranch_scc1 L_sloop")
        a(f"v_mov_b32 v{P}, v{L}")
        a(f"v_permlane16_swap_b32 v{L}, v{P}")
        a(f"v_add_f32 v{L}, v{L}, v{P}")
        a(f"v_mov_b32 v{P}, v{L}")
        a(f"v_permlane32_swap_b32 v{L}, v{P}")
        a(f"v_add_f32 v{L}, v{L}, v{P}")
        a("v_mbcnt_lo_u32_b32 v8, -1, 0")
        a("v_mbcnt_hi_u32_b32 v8, -1, v8")
        a("v_and_b32 v9, 15, v8")
        a("v_lshrrev_b32 v10, 4, v8")
        a(f"s_mul_i32 s{S_T0}, s{S_WAVE}, {SP_STRIDE}")
        a(f"s_add_u32 s{S_T0}, s{S_T0}, {LDS_SP}")
        a("v_lshlrev_b32 v11, 9, v9")
        a("v_lshl_add_u32 v11, v10, 4, v11")
        a(f"v_add_u32 v11, s{S_T0}, v11")
        a("v_cmp_gt_u32 vcc, 2, v9")
        a(f"s_and_saveexec_b64 {sr(S_EX,2)}, vcc")
        for j in range(8):
            a(f"ds_write_b128 v11, {vr(O+4*j,4)} offset:{j*64}")
        a("v_cmp_gt_u32 vcc, 2, v8")
        a("s_and_b64 exec, exec, vcc")
        a("v_lshlrev_b32 v12, 3, v9")
        a(f"v_add_u32 v12, s{S_T0}, v12")
        a(f"ds_write_b64 v12, {vr(M,2)} offset:1024")
        a(f"s_mov_b64 exec, {sr(S_EX,2)}")
        a("s_waitcnt lgkmcnt(0)")
        a("s_branch L_B4")

    def gemv_issue(self, buf, flags):
        a = self.a
        a(f"s_mov_b32 s{S_T0}, s{S_UOFF}")
        for t in range(8):
            a(f"buffer_load_dwordx4 {vr(buf+4*t,4)}, v1, {sr(SRD_W,4)}, s{S_T0} offen {flags}")
            if t < 7:
                a(f"s_add_u32 s{S_T0}, s{S_T0}, s{S_STRIDE}")
        a(f"s_add_u32 s{S_UOFF}, s{S_UOFF}, s{S_USTEP}")

    def gemv_process(self, buf, vm):
        a = self.a
        T, A, ACC = 8, 16, 32
        a(f"ds_read_b128 {vr(A,4)}, v2")
        a(f"v_add_u32 v2, s{S_ASTEP}, v2")
        a(f"s_waitcnt vmcnt({vm})")
        def perms(c, e):
            for p in range(4):
                a(f"v_perm_b32 v{T+4*e+p}, v{buf+(2*p+1)*4+c}, v{buf+(2*p)*4+c}, s{S_SEL_LO if e == 0 else S_SEL_HI}")
        def mm(c, e):
            j = 2 * c + e
            a(f"v_mfma_f32_16x16x32_bf16 {vr(ACC+4*j,4)}, {vr(A,4)}, {vr(T+4*e,4)}, {vr(ACC+4*j,4)}")
        perms(0, 0); perms(0, 1)
        a("s_waitcnt lgkmcnt(0)")
        for c in range(4):
            mm(c, 0)
            if c < 3: perms(c + 1, 0)
            mm(c, 1)
            if c < 3: perms(c + 1, 1)

    def gemv_body(self, flags, tag, first_issued=False):
        a = self.a
        B0, B1 = 64, 96
        if not first_issued:
            self.gemv_issue(B0, flags)
            self.gemv_issue(B1, flags)
        for k in range(32):
            a(f"v_mov_b32 v{32+k}, 0")
        a(f"s_mov_b32 s{S_CNT}, 2")
        a.label(f"L_gl_{tag}")
        self.gemv_process(B0, 8)
        self.gemv_issue(B0, flags)
        self.gemv_process(B1, 8)
        self.gemv_issue(B1, flags)
        a(f"s_sub_u32 s{S_CNT}, s{S_CNT}, 1")
        a(f"s_cmp_lg_u32 s{S_CNT}, 0")
        a(f"s_cbranch_scc1 L_gl_{tag}")
        self.gemv_process(B0, 8)

    def voffW(self, stride_sgpr_times8_imm=None):
        a = self.a
        a("v_lshrrev_b32 v3, 4, v0")
        a(f"s_lshl_b32 s{S_T0}, s{S_STRIDE}, 3")
        a(f"v_mul_lo_u32 v3, v3, s{S_T0}")
        a("v_and_b32 v1, 15, v0")
        a("v_lshl_add_u32 v1, v1, 4, v3")

    def helper_sync(self, idx):
        a = self.a
        lab = a.newlabel("L_hs")
        a("s_waitcnt lgkmcnt(0)")
        a(f"v_mov_b32 v3, {LDS_CNT + 4*idx}")
        a("v_mov_b32 v4, 1")
        a(f"v_cmp_eq_u32 vcc, 0, v0")
        a(f"s_and_saveexec_b64 {sr(S_EX,2)}, vcc")
        a("ds_add_u32 v3, v4")
        a(f"s_mov_b64 exec, {sr(S_EX,2)}")
        a(f"s_mov_b32 s{S_SPIN}, 0")
        a.label(lab)
        a("ds_read_b32 v4, v3")
        a("s_waitcnt lgkmcnt(0)")
        a(f"v_readfirstlane_b32 s{S_T0}, v4")
        a(f"s_add_u32 s{S_SPIN}, s{S_SPIN}, 1")
        a(f"s_cmp_ge_u32 s{S_T0}, 8")
        a(f"s_cbranch_scc1 {lab}_done")
        a("s_sleep 1")
        a(f"s_cmp_lt_u32 s{S_SPIN}, 0x100000")
        a(f"s_cbranch_scc1 {lab}")
        a.label(lab + "_done")

    def poll_counter(self, target):
        a = self.a
        lab = a.newlabel("L_pc")
        a(f"s_mov_b32 s{S_SPIN}, 0")
        a("v_mov_b32 v3, 0")
        a.label(lab)
        a(f"global_load_dword v4, v3, {sr(S_DBG,2)} sc1")
        a("s_waitcnt vmcnt(0)")
        a(f"v_readfirstlane_b32 s{S_T0}, v4")
        a(f"s_add_u32 s{S_SPIN}, s{S_SPIN}, 1")
        a(f"s_cmp_ge_u32 s{S_T0}, {target}")
        a(f"s_cbranch_scc1 {lab}_done")
        a("s_sleep 8")
        a(f"s_cmp_lt_u32 s{S_SPIN}, 0x40000")
        a(f"s_cbranch_scc1 {lab}")
        a.label(lab + "_done")

    def helper(self):
        a = self.a
        a.label("L_helper")
        a(f"s_sub_u32 s{S_HW}, s{S_WAVE}, 8")
        a(f"s_mul_i32 s{S_T0}, s{S_HW}, 1152")
        self.srd(SRD_X, S_X, 1152, off_sgpr=S_T0)
        a("v_lshlrev_b32 v3, 5, v0")
        a(f"buffer_load_dwordx4 v[16:19], v3, {sr(SRD_X,4)}, 0 offen")
        a(f"buffer_load_dwordx4 v[20:23], v3, {sr(SRD_X,4)}, 0 offen offset:16")
        self.srd(SRD_W, S_WQ, 576 * 8192)
        a(f"s_mov_b32 s{S_STRIDE}, 8192")
        self.voffW()
        a(f"s_lshr_b32 s{S_T1}, s{S_HW}, 1")
        a(f"s_lshl_b32 s{S_UOFF}, s{S_T1}, 18")
        a(f"s_and_b32 s{S_T2}, s{S_HW}, 1")
        a(f"s_lshl_b32 s{S_T2}, s{S_T2}, 8")
        a(f"s_lshl_b32 s{S_T3}, s{S_HKV}, 9")
        a(f"s_add_u32 s{S_UOFF}, s{S_UOFF}, s{S_T2}")
        a(f"s_add_u32 s{S_UOFF}, s{S_UOFF}, s{S_T3}")
        a(f"s_mov_b32 s{S_USTEP}, {4*32*8192}")
        a(f"s_mov_b32 s{S_ASTEP}, 256")
        self.gemv_issue(64, "")
        self.gemv_issue(96, "")
        X = 32
        a("s_waitcnt vmcnt(16)")
        for k in range(8):
            a(f"v_lshlrev_b32 v{X+2*k}, 16, v{16+k}")
            a(f"v_and_b32 v{X+2*k+1}, s{S_MASKHI}, v{16+k}")
        a(f"v_add_f32 v4, v{X}, v{X+1}")
        for k in range(2, 16):
            a(f"v_add_f32 v4, v4, v{X+k}")
        self.wave_sum(4, 5)
        a(f"s_mov_b32 s{S_T1}, 0x44100000")
        a(f"s_mov_b32 s{S_T2}, 0x3ae38e39")
        a(f"v_mul_f32 v5, s{S_T2}, v4")
        a(f"v_fma_f32 v6, -v5, s{S_T1}, v4")
        a(f"v_fma_f32 v5, v6, s{S_T2}, v5")
        a("v_cmp_gt_u32 vcc, 36, v0")
        a(f"v_sub_f32 v6, v{X}, v5")
        a("v_mul_f32 v7, v6, v6")
        for k in range(1, 16):
            a(f"v_sub_f32 v6, v{X+k}, v5")
            a("v_fmac_f32 v7, v6, v6")
        a("v_cndmask_b32 v7, 0, v7, vcc")
        self.wave_sum(7, 6)
        a(f"v_mul_f32 v6, s{S_T2}, v7")
        a(f"v_fma_f32 v4, -v6, s{S_T1}, v7")
        a(f"v_fma_f32 v6, v4, s{S_T2}, v6")
        self.rne(5)
        self.rne(6)
        a("v_add_f32 v6, 0x3727c5ac, v6")
        self.rne(6)
        a("v_sqrt_f32 v7, v6")
        a("v_rcp_f32 v4, v7")
        a("v_fma_f32 v8, -v7, v7, v6")
        a("v_mul_f32 v4, 0.5, v4")
        a("v_fma_f32 v7, v8, v4, v7")
        self.rne(7)
        a("v_rcp_f32 v4, v7")
        for k in range(16):
            a(f"v_sub_f32 v{X+k}, v{X+k}, v5")
        for k in range(8):
            a(f"v_cvt_pk_bf16_f32 v{16+k}, v{X+2*k}, v{X+2*k+1}")
        for k in range(8):
            a(f"v_lshlrev_b32 v{X+2*k}, 16, v{16+k}")
            a(f"v_and_b32 v{X+2*k+1}, s{S_MASKHI}, v{16+k}")
        for k in range(16):
            a(f"v_mul_f32 v8, v{X+k}, v4")
            a(f"v_fma_f32 v9, -v8, v7, v{X+k}")
            a(f"v_fma_f32 v{X+k}, v9, v4, v8")
        for k in range(8):
            a(f"v_cvt_pk_bf16_f32 v{16+k}, v{X+2*k}, v{X+2*k+1}")
        for k in range(8):
            a(f"v_cndmask_b32 v{16+k}, 0, v{16+k}, vcc")
        a(f"s_mul_i32 s{S_T0}, s{S_HW}, {XN_STRIDE}")
        a("v_lshlrev_b32 v3, 5, v0")
        a(f"v_add_u32 v3, s{S_T0}, v3")
        a("v_cmp_gt_u32 vcc, 40, v0")
        a(f"s_and_saveexec_b64 {sr(S_EX,2)}, vcc")
        a(f"ds_write_b128 v3, v[16:19] offset:{LDS_XN}")
        a(f"ds_write_b128 v3, v[20:23] offset:{LDS_XN+16}")
        a(f"s_mov_b64 exec, {sr(S_EX,2)}")
        a("v_mov_b32 v4, 0")
        a("v_lshlrev_b32 v3, 2, v0")
        a("v_cmp_gt_u32 vcc, 16, v0")
        a(f"s_and_saveexec_b64 {sr(S_EX,2)}, vcc")
        a(f"ds_write_b32 v3, v4 offset:{LDS_CNT}")
        a(f"s_mov_b64 exec, {sr(S_EX,2)}")
        a(f"s_mul_i32 s{S_T0}, s{S_B}, {XN_STRIDE}")
        a(f"s_lshr_b32 s{S_T1}, s{S_HW}, 1")
        a(f"s_lshl_b32 s{S_T1}, s{S_T1}, 6")
        a(f"s_add_u32 s{S_T0}, s{S_T0}, s{S_T1}")
        a("v_lshrrev_b32 v2, 4, v0")
        a("v_lshlrev_b32 v2, 4, v2")
        a(f"v_add_u32 v2, s{S_T0}, v2")
        a("s_waitcnt lgkmcnt(0)")
        a("s_barrier")
        self.gemv_body("", "q", first_issued=True)
        a(f"s_lshl_b32 s{S_T0}, s{S_HW}, 9")
        a("v_lshlrev_b32 v3, 5, v0")
        a(f"v_add_u32 v3, s{S_T0}, v3")
        a("v_cmp_gt_u32 vcc, 16, v0")
        a(f"s_and_saveexec_b64 {sr(S_EX,2)}, vcc")
        for j in range(8):
            a(f"ds_write_b32 v3, v{32+4*j} offset:{LDS_QPART + 4*j}")
        a(f"s_mov_b64 exec, {sr(S_EX,2)}")
        a("s_waitcnt lgkmcnt(0)")
        a("s_barrier")
        a(f"s_cmp_ge_u32 s{S_HW}, 4")
        a("s_cbranch_scc1 L_qf_done")
        a(f"s_lshl_b32 s{S_T0}, s{S_HW}, 6")
        a(f"v_add_u32 v3, s{S_T0}, v0")
        a("v_lshrrev_b32 v4, 7, v3")
        a("v_and_b32 v5, 127, v3")
        a("v_lshlrev_b32 v6, 9, v4")
        a("v_lshl_add_u32 v6, v5, 2, v6")
        for k in range(4):
            a(f"ds_read_b32 v{8+k}, v6 offset:{LDS_QPART + k*1024}")
        a("s_waitcnt lgkmcnt(0)")
        a("v_add_f32 v8, v8, v9")
        a("v_add_f32 v10, v10, v11")
        a("v_add_f32 v8, v8, v10")
        a("v_cvt_pk_bf16_f32 v8, v8, v8")
        a("v_lshlrev_b32 v6, 1, v3")
        a(f"ds_write_b16 v6, v8 offset:{LDS_Q}")
        if self.debug:
            a("v_and_b32 v9, 0xffff0000, v8")
            a(f"s_lshl_b32 s{S_T0}, s2, 10")
            a(f"s_add_u32 s{S_T0}, s{S_T0}, {WS_DBG}")
            a("v_lshlrev_b32 v10, 2, v3")
            a(f"buffer_store_dword v9, v10, {sr(SRD_WS,4)}, s{S_T0} offen")
        a("s_waitcnt lgkmcnt(0)")
        a.label("L_qf_done")
        a("s_barrier")
        self.helper_mid()
        a("s_branch L_B4")

    def helper_mid(self):
        a = self.a
        a(f"s_cmp_lg_u32 s{S_HW}, 7")
        a("s_cbranch_scc1 L_noreset")
        a("v_mov_b32 v4, -1"); a("v_mov_b32 v5, -1"); a("v_mov_b32 v6, -1"); a("v_mov_b32 v7, -1")
        a("v_lshlrev_b32 v3, 4, v0")
        a(f"s_lshl_b32 s{S_T0}, s{S_HKV}, 4")
        a(f"s_add_u32 s{S_T0}, s{S_T0}, s{S_J}")
        a(f"s_lshl_b32 s{S_T0}, s{S_T0}, 11")
        a(f"buffer_store_dwordx4 v[4:7], v3, {sr(SRD_WS,4)}, s{S_T0} offen sc1")
        a(f"buffer_store_dwordx4 v[4:7], v3, {sr(SRD_WS,4)}, s{S_T0} offen offset:1024 sc1")
        a(f"s_cmp_ge_u32 s{S_J}, 5")
        a("s_cbranch_scc1 L_reset_nop2")
        a(f"s_mul_i32 s{S_T0}, s{S_HKV}, 5")
        a(f"s_add_u32 s{S_T0}, s{S_T0}, s{S_J}")
        a(f"s_lshl_b32 s{S_T0}, s{S_T0}, 12")
        a(f"s_add_u32 s{S_T0}, s{S_T0}, {WS_P2}")
        for k in range(4):
            a(f"buffer_store_dwordx4 v[4:7], v3, {sr(SRD_WS,4)}, s{S_T0} offen offset:{k*1024} sc1")
        a.label("L_reset_nop2")
        a.label("L_noreset")
        a(f"s_mov_b32 s{S_F}, -1")
        a(f"s_sub_u32 s{S_T0}, s{S_J}, 5")
        a(f"s_cmp_lt_u32 s{S_T0}, 2")
        a("s_cbranch_scc0 L_f_n56")
        a(f"s_lshl_b32 s{S_F}, s{S_HKV}, 1")
        a(f"s_add_u32 s{S_F}, s{S_F}, s{S_T0}")
        a("s_branch L_f_dec")
        a.label("L_f_n56")
        a(f"s_cmp_eq_u32 s{S_J}, 7")
        a("s_cbranch_scc0 L_f_dec")
        a(f"s_cmp_lt_u32 s{S_HKV}, 4")
        a("s_cbranch_scc0 L_f_dec")
        a(f"s_add_u32 s{S_F}, s{S_HKV}, 32")
        a.label("L_f_dec")
        a(f"s_cmp_lg_u32 s{S_HW}, 7")
        a("s_cbranch_scc1 L_reset_done")
        a(f"s_cmp_lt_i32 s{S_F}, 0")
        a("s_cbranch_scc1 L_reset_sig")
        a(f"s_mul_i32 s{S_T0}, s{S_F}, 20480")
        a(f"s_add_u32 s{S_T0}, s{S_T0}, {WS_F2}")
        a(f"s_mov_b32 s{S_CNT}, 5")
        a.label("L_reset_f2")
        for k in range(4):
            a(f"buffer_store_dwordx4 v[4:7], v3, {sr(SRD_WS,4)}, s{S_T0} offen offset:{k*1024} sc1")
        a(f"s_add_u32 s{S_T0}, s{S_T0}, 4096")
        a(f"s_sub_u32 s{S_CNT}, s{S_CNT}, 1")
        a(f"s_cmp_lg_u32 s{S_CNT}, 0")
        a("s_cbranch_scc1 L_reset_f2")
        a.label("L_reset_sig")
        a("s_waitcnt vmcnt(0)")
        a("v_mov_b32 v3, 0")
        a("v_mov_b32 v4, 1")
        a("v_cmp_eq_u32 vcc, 0, v0")
        a(f"s_and_saveexec_b64 {sr(S_EX,2)}, vcc")
        a(f"global_atomic_add v3, v4, {sr(S_DBG,2)} sc1")
        a(f"s_mov_b64 exec, {sr(S_EX,2)}")
        a.label("L_reset_done")
        a(f"s_cmp_lt_i32 s{S_F}, 0")
        a("s_cbranch_scc1 L_noffn")
        self.ffn()
        a.label("L_noffn")
        a(f"s_cmp_ge_u32 s{S_J}, 5")
        a("s_cbranch_scc1 L_nowo")
        self.wo_prefetch()
        a(f"s_cmp_lg_u32 s{S_HW}, 0")
        a("s_cbranch_scc1 L_nowo")
        self.poll_counter(256)
        a.label("L_nowo")
        self.reducer_decode()
        a(f"s_cmp_lt_i32 s{S_R}, 0")
        a("s_cbranch_scc1 L_nored_pre")
        a(f"s_cmp_lg_u32 s{S_HW}, 0")
        a("s_cbranch_scc1 L_nored_pre")
        self.reducer_pre()
        a.label("L_nored_pre")

    def reducer_decode(self):
        a = self.a
        a(f"s_mov_b32 s{S_R}, -1")
        a(f"s_cmp_eq_u32 s{S_J}, 8")
        a("s_cbranch_scc0 L_r_n8")
        a(f"s_mov_b32 s{S_R}, s{S_HKV}")
        a("s_branch L_r_dec")
        a.label("L_r_n8")
        a(f"s_cmp_eq_u32 s{S_J}, 9")
        a("s_cbranch_scc0 L_r_dec")
        a(f"s_cmp_lt_u32 s{S_HKV}, 2")
        a("s_cbranch_scc0 L_r_dec")
        a(f"s_add_u32 s{S_R}, s{S_HKV}, 16")
        a.label("L_r_dec")

    def ffn(self):
        a = self.a
        a(f"s_and_b32 s{S_T1}, s{S_HW}, 1")
        a(f"s_cmp_eq_u32 s{S_T1}, 0")
        a(f"s_cselect_b32 s{SRD_W}, s{S_WG}, s{S_WU}")
        a(f"s_cselect_b32 s{SRD_W+1}, s{S_WG+1}, s{S_WU+1}")
        a(f"s_mov_b32 s{SRD_W+2}, {576*9216}")
        a(f"s_mov_b32 s{SRD_W+3}, 0x20000")
        a(f"s_mov_b32 s{S_STRIDE}, 9216")
        self.voffW()
        a(f"s_lshr_b32 s{S_T1}, s{S_HW}, 1")
        a(f"s_mul_i32 s{S_UOFF}, s{S_T1}, {32*9216}")
        a(f"s_lshl_b32 s{S_T2}, s{S_F}, 8")
        a(f"s_add_u32 s{S_UOFF}, s{S_UOFF}, s{S_T2}")
        a(f"s_mov_b32 s{S_USTEP}, {4*32*9216}")
        a(f"s_mov_b32 s{S_ASTEP}, 256")
        a("v_and_b32 v2, 7, v0")
        a(f"s_mov_b32 s{S_T0}, {XN_STRIDE}")
        a(f"v_mul_lo_u32 v2, v2, s{S_T0}")
        a("v_lshrrev_b32 v3, 4, v0")
        a("v_lshl_add_u32 v2, v3, 4, v2")
        a(f"s_lshl_b32 s{S_T1}, s{S_T1}, 6")
        a(f"v_add_u32 v2, s{S_T1}, v2")
        self.gemv_body("nt", "f1")
        a(f"s_lshl_b32 s{S_T0}, s{S_HW}, 12")
        a("v_and_b32 v3, 15, v0")
        a("v_lshlrev_b32 v3, 8, v3")
        a("v_lshrrev_b32 v4, 4, v0")
        a("v_lshl_add_u32 v3, v4, 4, v3")
        a(f"v_add_u32 v3, s{S_T0}, v3")
        a("v_cmp_gt_u32 vcc, 32, v0")
        a(f"s_and_saveexec_b64 {sr(S_EX,2)}, vcc")
        for j in range(8):
            a(f"ds_write_b128 v3, {vr(32+4*j,4)} offset:{LDS_FP + j*32}")
        a(f"s_mov_b64 exec, {sr(S_EX,2)}")
        self.helper_sync(0)
        a(f"s_lshl_b32 s{S_T0}, s{S_HW}, 6")
        a(f"v_add_u32 v3, s{S_T0}, v0")
        a("v_lshlrev_b32 v4, 3, v3")
        for k in range(4):
            a(f"ds_read_b64 {vr(8+2*k,2)}, v4 offset:{LDS_FP + (2*k)*4096}")
        for k in range(4):
            a(f"ds_read_b64 {vr(16+2*k,2)}, v4 offset:{LDS_FP + (2*k+1)*4096}")
        a("s_waitcnt lgkmcnt(0)")
        for e in range(2):
            a(f"v_add_f32 v{8+e}, v{8+e}, v{10+e}")
            a(f"v_add_f32 v{12+e}, v{12+e}, v{14+e}")
            a(f"v_add_f32 v{8+e}, v{8+e}, v{12+e}")
            a(f"v_add_f32 v{16+e}, v{16+e}, v{18+e}")
            a(f"v_add_f32 v{20+e}, v{20+e}, v{22+e}")
            a(f"v_add_f32 v{16+e}, v{16+e}, v{20+e}")
            self.rne(8 + e)
            self.rne(16 + e)
            a(f"v_mul_f32 v{10+e}, s{S_LOG2E}, v{8+e}")
            a(f"v_exp_f32 v{10+e}, -v{10+e}")
            a(f"v_add_f32 v{10+e}, 1.0, v{10+e}")
            a(f"v_rcp_f32 v{12+e}, v{10+e}")
            a(f"v_mul_f32 v{14+e}, v{8+e}, v{12+e}")
            a(f"v_fma_f32 v{18+e}, -v{14+e}, v{10+e}, v{8+e}")
            a(f"v_fma_f32 v{14+e}, v{18+e}, v{12+e}, v{14+e}")
            self.rne(14 + e)
            a(f"v_mul_f32 v{14+e}, v{14+e}, v{16+e}")
        a("v_cvt_pk_bf16_f32 v14, v14, v15")
        a("v_lshrrev_b32 v5, 2, v3")
        a("v_and_b32 v6, 3, v3")
        a(f"s_mov_b32 s{S_T0}, {2*H_STRIDE}")
        a(f"v_mul_lo_u32 v6, v6, s{S_T0}")
        a("v_lshl_add_u32 v6, v5, 1, v6")
        a(f"ds_write_b16 v6, v14 offset:{LDS_H}")
        a(f"ds_write_b16_d16_hi v6, v14 offset:{LDS_H + H_STRIDE}")
        a(f"s_cmp_ge_u32 s{S_HW}, 2")
        a("s_cbranch_scc1 L_hz_done")
        a("v_lshrrev_b32 v5, 4, v3")
        a("v_and_b32 v6, 15, v3")
        a(f"s_mov_b32 s{S_T0}, {H_STRIDE}")
        a(f"v_mul_lo_u32 v5, v5, s{S_T0}")
        a("v_lshl_add_u32 v5, v6, 2, v5")
        a("v_mov_b32 v6, 0")
        a(f"ds_write_b32 v5, v6 offset:{LDS_H + 256}")
        a.label("L_hz_done")
        self.helper_sync(1)
        a(f"s_cmp_ge_u32 s{S_HW}, 5")
        a("s_cbranch_scc1 L_ffn_done")
        a(f"s_mul_i32 s{S_T0}, s{S_F}, {128*1152}")
        self.srd(SRD_W, S_WD, 128 * 1152, off_sgpr=S_T0)
        a(f"s_mov_b32 s{S_STRIDE}, 1152")
        self.voffW()
        a(f"s_lshl_b32 s{S_UOFF}, s{S_HW}, 8")
        a(f"s_mov_b32 s{S_USTEP}, {32*1152}")
        a(f"s_mov_b32 s{S_ASTEP}, 64")
        a("v_and_b32 v2, 7, v0")
        a(f"s_mov_b32 s{S_T0}, {H_STRIDE}")
        a(f"v_mul_lo_u32 v2, v2, s{S_T0}")
        a("v_lshrrev_b32 v3, 4, v0")
        a("v_lshl_add_u32 v2, v3, 4, v2")
        a(f"v_add_u32 v2, {LDS_H}, v2")
        self.gemv_body("nt", "f2")
        a(f"s_mul_i32 s{S_T0}, s{S_F}, 20480")
        a(f"s_lshl_b32 s{S_T1}, s{S_HW}, 12")
        a(f"s_add_u32 s{S_T0}, s{S_T0}, s{S_T1}")
        a(f"s_add_u32 s{S_T0}, s{S_T0}, {WS_F2}")
        self.publish_acc(32)
        a.label("L_ffn_done")

    def publish_acc(self, acc, nj=8):
        a = self.a
        for k in range(4 * nj):
            a(f"v_min_u32 v{acc+k}, s{S_SENTM1}, v{acc+k}")
        a("v_and_b32 v3, 15, v0")
        a("v_lshlrev_b32 v3, 5, v3")
        a("v_lshrrev_b32 v4, 4, v0")
        a("v_lshl_add_u32 v3, v4, 4, v3")
        a("v_cmp_gt_u32 vcc, 32, v0")
        a(f"s_and_saveexec_b64 {sr(S_EX,2)}, vcc")
        for j in range(nj):
            a(f"buffer_store_dwordx4 {vr(acc+4*j,4)}, v3, {sr(SRD_WS,4)}, s{S_T0} offen offset:{j*512} sc1")
        a(f"s_mov_b64 exec, {sr(S_EX,2)}")

    def wo_prefetch(self):
        a = self.a
        self.srd(SRD_W, S_WO, 4096 * 1152)
        a("v_lshrrev_b32 v3, 4, v0")
        a("v_and_b32 v4, 1, v3")
        a("v_lshlrev_b32 v4, 6, v4")
        a("v_lshrrev_b32 v3, 1, v3")
        a("v_add_u32 v3, v3, v4")
        a(f"s_mov_b32 s{S_T0}, 1152")
        a(f"v_mul_lo_u32 v3, v3, s{S_T0}")
        a("v_and_b32 v1, 15, v0")
        a("v_lshl_add_u32 v1, v1, 4, v3")
        a(f"s_lshl_b32 s{S_T0}, s{S_HKV}, 8")
        a(f"s_lshr_b32 s{S_T1}, s{S_HW}, 2")
        a(f"s_lshl_b32 s{S_T1}, s{S_T1}, 7")
        a(f"s_add_u32 s{S_T0}, s{S_T0}, s{S_T1}")
        a(f"s_and_b32 s{S_T1}, s{S_HW}, 3")
        a(f"s_lshl_b32 s{S_T1}, s{S_T1}, 1")
        a(f"s_add_u32 s{S_T0}, s{S_T0}, s{S_T1}")
        a(f"s_mul_i32 s{S_UOFF}, s{S_T0}, 1152")
        a(f"s_lshl_b32 s{S_T1}, s{S_J}, 8")
        a(f"s_add_u32 s{S_UOFF}, s{S_UOFF}, s{S_T1}")
        a(f"s_mov_b32 s{S_STRIDE}, {8*1152}")
        a(f"s_mov_b32 s{S_USTEP}, 0")
        self.gemv_issue(64, "nt")
        a(f"s_lshl_b32 s{S_T0}, s{S_HW}, 13")
        a("v_lshlrev_b32 v3, 4, v0")
        a(f"v_add_u32 v3, s{S_T0}, v3")
        a(f"v_add_u32 v3, {LDS_WO}, v3")
        a("s_waitcnt vmcnt(0)")
        for c in range(4):
            for e in range(2):
                j = 2 * c + e
                T = 8 + 4 * (j & 1) + 8 * ((j >> 1) & 1)
                for p in range(4):
                    a(f"v_perm_b32 v{T+p}, v{64+(2*p+1)*4+c}, v{64+(2*p)*4+c}, s{S_SEL_LO if e == 0 else S_SEL_HI}")
                a(f"ds_write_b128 v3, {vr(T,4)} offset:{j*1024}")
        a("s_waitcnt lgkmcnt(0)")

    def reducer_addr(self):
        a = self.a
        a(f"s_lshr_b32 s{S_CB}, s{S_R}, 2")
        a(f"s_and_b32 s{S_T1}, s{S_R}, 3")
        a("v_and_b32 v2, 7, v0")
        a("v_bfe_u32 v3, v0, 3, 2")
        a(f"s_lshl_b32 s{S_T1}, s{S_T1}, 2")
        a(f"v_add_u32 v3, s{S_T1}, v3")
        a("v_lshrrev_b32 v4, 5, v0")
        a("v_lshlrev_b32 v1, 9, v2")
        a("v_lshl_add_u32 v1, v3, 5, v1")
        a("v_lshl_add_u32 v1, v4, 4, v1")
        a(f"s_lshl_b32 s{S_T2}, s{S_CB}, 12")
        a(f"v_add_u32 v1, s{S_T2}, v1")
        a("v_lshl_add_u32 v5, v3, 3, v2")
        a(f"s_lshl_b32 s{S_T2}, s{S_CB}, 7")
        a(f"v_add_u32 v5, s{S_T2}, v5")

    def poll_sum(self, n, base_imm, stride, acc, buf, tag):
        a = self.a
        a(f"s_mov_b32 s{S_SPIN}, 0")
        a.label(f"L_ps_{tag}")
        a(f"s_mov_b32 s{S_T0}, {base_imm}")
        for k in range(n):
            a(f"buffer_load_dwordx4 {vr(buf+4*k,4)}, v1, {sr(SRD_WS,4)}, s{S_T0} offen sc1")
            if k < n - 1:
                a(f"s_add_u32 s{S_T0}, s{S_T0}, {stride}")
        a("s_waitcnt vmcnt(0)")
        a(f"v_max_u32 v6, v{buf}, v{buf+1}")
        k = 2
        while k < 4 * n:
            a(f"v_max3_u32 v6, v6, v{buf+k}, v{buf+k+1}")
            k += 2
        a("v_cmp_eq_u32 vcc, -1, v6")
        a(f"s_add_u32 s{S_SPIN}, s{S_SPIN}, 1")
        a(f"s_cbranch_vccz L_ps_{tag}_done")
        a("s_sleep 2")
        a(f"s_cmp_lt_u32 s{S_SPIN}, 0x40000")
        a(f"s_cbranch_scc1 L_ps_{tag}")
        a.label(f"L_ps_{tag}_done")
        for k in range(n):
            for r in range(4):
                if k == 0:
                    a(f"v_mov_b32 v{acc+r}, v{buf+r}")
                else:
                    a(f"v_add_f32 v{acc+r}, v{acc+r}, v{buf+4*k+r}")

    def reducer_pre(self):
        a = self.a
        self.poll_counter(256)
        self.reducer_addr()
        for bi in range(3):
            self.poll_sum(12, WS_F2 + bi * 12 * 20480, 20480, 12 + 4 * bi, 64, f"f{bi}")
        for r in range(4):
            a(f"v_add_f32 v{8+r}, v{12+r}, v{16+r}")
            a(f"v_add_f32 v{8+r}, v{8+r}, v{20+r}")
            self.rne(8 + r)
        self.srd(SRD_X, S_X, 8 * 1152)
        a("v_lshrrev_b32 v4, 5, v0")
        a(f"s_mov_b32 s{S_T0}, {4*1152}")
        a(f"v_mul_lo_u32 v4, v4, s{S_T0}")
        a("v_lshl_add_u32 v7, v5, 1, v4")
        for r in range(4):
            a(f"buffer_load_ushort v{12+r}, v7, {sr(SRD_X,4)}, 0 offen offset:{r*1152}")
        a("s_waitcnt vmcnt(0)")
        for r in range(4):
            a(f"v_lshlrev_b32 v{12+r}, 16, v{12+r}")

    def tail(self):
        a = self.a
        a.label("L_B4")
        a("s_barrier")
        a("v_mbcnt_lo_u32_b32 v0, -1, 0")
        a("v_mbcnt_hi_u32_b32 v0, -1, v0")
        a(f"s_cmp_lg_u32 s{S_WAVE}, 0")
        a("s_cbranch_scc1 L_nomerge")
        a("v_lshlrev_b32 v2, 4, v0")
        a("v_lshrrev_b32 v3, 5, v0")
        a("v_lshlrev_b32 v3, 3, v3")
        for w in range(8):
            a(f"ds_read_b64 {vr(16+2*w,2)}, v3 offset:{LDS_SP + w*SP_STRIDE + 1024}")
        for w in range(8):
            a(f"ds_read_b128 {vr(32+4*w,4)}, v2 offset:{LDS_SP + w*SP_STRIDE}")
        a("s_waitcnt lgkmcnt(8)")
        a("v_max3_f32 v4, v16, v18, v20")
        a("v_max3_f32 v4, v4, v22, v24")
        a("v_max3_f32 v4, v4, v26, v28")
        a("v_max_f32 v4, v4, v30")
        for w in range(8):
            a(f"v_sub_f32 v{16+2*w}, v{16+2*w}, v4")
            a(f"v_mul_f32 v{16+2*w}, s{S_LOG2E}, v{16+2*w}")
            a(f"v_exp_f32 v{16+2*w}, v{16+2*w}")
        a("v_mul_f32 v5, v16, v17")
        for w in range(1, 8):
            a(f"v_fmac_f32 v5, v{16+2*w}, v{17+2*w}")
        a("s_waitcnt lgkmcnt(0)")
        for r in range(4):
            a(f"v_mul_f32 v{8+r}, v16, v{32+r}")
        for w in range(1, 8):
            for r in range(4):
                a(f"v_fmac_f32 v{8+r}, v{16+2*w}, v{32+4*w+r}")
        for r in range(4):
            a(f"v_min_u32 v{8+r}, s{S_SENTM1}, v{8+r}")
        a(f"v_min_u32 v4, s{S_SENTM1}, v4")
        a(f"v_min_u32 v5, s{S_SENTM1}, v5")
        a(f"s_lshl_b32 s{S_T0}, s{S_HKV}, 4")
        a(f"s_add_u32 s{S_T0}, s{S_T0}, s{S_J}")
        a(f"s_lshl_b32 s{S_T0}, s{S_T0}, 11")
        a(f"buffer_store_dwordx4 v[8:11], v2, {sr(SRD_WS,4)}, s{S_T0} offen sc1")
        a(f"v_readlane_b32 s{S_T1}, v4, 32")
        a(f"v_readlane_b32 s{S_T2}, v5, 32")
        a("v_mov_b32 v12, v4")
        a("v_mov_b32 v13, v5")
        a(f"v_mov_b32 v14, s{S_T1}")
        a(f"v_mov_b32 v15, s{S_T2}")
        a("v_mov_b32 v3, 0")
        a("v_cmp_eq_u32 vcc, 0, v0")
        a(f"s_and_saveexec_b64 {sr(S_EX,2)}, vcc")
        a(f"buffer_store_dwordx4 v[12:15], v3, {sr(SRD_WS,4)}, s{S_T0} offen offset:1024 sc1")
        a(f"s_mov_b64 exec, {sr(S_EX,2)}")
        a.label("L_nomerge")
        a(f"s_cmp_lt_u32 s{S_J}, 5")
        a("s_cbranch_scc1 L_consumer")
        a(f"s_cmp_lg_u32 s{S_WAVE}, 8")
        a("s_cbranch_scc1 L_end")
        a(f"s_cmp_lt_i32 s{S_R}, 0")
        a("s_cbranch_scc1 L_end")
        self.poll_sum(16, WS_P2, 20480, 16, 64, "p2")
        for r in range(4):
            self.rne(16 + r)
            a(f"v_add_f32 v{16+r}, v{12+r}, v{16+r}")
            self.rne(16 + r)
            a(f"v_add_f32 v{16+r}, v{16+r}, v{8+r}")
            a(f"v_cvt_pk_bf16_f32 v{16+r}, v{16+r}, v{16+r}")
        self.srd(SRD_O, S_OUT, 8 * 1152)
        for r in range(4):
            a(f"buffer_store_short v{16+r}, v7, {sr(SRD_O,4)}, 0 offen offset:{r*1152}")
        a("s_branch L_end")
        a.label("L_consumer")
        a(f"s_cmp_ge_u32 s{S_WAVE}, 8")
        a("s_cbranch_scc1 L_c_nopre")
        a(f"s_lshl_b32 s{S_T0}, s{S_WAVE}, 10")
        a("v_lshlrev_b32 v3, 4, v0")
        a(f"v_add_u32 v3, s{S_T0}, v3")
        a(f"v_add_u32 v3, {LDS_WO}, v3")
        for kbb in range(8):
            a(f"ds_read_b128 {vr(64+4*kbb,4)}, v3 offset:{kbb*8192}")
        a.label("L_c_nopre")
        a(f"s_lshr_b32 s{S_T1}, s{S_WAVE}, 1")
        a(f"s_and_b32 s{S_T2}, s{S_WAVE}, 1")
        a(f"s_lshl_b32 s{S_T0}, s{S_HKV}, 4")
        a(f"s_lshl_b32 s{S_T3}, s{S_T1}, 1")
        a(f"s_add_u32 s{S_T0}, s{S_T0}, s{S_T3}")
        a(f"s_lshl_b32 s{S_T0}, s{S_T0}, 11")
        a("v_lshrrev_b32 v2, 5, v0")
        a("v_lshlrev_b32 v2, 11, v2")
        a("v_and_b32 v3, 31, v0")
        a("v_lshl_add_u32 v3, v3, 4, v2")
        a(f"s_lshl_b32 s{S_T3}, s{S_T2}, 9")
        a(f"v_add_u32 v3, s{S_T3}, v3")
        a(f"s_mov_b32 s{S_SPIN}, 0")
        a.label("L_c_poll")
        a(f"buffer_load_dwordx4 v[8:11], v3, {sr(SRD_WS,4)}, s{S_T0} offen sc1")
        a(f"buffer_load_dwordx4 v[12:15], v2, {sr(SRD_WS,4)}, s{S_T0} offen offset:1024 sc1")
        a("s_waitcnt vmcnt(0)")
        a("v_max3_u32 v6, v8, v9, v10")
        a("v_max3_u32 v6, v6, v11, v12")
        a("v_max3_u32 v6, v6, v13, v14")
        a("v_max_u32 v6, v6, v15")
        a("v_cmp_eq_u32 vcc, -1, v6")
        a(f"s_add_u32 s{S_SPIN}, s{S_SPIN}, 1")
        a("s_cbranch_vccz L_c_ok")
        a("s_sleep 1")
        a(f"s_cmp_lt_u32 s{S_SPIN}, 0x40000")
        a("s_cbranch_scc1 L_c_poll")
        a.label("L_c_ok")
        a(f"s_cmp_eq_u32 s{S_T2}, 0")
        a(f"s_cselect_b64 vcc, -1, 0")
        a("v_cndmask_b32 v4, v14, v12, vcc")
        a("v_cndmask_b32 v5, v15, v13, vcc")
        a("v_mov_b32 v6, v4")
        a("v_permlane32_swap_b32 v4, v6")
        a("v_mov_b32 v7, v5")
        a("v_permlane32_swap_b32 v5, v7")
        a("v_max_f32 v16, v4, v6")
        a("v_sub_f32 v4, v4, v16")
        a("v_sub_f32 v6, v6, v16")
        a(f"v_mul_f32 v4, s{S_LOG2E}, v4")
        a(f"v_mul_f32 v6, s{S_LOG2E}, v6")
        a("v_exp_f32 v4, v4")
        a("v_exp_f32 v6, v6")
        a("v_mul_f32 v5, v4, v5")
        a("v_fmac_f32 v5, v6, v7")
        a("v_rcp_f32 v7, v5")
        a("v_cmp_gt_u32 vcc, 32, v0")
        a("v_cndmask_b32 v4, v6, v4, vcc")
        a("v_fma_f32 v6, -v5, v7, 1.0")
        a("v_fma_f32 v7, v6, v7, v7")
        a("v_mul_f32 v4, v4, v7")
        for r in range(4):
            a(f"v_mul_f32 v{8+r}, v{8+r}, v4")
        for r in range(4):
            a(f"v_mov_b32 v{12+r}, v{8+r}")
        for r in range(4):
            a(f"v_permlane32_swap_b32 v{8+r}, v{12+r}")
        for r in range(4):
            a(f"v_add_f32 v{8+r}, v{8+r}, v{12+r}")
        a("v_cvt_pk_bf16_f32 v8, v8, v9")
        a("v_cvt_pk_bf16_f32 v9, v10, v11")
        a(f"s_mul_i32 s{S_T0}, s{S_T1}, {O_STRIDE}")
        a(f"s_lshl_b32 s{S_T3}, s{S_T2}, 8")
        a(f"s_add_u32 s{S_T0}, s{S_T0}, s{S_T3}")
        a("v_lshlrev_b32 v3, 3, v0")
        a(f"v_add_u32 v3, s{S_T0}, v3")
        a("v_cmp_gt_u32 vcc, 32, v0")
        a(f"s_and_saveexec_b64 {sr(S_EX,2)}, vcc")
        a(f"ds_write_b64 v3, v[8:9] offset:{LDS_O}")
        a(f"s_mov_b64 exec, {sr(S_EX,2)}")
        a("s_waitcnt lgkmcnt(0)")
        a("s_barrier")
        a(f"s_cmp_ge_u32 s{S_WAVE}, 8")
        a("s_cbranch_scc1 L_end")
        a("v_and_b32 v2, 7, v0")
        a(f"s_mov_b32 s{S_T0}, {O_STRIDE}")
        a(f"v_mul_lo_u32 v2, v2, s{S_T0}")
        a("v_lshrrev_b32 v3, 4, v0")
        a("v_lshl_add_u32 v2, v3, 4, v2")
        for kbb in range(8):
            a(f"ds_read_b128 {vr(96+4*kbb,4)}, v2 offset:{LDS_O + kbb*64}")
        for kbb in range(8):
            a(f"s_waitcnt lgkmcnt({7-kbb})")
            c = "0" if kbb == 0 else "v[32:35]"
            a(f"v_mfma_f32_16x16x32_bf16 v[32:35], {vr(96+4*kbb,4)}, {vr(64+4*kbb,4)}, {c}")
        a(f"s_mul_i32 s{S_T0}, s{S_HKV}, 5")
        a(f"s_add_u32 s{S_T0}, s{S_T0}, s{S_J}")
        a(f"s_lshl_b32 s{S_T0}, s{S_T0}, 12")
        a(f"s_lshl_b32 s{S_T1}, s{S_WAVE}, 9")
        a(f"s_add_u32 s{S_T0}, s{S_T0}, s{S_T1}")
        a(f"s_add_u32 s{S_T0}, s{S_T0}, {WS_P2}")
        self.publish_acc(32, nj=1)
        a.label("L_end")
        a("s_endpgm")

    def build(self):
        self.prologue()
        self.stream()
        self.helper()
        self.tail()
        body = self.a.finish()
        hdr = open("cdna_kernels/" + NAME + ".s.ref").read().split("; Override launch geometry")[0]
        out = hdr
        out += "; Override launch geometry by editing the next line (default: block=256,\n"
        out += f"; @launch grid=(256,1,1) block=(1024,1,1) lds={LDS_TOTAL}\n"
        out += '.amdgcn_target "amdgcn-amd-amdhsa--gfx950"\n.text\n'
        out += f".globl {NAME}_kernel\n.p2align 8\n.type {NAME}_kernel,@function\n{NAME}_kernel:\n"
        out += body
        out += '.section .rodata,"a"\n.p2align 6\n'
        out += f".amdhsa_kernel {NAME}_kernel\n"
        out += "  .amdhsa_next_free_vgpr 128\n  .amdhsa_next_free_sgpr 96\n  .amdhsa_accum_offset 128\n"
        out += "  .amdhsa_group_segment_fixed_size 0\n  .amdhsa_kernarg_size 96\n  .amdhsa_user_sgpr_count 2\n"
        out += "  .amdhsa_user_sgpr_kernarg_segment_ptr 1\n  .amdhsa_system_sgpr_workgroup_id_x 1\n.end_amdhsa_kernel\n"
        return out

if __name__ == "__main__":
    dbg = "--debug" in sys.argv
    outp = [x for x in sys.argv[1:] if not x.startswith("--")]
    g = Gen(debug=dbg)
    s = g.build()
    path = outp[0] if outp else "cdna_kernels/" + NAME + ".s"
    open(path, "w").write(s)
    print("wrote", path, "lines", s.count("\n"), "nops inserted", g.a.ninserted)
```

```python
import sys
from dsl import Asm, vr, sr

NAME = "parallel_sum__gqa_block_cached__swiglu_ffn__decode"
LOG2E = 0x3fb8aa3b
SCALE = 0x3db504f3

XN_STRIDE = 1184
LDS_XN = 0
LDS_XB = LDS_XN + 8 * XN_STRIDE
LDS_QPART = LDS_XB + 1152
LDS_Q = LDS_QPART + 12 * 512
LDS_SP = LDS_Q + 512
SP_STRIDE = 1040
LDS_O = LDS_SP + 8 * SP_STRIDE
O_STRIDE = 544
LDS_CNT = LDS_O + 8 * O_STRIDE
LDS_H = LDS_CNT + 64
H_STRIDE = 608
LDS_FP = LDS_H + 8 * H_STRIDE
LDS_W = LDS_FP
LDS_TOTAL = LDS_W + 9 * 8192

REC_STRIDE = 2048
WS_REC = 0
WS_P2 = 256 * REC_STRIDE
WS_F2 = WS_P2 + 16 * 5 * 4096
WS_H = WS_F2 + 16 * 5 * 4096
WS_DBG = WS_H + 8 * 9216
WS_STAMP = WS_DBG + (512 << 10)
WS_SIZE = WS_DBG + (1 << 20)

S_WAVE = 3
S_X, S_K, S_V, S_WQ, S_WO, S_BX, S_WG, S_WU = 4, 6, 8, 10, 12, 14, 16, 18
S_WD, S_OUT, S_DBG, S_WS = 20, 22, 24, 26
S_HKV, S_B, S_SPLIT, S_J = 28, 29, 30, 31
SRD_K, SRD_V, SRD_W, SRD_WS = 32, 36, 40, 44
S_SEL_LO, S_SEL_HI = 48, 49
S_OFF, S_OFF2, S_CNT = 50, 51, 52
S_STRIDE, S_UOFF, S_NT, S_FIRST, S_T0 = 53, 54, 55, 56, 57
S_HW, S_ROLE, S_RIDX, S_T1, S_T2, S_T3 = 58, 59, 60, 61, 62, 63
S_LOG2E, S_SCALE, S_MASKHI, S_SENTM1 = 64, 65, 66, 67
S_EX = 68
SRD_W2 = 72
SRD_X = 76
S_SPIN = 80
S_R = 81
S_CB = 82
S_NXT = 83
S_TS = 84
S_ST0 = 86
ROLE_NONE, ROLE_A, ROLE_B, ROLE_C = 0, 1, 2, 3

class Gen:
    def __init__(self, debug=False, stamps=False, NS=4, KT=32, LA=2, comp=1, map4=1):
        self.map4 = map4
        self.a = Asm()
        self.debug = debug; self.stamps = stamps
        self.NS = NS; self.KT = KT; self.LA = LA; self.comp = comp

    def srd(self, dst, base, size, off_sgpr=None):
        a = self.a
        if off_sgpr is not None:
            a(f"s_add_u32 s{dst}, s{base}, s{off_sgpr}")
            a(f"s_addc_u32 s{dst+1}, s{base+1}, 0")
        else:
            a(f"s_mov_b32 s{dst}, s{base}")
            a(f"s_mov_b32 s{dst+1}, s{base+1}")
        a(f"s_mov_b32 s{dst+2}, {size}")
        a(f"s_mov_b32 s{dst+3}, 0x20000")

    def stamp(self, k):
        if not self.stamps: return
        a = self.a
        a(f"s_memrealtime {sr(S_TS,2)}")
        a("s_waitcnt lgkmcnt(0)")
        a(f"s_mov_b32 s{S_ST0+k}, s{S_TS}")

    def stamp_flush(self):
        if not self.stamps: return
        a = self.a
        a("s_mov_b64 exec, -1")
        a("v_mbcnt_lo_u32_b32 v0, -1, 0")
        a("v_mbcnt_hi_u32_b32 v0, -1, v0")
        a("v_mov_b32 v1, 0")
        for k in range(12):
            a(f"v_writelane_b32 v1, s{S_ST0+k}, {k}")
        a(f"s_lshl_b32 s{S_T0}, s2, 4")
        a(f"s_add_u32 s{S_T0}, s{S_T0}, s{S_WAVE}")
        a(f"s_lshl_b32 s{S_T0}, s{S_T0}, 6")
        a(f"s_add_u32 s{S_T0}, s{S_T0}, {WS_STAMP}")
        a("v_lshlrev_b32 v2, 2, v0")
        a("v_cmp_gt_u32 vcc, 16, v0")
        a(f"s_and_saveexec_b64 {sr(S_EX,2)}, vcc")
        a(f"buffer_store_dword v1, v2, {sr(SRD_WS,4)}, s{S_T0} offen")

    def wave_sum(self, x, t):
        a = self.a
        for pat in ("quad_perm:[1,0,3,2]", "quad_perm:[2,3,0,1]", "row_half_mirror", "row_mirror"):
            a(f"v_add_f32_dpp v{x}, v{x}, v{x} {pat} row_mask:0xf bank_mask:0xf")
        a(f"v_mov_b32 v{t}, v{x}")
        a(f"v_permlane16_swap_b32 v{x}, v{t}")
        a(f"v_add_f32 v{x}, v{x}, v{t}")
        a(f"v_mov_b32 v{t}, v{x}")
        a(f"v_permlane32_swap_b32 v{x}, v{t}")
        a(f"v_add_f32 v{x}, v{x}, v{t}")

    def rne(self, x):
        a = self.a
        a(f"v_cvt_pk_bf16_f32 v{x}, v{x}, v{x}")
        a(f"v_and_b32 v{x}, 0xffff0000, v{x}")

    def lane_mask_lt(self, n, lane="v0"):
        a = self.a
        a(f"v_cmp_gt_u32 vcc, {n}, {lane}")
        a(f"s_and_saveexec_b64 {sr(S_EX,2)}, vcc")
    def restore_exec(self):
        self.a(f"s_mov_b64 exec, {sr(S_EX,2)}")

    def spin(self, lab, sleep, bound):
        a = self.a
        a(f"s_sleep {sleep}")
        a(f"s_add_u32 s{S_SPIN}, s{S_SPIN}, 1")
        a(f"s_cmp_lt_u32 s{S_SPIN}, {bound}")
        a(f"s_cbranch_scc1 {lab}")

    def layernorm(self, R, X, T, vL, lds_imm, s_row=None):
        a = self.a
        t0, t1, t2, t3, t4, t5 = range(T, T + 6)
        for k in range(5):
            a(f"v_lshlrev_b32 v{X+2*k}, 16, v{R+k}")
            a(f"v_and_b32 v{X+2*k+1}, s{S_MASKHI}, v{R+k}")
        a(f"v_add_f32 v{t0}, v{X}, v{X+1}")
        for k in range(2, 10):
            a(f"v_add_f32 v{t0}, v{t0}, v{X+k}")
        self.wave_sum(t0, t1)
        a(f"s_mov_b32 s{S_T1}, 0x44100000")
        a(f"s_mov_b32 s{S_T2}, 0x3ae38e39")
        a(f"v_mul_f32 v{t1}, s{S_T2}, v{t0}")
        a(f"v_fma_f32 v{t2}, -v{t1}, s{S_T1}, v{t0}")
        a(f"v_fma_f32 v{t1}, v{t2}, s{S_T2}, v{t1}")
        a(f"v_cmp_gt_u32 vcc, 32, v{vL}")
        a(f"v_sub_f32 v{t2}, v{X+8}, v{t1}")
        a(f"v_mul_f32 v{t3}, v{t2}, v{t2}")
        a(f"v_sub_f32 v{t2}, v{X+9}, v{t1}")
        a(f"v_fmac_f32 v{t3}, v{t2}, v{t2}")
        a(f"v_cndmask_b32 v{t3}, 0, v{t3}, vcc")
        for k in range(8):
            a(f"v_sub_f32 v{t2}, v{X+k}, v{t1}")
            a(f"v_fmac_f32 v{t3}, v{t2}, v{t2}")
        self.wave_sum(t3, t2)
        a(f"v_mul_f32 v{t2}, s{S_T2}, v{t3}")
        a(f"v_fma_f32 v{t0}, -v{t2}, s{S_T1}, v{t3}")
        a(f"v_fma_f32 v{t2}, v{t0}, s{S_T2}, v{t2}")
        self.rne(t1); self.rne(t2)
        a(f"v_add_f32 v{t2}, 0x3727c5ac, v{t2}")
        self.rne(t2)
        a(f"v_sqrt_f32 v{t3}, v{t2}")
        a(f"v_rcp_f32 v{t0}, v{t3}")
        a(f"v_fma_f32 v{t4}, -v{t3}, v{t3}, v{t2}")
        a(f"v_mul_f32 v{t0}, 0.5, v{t0}")
        a(f"v_fma_f32 v{t3}, v{t4}, v{t0}, v{t3}")
        self.rne(t3)
        a(f"v_rcp_f32 v{t0}, v{t3}")
        for k in range(10):
            a(f"v_sub_f32 v{X+k}, v{X+k}, v{t1}")
        for k in range(5):
            a(f"v_cvt_pk_bf16_f32 v{R+k}, v{X+2*k}, v{X+2*k+1}")
        for k in range(5):
            a(f"v_lshlrev_b32 v{X+2*k}, 16, v{R+k}")
            a(f"v_and_b32 v{X+2*k+1}, s{S_MASKHI}, v{R+k}")
        for k in range(10):
            a(f"v_mul_f32 v{t4}, v{X+k}, v{t0}")
            a(f"v_fma_f32 v{t5}, -v{t4}, v{t3}, v{X+k}")
            a(f"v_fma_f32 v{X+k}, v{t5}, v{t0}, v{t4}")
        for k in range(5):
            a(f"v_cvt_pk_bf16_f32 v{R+k}, v{X+2*k}, v{X+2*k+1}")
        a(f"v_lshlrev_b32 v{t4}, 4, v{vL}")
        a(f"v_lshlrev_b32 v{t5}, 2, v{vL}")
        if s_row is not None:
            a(f"v_add_u32 v{t4}, s{s_row}, v{t4}")
            a(f"v_add_u32 v{t5}, s{s_row}, v{t5}")
        a(f"ds_write_b128 v{t4}, {vr(R,4)} offset:{lds_imm}")
        a(f"s_and_saveexec_b64 {sr(S_EX,2)}, vcc")
        a(f"ds_write_b32 v{t5}, v{R+4} offset:{lds_imm+1024}")
        self.restore_exec()

    def xload(self, R, vL, tmp, s_rowbytes):
        a = self.a
        self.srd(SRD_X, S_X, 1152, off_sgpr=s_rowbytes)
        a(f"v_lshlrev_b32 v{tmp}, 4, v{vL}")
        a(f"buffer_load_dwordx4 {vr(R,4)}, v{tmp}, {sr(SRD_X,4)}, 0 offen")
        a(f"v_lshlrev_b32 v{tmp}, 2, v{vL}")
        a(f"buffer_load_dword v{R+4}, v{tmp}, {sr(SRD_X,4)}, 0 offen offset:1024")

    def prologue(self):
        a = self.a
        a("s_cmp_ge_u32 s2, 256")
        a("s_cbranch_scc1 L_exit")
        a("s_load_dwordx16 s[4:19], s[0:1], 0")
        a("s_load_dwordx8 s[20:27], s[0:1], 64")
        a("v_lshrrev_b32 v1, 6, v0")
        a("v_and_b32 v0, 63, v0")
        a(f"v_readfirstlane_b32 s{S_WAVE}, v1")
        for k in range(2, 8): a(f"v_mov_b32 v{k}, 0")
        if self.map4:
            a(f"s_and_b32 s{S_HKV}, s2, 3")
            a(f"s_lshl_b32 s{S_HKV}, s{S_HKV}, 2")
            a(f"s_bfe_u32 s{S_T1}, s2, 0x20003")
            a(f"s_add_u32 s{S_HKV}, s{S_HKV}, s{S_T1}")
            a(f"s_lshr_b32 s{S_B}, s2, 5")
            a(f"s_bfe_u32 s{S_SPLIT}, s2, 0x10002")
        else:
            a(f"s_and_b32 s{S_HKV}, s2, 7")
            a(f"s_lshr_b32 s{S_T0}, s2, 3")
            a(f"s_and_b32 s{S_T1}, s{S_T0}, 1")
            a(f"s_lshl_b32 s{S_HKV}, s{S_HKV}, 1")
            a(f"s_add_u32 s{S_HKV}, s{S_HKV}, s{S_T1}")
            a(f"s_lshr_b32 s{S_T0}, s{S_T0}, 1")
            a(f"s_and_b32 s{S_B}, s{S_T0}, 7")
            a(f"s_lshr_b32 s{S_SPLIT}, s{S_T0}, 3")
        a(f"s_lshl_b32 s{S_J}, s{S_B}, 1")
        a(f"s_add_u32 s{S_J}, s{S_J}, s{S_SPLIT}")
        a(f"s_mov_b32 s{S_SEL_LO}, 0x05040100")
        a(f"s_mov_b32 s{S_SEL_HI}, 0x07060302")
        a(f"s_mov_b32 s{S_LOG2E}, {LOG2E:#x}")
        a(f"s_mov_b32 s{S_SCALE}, {SCALE:#x}")
        a(f"s_mov_b32 s{S_MASKHI}, 0xffff0000")
        a(f"s_mov_b32 s{S_SENTM1}, 0xfffffffe")
        a(f"s_mov_b32 s{S_R}, -1")
        if self.stamps:
            for k in range(12): a(f"s_mov_b32 s{S_ST0+k}, 0")
        a("s_waitcnt lgkmcnt(0)")
        self.srd(SRD_WS, S_WS, WS_SIZE)
        self.stamp(0)
        a(f"s_cmp_ge_u32 s{S_WAVE}, 4")
        a("s_cbranch_scc1 L_aux")

    def touch(self, base, size, n, dst):
        a = self.a
        self.srd(SRD_W, base, size)
        a("v_lshlrev_b32 v4, 20, v0")
        self.lane_mask_lt(n)
        a(f"buffer_load_dword v{dst}, v4, {sr(SRD_W,4)}, 0 offen")
        self.restore_exec()

    def stream_setup(self):
        a = self.a
        KT = self.KT; TB = KT * 256; NTP = 8192 // KT
        half = NTP // 2
        u = 32 // KT if KT <= 32 else 1
        dC = 3 * (32 // KT) * self.comp
        dA = -2 * (32 // KT) * self.comp
        dB = 2 * (32 // KT) * self.comp
        a(f"s_mov_b32 s{S_T1}, {half}")
        a(f"s_cmp_lt_u32 s{S_B}, 4")
        a(f"s_cselect_b32 s{S_T1}, {half - dC}, s{S_T1}")
        a(f"s_cmp_eq_u32 s{S_B}, 4")
        a("s_cbranch_scc0 L_sp1")
        a(f"s_cmp_lt_u32 s{S_HKV}, 8")
        a(f"s_mov_b32 s{S_T2}, {half - dA}")
        a(f"s_cselect_b32 s{S_T1}, {half - dC}, s{S_T2}")
        a.label("L_sp1")
        a(f"s_cmp_eq_u32 s{S_B}, 7")
        a(f"s_cselect_b32 s{S_T1}, {half - dB}, s{S_T1}")
        a(f"s_sub_u32 s{S_T2}, {NTP}, s{S_T1}")
        a(f"s_cmp_eq_u32 s{S_SPLIT}, 0")
        a(f"s_cselect_b32 s{S_NT}, s{S_T1}, s{S_T2}")
        a(f"s_cselect_b32 s{S_T1}, 0, s{S_T1}")
        a(f"s_lshl_b32 s{S_T0}, s{S_B}, 4")
        a(f"s_add_u32 s{S_T0}, s{S_T0}, s{S_HKV}")
        a(f"s_lshl_b32 s{S_T0}, s{S_T0}, 21")
        a(f"s_mul_i32 s{S_T1}, s{S_T1}, {TB}")
        a(f"s_add_u32 s{S_T0}, s{S_T0}, s{S_T1}")
        a(f"s_mul_i32 s{S_T2}, s{S_NT}, {TB}")
        self.srd(SRD_K, S_K, f"s{S_T2}", off_sgpr=S_T0)
        self.srd(SRD_V, S_V, f"s{S_T2}", off_sgpr=S_T0)
        a("v_and_b32 v4, 15, v0")
        a("v_lshrrev_b32 v5, 4, v0")
        a("v_lshlrev_b32 v6, 10, v5")
        a("v_lshl_add_u32 v1, v4, 4, v6")
        a("v_lshlrev_b32 v6, 4, v5")
        a("v_and_b32 v7, 1, v0")
        a("v_lshl_add_u32 v7, v7, 8, v6")
        a("v_lshl_add_u32 v0, v4, 8, v6")

    def issueK(self, o1=S_OFF, o2=S_OFF2):
        for u in range(self.KT // 16):
            for s_ in range(4):
                r = 64 + (u * 4 + s_) * 4
                self.a(f"buffer_load_dwordx4 {vr(r,4)}, v0, {sr(SRD_K,4)}, s{o1 if u == 0 else o2} offen offset:{s_*64} nt")
    def issueV(self, o1=S_OFF, o2=S_OFF2):
        for u in range(self.KT // 16):
            for r_ in range(4):
                r = 96 + (u * 4 + r_) * 4
                self.a(f"buffer_load_dwordx4 {vr(r,4)}, v1, {sr(SRD_V,4)}, s{o1 if u == 0 else o2} offen offset:{r_*256} nt")

    def stream(self):
        a = self.a
        NS, KT, LA = self.NS, self.KT, self.LA
        NU = KT // 16; NL = 4 * NU; TB = KT * 256
        VK, VV, M, L, P, S, Q, O, KB, VB = 0, 1, 2, 3, 4, 8, 16, 32, 64, 96
        a(f"s_cmp_lg_u32 s{S_WAVE}, 0")
        a("s_cbranch_scc1 L_s_touch")
        a("s_setprio 3")
        a(f"s_mul_i32 s{S_T0}, s{S_B}, 1152")
        self.xload(16, 0, 4, S_T0)
        a("v_mov_b32 v31, v0")
        a("s_branch L_s_t3")
        a.label("L_s_touch")
        tl = {1: [(S_WS, WS_SIZE, 3), (S_WO, 4096*1152, 5), (S_OUT, 8*1152, 1)],
              2: [(S_WG, 576*9216, 6), (S_WU, 576*9216, 6), (S_DBG, 256, 1)],
              3: [(S_WD, 4608*1152, 6)]}
        for w in (1, 2, 3):
            lab = f"L_s_t{w}"
            a(f"s_cmp_lg_u32 s{S_WAVE}, {w}")
            a(f"s_cbranch_scc1 {lab}")
            for k, t in enumerate(tl[w]):
                self.touch(*t, 127 - k)
            a("s_waitcnt vmcnt(0)")
            a.label(lab)
        self.stream_setup()
        a(f"s_mul_i32 s{S_OFF}, s{S_WAVE}, {TB}")
        a(f"s_add_u32 s{S_OFF2}, s{S_OFF}, 4096")
        a(f"s_cmp_lg_u32 s{S_WAVE}, 0")
        a("s_cbranch_scc1 L_s_noln")
        a("s_waitcnt vmcnt(0)")
        self.stamp(4)
        self.layernorm(16, 32, 8, 31, LDS_XB)
        a("v_mov_b32 v8, 0")
        a("v_cmp_eq_u32 vcc, 8, v31")
        a(f"v_mov_b32 v9, {NS}")
        a("v_cndmask_b32 v8, v8, v9, vcc")
        a("v_lshlrev_b32 v9, 2, v31")
        self.lane_mask_lt(16, "v31")
        a(f"ds_write_b32 v9, v8 offset:{LDS_CNT}")
        self.restore_exec()
        a("s_waitcnt lgkmcnt(0)")
        self.stamp(3)
        a("s_setprio 0")
        a.label("L_s_noln")
        a("s_barrier")
        self.issueK(); self.issueV()
        a.label("L_s_join")
        for k in range(32):
            a(f"v_mov_b32 v{O+k}, 0")
        a(f"v_mov_b32 v{M}, 0xff800000")
        a(f"v_mov_b32 v{L}, 0")
        a("s_barrier")
        a("s_barrier")
        self.stamp(1)
        for s_ in range(4):
            a(f"ds_read_b128 {vr(Q+4*s_,4)}, v7 offset:{LDS_Q + s_*64}")
        a(f"s_mov_b32 s{S_CNT}, s{S_WAVE}")
        a(f"s_mov_b32 s{S_FIRST}, 0")
        a(f"v_mov_b32 v{P}, {LDS_CNT + 32}")
        a(f"v_mov_b32 v{P+1}, 1")
        a("s_mov_b64 exec, 1")
        a(f"ds_add_rtn_u32 v{P+2}, v{P}, v{P+1}")
        a("s_mov_b64 exec, -1")
        a("s_waitcnt lgkmcnt(0)")
        a(f"v_readfirstlane_b32 s{S_NXT}, v{P+2}")
        a.label("L_sloop")
        a(f"s_mul_i32 s{S_OFF}, s{S_NXT}, {TB}")
        a(f"s_add_u32 s{S_OFF2}, s{S_OFF}, 4096")
        if LA == 2:
            a(f"s_waitcnt vmcnt({NL})")
        else:
            a("s_waitcnt vmcnt(0)")
            a(f"s_cmp_eq_u32 s{S_FIRST}, 0")
            a(f"s_mov_b32 s{S_FIRST}, 1")
            a("s_cbranch_scc1 L_skipV")
            a(f"s_mul_i32 s{S_T2}, s{S_CNT}, {TB}")
            a(f"s_add_u32 s{S_T3}, s{S_T2}, 4096")
            self.issueV(S_T2, S_T3)
            a.label("L_skipV")
        for s_ in range(4):
            for u in range(NU):
                c = "0" if s_ == 0 else vr(S + 4 * u, 4)
                a(f"v_mfma_f32_16x16x32_bf16 {vr(S+4*u,4)}, {vr(KB+(u*4+s_)*4,4)}, {vr(Q+4*s_,4)}, {c}")
        if LA == 2:
            self.issueK()
        NP = 2 * NU; NSV = 4 * NU
        for p in range(NP):
            a(f"v_cvt_pk_bf16_f32 v{P+p}, v{S+2*p}, v{S+2*p+1}")
        for p in range(NP):
            a(f"v_lshlrev_b32 v{S+2*p}, 16, v{P+p}")
            a(f"v_and_b32 v{S+2*p+1}, s{S_MASKHI}, v{P+p}")
        for k in range(NSV):
            a(f"v_mul_f32 v{S+k}, s{S_SCALE}, v{S+k}")
        for p in range(NP):
            a(f"v_cvt_pk_bf16_f32 v{P+p}, v{S+2*p}, v{S+2*p+1}")
        for p in range(NP):
            a(f"v_lshlrev_b32 v{S+2*p}, 16, v{P+p}")
            a(f"v_and_b32 v{S+2*p+1}, s{S_MASKHI}, v{P+p}")
        if NU == 2:
            a(f"v_max3_f32 v{P}, v{S}, v{S+1}, v{S+2}")
            a(f"v_max3_f32 v{P+1}, v{S+3}, v{S+4}, v{S+5}")
            a(f"v_max3_f32 v{P}, v{P}, v{S+6}, v{S+7}")
            a(f"v_max_f32 v{P}, v{P}, v{P+1}")
        else:
            a(f"v_max3_f32 v{P}, v{S}, v{S+1}, v{S+2}")
            a(f"v_max_f32 v{P}, v{P}, v{S+3}")
        a(f"v_cmp_gt_f32 vcc, v{P}, v{M}")
        a("s_cbranch_vccz L_nores")
        a(f"v_mov_b32 v{P+1}, v{P}")
        a(f"v_permlane16_swap_b32 v{P}, v{P+1}")
        a(f"v_max_f32 v{P}, v{P}, v{P+1}")
        a(f"v_mov_b32 v{P+1}, v{P}")
        a(f"v_permlane32_swap_b32 v{P}, v{P+1}")
        a(f"v_max3_f32 v{P}, v{P}, v{P+1}, v{M}")
        a(f"v_sub_f32 v{P+2}, v{M}, v{P}")
        a(f"v_mul_f32 v{P+2}, s{S_LOG2E}, v{P+2}")
        a(f"v_exp_f32 v{P+2}, v{P+2}")
        a(f"v_mov_b32 v{M}, v{P}")
        a(f"v_mov_b32 v{P+3}, v{P+2}")
        a(f"v_mul_f32 v{L}, v{L}, v{P+2}")
        for k in range(16):
            a(f"v_pk_mul_f32 {vr(O+2*k,2)}, {vr(O+2*k,2)}, {vr(P+2,2)}")
        a.label("L_nores")
        a(f"v_mul_f32 v{P}, s{S_LOG2E}, v{M}")
        for k in range(NSV):
            a(f"v_fma_f32 v{S+k}, v{S+k}, s{S_LOG2E}, -v{P}")
        for k in range(NSV):
            a(f"v_exp_f32 v{S+k}, v{S+k}")
        if NU == 2:
            a(f"v_add_f32 v{P+1}, v{S}, v{S+1}")
            a(f"v_add_f32 v{P+2}, v{S+2}, v{S+3}")
            a(f"v_add_f32 v{P+3}, v{S+4}, v{S+5}")
            a(f"v_add_f32 v{P}, v{S+6}, v{S+7}")
            a(f"v_add_f32 v{P+1}, v{P+1}, v{P+2}")
            a(f"v_add_f32 v{P+3}, v{P+3}, v{P}")
            a(f"v_add_f32 v{L}, v{L}, v{P+1}")
            a(f"v_add_f32 v{L}, v{L}, v{P+3}")
        else:
            a(f"v_add_f32 v{P+1}, v{S}, v{S+1}")
            a(f"v_add_f32 v{P+2}, v{S+2}, v{S+3}")
            a(f"v_add_f32 v{L}, v{L}, v{P+1}")
            a(f"v_add_f32 v{L}, v{L}, v{P+2}")
        for p in range(NP):
            a(f"v_cvt_pk_bf16_f32 v{P+p}, v{S+2*p}, v{S+2*p+1}")
        if LA == 2:
            a(f"s_waitcnt vmcnt({NL})")
        else:
            a("s_waitcnt vmcnt(0)")
            self.issueK()
        npp = 4 if NU == 2 else 2
        def perms(c, e):
            for p in range(npp):
                a(f"v_perm_b32 v{S+4*e+p}, v{VB+(2*p+1)*4+c}, v{VB+(2*p)*4+c}, s{S_SEL_LO if e == 0 else S_SEL_HI}")
        def pv(c, e):
            j = 2 * c + e
            if NU == 2:
                a(f"v_mfma_f32_16x16x32_bf16 {vr(O+4*j,4)}, {vr(S+4*e,4)}, {vr(P,4)}, {vr(O+4*j,4)}")
            else:
                a(f"v_mfma_f32_16x16x16_bf16 {vr(O+4*j,4)}, {vr(S+4*e,2)}, {vr(P,2)}, {vr(O+4*j,4)}")
        perms(0, 0); perms(0, 1)
        for c in range(4):
            pv(c, 0)
            if c < 3: perms(c + 1, 0)
            pv(c, 1)
            if c < 3: perms(c + 1, 1)
        a(f"v_mov_b32 v{S}, {LDS_CNT + 32}")
        a(f"v_mov_b32 v{S+1}, 1")
        a("s_mov_b64 exec, 1")
        a(f"ds_add_rtn_u32 v{S+2}, v{S}, v{S+1}")
        a("s_mov_b64 exec, -1")
        if LA == 2:
            self.issueV()
        a(f"s_mov_b32 s{S_CNT}, s{S_NXT}")
        a("s_waitcnt lgkmcnt(0)")
        a(f"v_readfirstlane_b32 s{S_NXT}, v{S+2}")
        a(f"s_cmp_lt_u32 s{S_CNT}, s{S_NT}")
        a("s_cbranch_scc1 L_sloop")
        self.stamp(2)
        a(f"v_mov_b32 v{P}, v{L}")
        a(f"v_permlane16_swap_b32 v{L}, v{P}")
        a(f"v_add_f32 v{L}, v{L}, v{P}")
        a(f"v_mov_b32 v{P}, v{L}")
        a(f"v_permlane32_swap_b32 v{L}, v{P}")
        a(f"v_add_f32 v{L}, v{L}, v{P}")
        a("v_mbcnt_lo_u32_b32 v8, -1, 0")
        a("v_mbcnt_hi_u32_b32 v8, -1, v8")
        a("v_and_b32 v9, 15, v8")
        a("v_lshrrev_b32 v10, 4, v8")
        a(f"s_mul_i32 s{S_T0}, s{S_WAVE}, {SP_STRIDE}")
        a(f"s_add_u32 s{S_T0}, s{S_T0}, {LDS_SP}")
        a("v_lshlrev_b32 v11, 9, v9")
        a("v_lshl_add_u32 v11, v10, 4, v11")
        a(f"v_add_u32 v11, s{S_T0}, v11")
        a("v_cmp_gt_u32 vcc, 2, v9")
        a(f"s_and_saveexec_b64 {sr(S_EX,2)}, vcc")
        for j in range(8):
            a(f"ds_write_b128 v11, {vr(O+4*j,4)} offset:{j*64}")
        a("v_cmp_gt_u32 vcc, 2, v8")
        a("s_and_b64 exec, exec, vcc")
        a("v_lshlrev_b32 v12, 3, v9")
        a(f"v_add_u32 v12, s{S_T0}, v12")
        a(f"ds_write_b64 v12, {vr(M,2)} offset:1024")
        self.restore_exec()
        a("s_waitcnt vmcnt(0) lgkmcnt(0)")
        a("s_branch L_B4")

    def perm_block(self, buf, c, e, T):
        for p in range(4):
            self.a(f"v_perm_b32 v{T+p}, v{buf+(2*p+1)*4+c}, v{buf+(2*p)*4+c}, s{S_SEL_LO if e == 0 else S_SEL_HI}")

    def aux(self):
        a = self.a
        a.label("L_aux")
        a("s_setprio 3")
        a(f"s_sub_u32 s{S_HW}, s{S_WAVE}, 4")
        self.srd(SRD_W, S_WQ, 576 * 8192)
        a("v_lshrrev_b32 v3, 4, v0")
        a("v_lshlrev_b32 v3, 16, v3")
        a("v_and_b32 v1, 15, v0")
        a("v_lshl_add_u32 v1, v1, 4, v3")
        a(f"s_lshr_b32 s{S_T1}, s{S_HW}, 1")
        a(f"s_lshl_b32 s{S_UOFF}, s{S_T1}, 18")
        a(f"s_and_b32 s{S_T2}, s{S_HW}, 1")
        a(f"s_lshl_b32 s{S_T2}, s{S_T2}, 8")
        a(f"s_lshl_b32 s{S_T3}, s{S_HKV}, 9")
        a(f"s_add_u32 s{S_UOFF}, s{S_UOFF}, s{S_T2}")
        a(f"s_add_u32 s{S_UOFF}, s{S_UOFF}, s{S_T3}")
        for u in range(3):
            for t in range(8):
                a(f"buffer_load_dwordx4 {vr(32+32*u+4*t,4)}, v1, {sr(SRD_W,4)}, s{S_UOFF} offen")
                if t < 7: a(f"s_add_u32 s{S_UOFF}, s{S_UOFF}, 8192")
            if u < 2: a(f"s_add_u32 s{S_UOFF}, s{S_UOFF}, {6*32*8192 - 7*8192}")
        self.stamp(10)
        a("s_barrier")
        self.stamp(1)
        a(f"s_lshl_b32 s{S_T1}, s{S_T1}, 6")
        a("v_lshrrev_b32 v2, 4, v0")
        a("v_lshlrev_b32 v2, 4, v2")
        a(f"v_add_u32 v2, s{S_T1}, v2")
        for j in range(8): a(f"v_mov_b32 v{20+j}, 0")
        for u in range(3):
            a(f"ds_read_b128 {vr(4+12*(u&1),4)}, v2 offset:{LDS_XB + u*384}")
        self.a.lines = self.a.lines[:-3]
        AQ = [4, 16, 28]
        for u in range(3):
            a(f"ds_read_b128 {vr(AQ[u],4)}, v2 offset:{LDS_XB + u*384}")
        for u in range(3):
            buf = 32 + 32 * u
            a(f"s_waitcnt vmcnt({16 - 8*u}) lgkmcnt({2-u})")
            if u < 2: self.stamp(6 + u)
            for c in range(4):
                for e in range(2):
                    j = 2 * c + e
                    T = 8 + 4 * (j & 1)
                    self.perm_block(buf, c, e, T)
                    for p in range(4):
                        a(f"v_dot2c_f32_bf16 v{20+j}, v{T+p}, v{AQ[u]+p}")
        self.stamp(2)
        for k in range(4):
            a(f"v_permlane32_swap_b32 v{20+k}, v{24+k}")
        for k in range(4):
            a(f"v_add_f32 v{20+k}, v{20+k}, v{24+k}")
        for k in range(2):
            a(f"v_permlane16_swap_b32 v{20+k}, v{22+k}")
        for k in range(2):
            a(f"v_add_f32 v{20+k}, v{20+k}, v{22+k}")
        a(f"s_lshl_b32 s{S_T0}, s{S_HW}, 9")
        a("v_and_b32 v3, 15, v0")
        a("v_lshlrev_b32 v3, 5, v3")
        a("v_lshrrev_b32 v4, 4, v0")
        a("v_lshl_add_u32 v3, v4, 3, v3")
        a(f"v_add_u32 v3, s{S_T0}, v3")
        a(f"ds_write_b64 v3, v[20:21] offset:{LDS_QPART}")
        a("s_waitcnt lgkmcnt(0)")
        a("s_barrier")
        a(f"s_cmp_ge_u32 s{S_HW}, 4")
        a("s_cbranch_scc1 L_qf_done")
        a(f"s_lshl_b32 s{S_T0}, s{S_HW}, 6")
        a(f"v_add_u32 v3, s{S_T0}, v0")
        a("v_lshrrev_b32 v4, 7, v3")
        a("v_and_b32 v5, 127, v3")
        a("v_lshlrev_b32 v6, 9, v4")
        a("v_lshl_add_u32 v6, v5, 2, v6")
        for k in range(6):
            a(f"ds_read_b32 v{8+k}, v6 offset:{LDS_QPART + k*1024}")
        a("s_waitcnt lgkmcnt(0)")
        a("v_add_f32 v8, v8, v9")
        a("v_add_f32 v10, v10, v11")
        a("v_add_f32 v12, v12, v13")
        a("v_add_f32 v8, v8, v10")
        a("v_add_f32 v8, v8, v12")
        a("v_cvt_pk_bf16_f32 v8, v8, v8")
        a("v_lshlrev_b32 v6, 1, v3")
        a(f"ds_write_b16 v6, v8 offset:{LDS_Q}")
        if self.debug:
            a("v_and_b32 v9, 0xffff0000, v8")
            a(f"s_lshl_b32 s{S_T0}, s2, 10")
            a(f"s_add_u32 s{S_T0}, s{S_T0}, {WS_DBG}")
            a("v_lshlrev_b32 v10, 2, v3")
            a(f"buffer_store_dword v9, v10, {sr(SRD_WS,4)}, s{S_T0} offen")
        a("s_waitcnt lgkmcnt(0)")
        a.label("L_qf_done")
        a("s_barrier")
        self.stamp(3)
        a(f"s_cmp_lt_u32 s{S_WAVE}, 8")
        a("s_cbranch_scc1 L_B4")
        a(f"s_sub_u32 s{S_HW}, s{S_WAVE}, 8")
        self.helper_mid()
        self.stamp(4)
        a("s_branch L_B4")

    def role_decode(self):
        a = self.a
        a(f"s_mov_b32 s{S_ROLE}, {ROLE_NONE}")
        a(f"s_mov_b32 s{S_RIDX}, 0")
        a(f"s_cmp_lt_u32 s{S_J}, 10")
        a("s_cbranch_scc0 L_rd_hi")
        a(f"s_cmp_eq_u32 s{S_SPLIT}, 0")
        a("s_cbranch_scc1 L_rd_even")
        a(f"s_mov_b32 s{S_ROLE}, {ROLE_A}")
        a(f"s_mov_b32 s{S_RIDX}, s{S_B}")
        a("s_branch L_rd_done")
        a.label("L_rd_even")
        a(f"s_lshl_b32 s{S_T0}, s{S_B}, 4")
        a(f"s_add_u32 s{S_T0}, s{S_T0}, s{S_HKV}")
        a(f"s_cmp_lt_u32 s{S_T0}, 72")
        a("s_cbranch_scc0 L_rd_red2")
        a(f"s_mov_b32 s{S_ROLE}, {ROLE_C}")
        a(f"s_mov_b32 s{S_RIDX}, s{S_T0}")
        a("s_branch L_rd_done")
        a.label("L_rd_red2")
        a(f"s_cmp_lt_u32 s{S_HKV}, 10")
        a("s_cbranch_scc0 L_rd_done")
        a(f"s_add_u32 s{S_R}, s{S_HKV}, 8")
        a("s_branch L_rd_done")
        a.label("L_rd_hi")
        a(f"s_cmp_eq_u32 s{S_J}, 15")
        a("s_cbranch_scc1 L_rd_red")
        a(f"s_mov_b32 s{S_ROLE}, {ROLE_B}")
        a(f"s_sub_u32 s{S_RIDX}, s{S_J}, 10")
        a("s_branch L_rd_done")
        a.label("L_rd_red")
        a(f"s_mov_b32 s{S_R}, s{S_HKV}")
        a.label("L_rd_done")

    def helper_sync(self, idx):
        a = self.a
        lab = a.newlabel("L_hs")
        a("s_waitcnt lgkmcnt(0)")
        a(f"v_mov_b32 v3, {LDS_CNT + 4*idx}")
        a("v_mov_b32 v4, 1")
        a("s_mov_b64 exec, 1")
        a("ds_add_u32 v3, v4")
        a("s_mov_b64 exec, -1")
        a(f"s_mov_b32 s{S_SPIN}, 0")
        a.label(lab)
        a("ds_read_b32 v4, v3")
        a("s_waitcnt lgkmcnt(0)")
        a(f"v_readfirstlane_b32 s{S_T0}, v4")
        a(f"s_cmp_ge_u32 s{S_T0}, 8")
        a(f"s_cbranch_scc1 {lab}_done")
        self.spin(lab, 1, 0x100000)
        a.label(lab + "_done")

    def wait_tiles(self, thr):
        a = self.a
        lab = a.newlabel("L_wt")
        a(f"s_mov_b32 s{S_SPIN}, 0")
        a(f"v_mov_b32 v3, {LDS_CNT + 32}")
        a.label(lab)
        a("ds_read_b32 v4, v3")
        a("s_waitcnt lgkmcnt(0)")
        a(f"v_readfirstlane_b32 s{S_T0}, v4")
        a(f"s_cmp_ge_u32 s{S_T0}, {thr}")
        a(f"s_cbranch_scc1 {lab}_done")
        self.spin(lab, 32, 0x10000)
        a.label(lab + "_done")

    def poll_counter(self, target):
        a = self.a
        lab = a.newlabel("L_pc")
        a(f"s_mov_b32 s{S_SPIN}, 0")
        a("v_mov_b32 v3, 0")
        a.label(lab)
        a(f"global_load_dword v4, v3, {sr(S_DBG,2)} sc1")
        a("s_waitcnt vmcnt(0)")
        a(f"v_readfirstlane_b32 s{S_T0}, v4")
        a(f"s_cmp_ge_u32 s{S_T0}, {target}")
        a(f"s_cbranch_scc1 {lab}_done")
        self.spin(lab, 32, 0x10000)
        a.label(lab + "_done")

    def helper_mid(self):
        a = self.a
        KT = self.KT; TS = 32 // KT
        self.role_decode()
        a(f"s_cmp_lg_u32 s{S_HW}, 7")
        a("s_cbranch_scc1 L_reset_done")
        for k in range(4, 8): a(f"v_mov_b32 v{k}, -1")
        a("v_lshlrev_b32 v3, 4, v0")
        a(f"s_lshl_b32 s{S_T0}, s{S_HKV}, 4")
        a(f"s_add_u32 s{S_T0}, s{S_T0}, s{S_J}")
        a(f"s_lshl_b32 s{S_T0}, s{S_T0}, 11")
        a(f"buffer_store_dwordx4 v[4:7], v3, {sr(SRD_WS,4)}, s{S_T0} offen sc1")
        a(f"buffer_store_dwordx4 v[4:7], v3, {sr(SRD_WS,4)}, s{S_T0} offen offset:1024 sc1")
        a(f"s_cmp_eq_u32 s{S_ROLE}, {ROLE_NONE}")
        a("s_cbranch_scc1 L_reset_sig")
        a(f"s_cmp_eq_u32 s{S_ROLE}, {ROLE_C}")
        a("s_cbranch_scc1 L_reset_c")
        a(f"s_mul_i32 s{S_T0}, s{S_HKV}, 5")
        a(f"s_add_u32 s{S_T0}, s{S_T0}, s{S_RIDX}")
        a(f"s_lshl_b32 s{S_T0}, s{S_T0}, 12")
        a(f"s_cmp_eq_u32 s{S_ROLE}, {ROLE_A}")
        a(f"s_mov_b32 s{S_T2}, {WS_F2}")
        a(f"s_cselect_b32 s{S_T1}, {WS_P2}, s{S_T2}")
        a(f"s_add_u32 s{S_T0}, s{S_T0}, s{S_T1}")
        for k in range(4):
            a(f"buffer_store_dwordx4 v[4:7], v3, {sr(SRD_WS,4)}, s{S_T0} offen offset:{k*1024} sc1")
        a("s_branch L_reset_sig")
        a.label("L_reset_c")
        self.h_addr()
        a(f"buffer_store_dwordx4 v[4:7], v8, {sr(SRD_WS,4)}, s{S_T0} offen sc1")
        a.label("L_reset_sig")
        a("s_waitcnt vmcnt(0)")
        a("v_mov_b32 v3, 0")
        a("v_mov_b32 v4, 1")
        a("s_mov_b64 exec, 1")
        a(f"global_atomic_add v3, v4, {sr(S_DBG,2)} sc1")
        a("s_mov_b64 exec, -1")
        a.label("L_reset_done")
        self.stamp(11)
        a(f"s_cmp_eq_u32 s{S_ROLE}, {ROLE_C}")
        a("s_cbranch_scc1 L_role_c")
        a(f"s_cmp_eq_u32 s{S_ROLE}, {ROLE_NONE}")
        a("s_cbranch_scc1 L_role_none")
        self.w_prefetch()
        a(f"s_cmp_eq_u32 s{S_ROLE}, {ROLE_B}")
        a("s_cbranch_scc1 L_role_b")
        a(f"s_cmp_lg_u32 s{S_HW}, 0")
        a("s_cbranch_scc1 L_mid_done")
        self.wait_tiles(80 * TS)
        self.poll_counter(256)
        a("s_branch L_mid_done")
        a.label("L_role_b")
        self.role_b()
        a("s_branch L_mid_done")
        a.label("L_role_c")
        self.role_c()
        a("s_branch L_mid_done")
        a.label("L_role_none")
        a(f"s_cmp_lt_i32 s{S_R}, 0")
        a("s_cbranch_scc1 L_mid_done")
        a(f"s_cmp_lg_u32 s{S_HW}, 0")
        a("s_cbranch_scc1 L_mid_done")
        self.reducer_pre()
        a.label("L_mid_done")

    def h_addr(self):
        a = self.a
        a("v_lshrrev_b32 v8, 3, v0")
        a(f"s_movk_i32 s{S_T1}, 9216")
        a(f"v_mul_lo_u32 v8, v8, s{S_T1}")
        a("v_and_b32 v9, 7, v0")
        a("v_lshl_add_u32 v8, v9, 4, v8")
        a(f"s_lshl_b32 s{S_T0}, s{S_RIDX}, 7")
        a(f"s_add_u32 s{S_T0}, s{S_T0}, {WS_H}")

    def w_unit_to_lds(self, kb_sgpr):
        a = self.a
        a(f"s_lshl_b32 s{S_T0}, s{kb_sgpr}, 13")
        a("v_lshlrev_b32 v3, 4, v0")
        a(f"v_add_u32 v3, s{S_T0}, v3")
        a(f"v_add_u32 v3, {LDS_W}, v3")
        for c in range(4):
            for e in range(2):
                j = 2 * c + e
                T = 8 + 4 * (j & 3)
                self.perm_block(64, c, e, T)
                a(f"ds_write_b128 v3, {vr(T,4)} offset:{j*1024}")

    def w_prefetch(self):
        a = self.a
        a(f"s_cmp_eq_u32 s{S_ROLE}, {ROLE_B}")
        a("s_cbranch_scc1 L_wp_b")
        self.srd(SRD_W, S_WO, 4096 * 1152)
        a("v_lshrrev_b32 v3, 4, v0")
        a("v_and_b32 v4, 1, v3")
        a("v_lshlrev_b32 v4, 6, v4")
        a("v_lshrrev_b32 v3, 1, v3")
        a("v_add_u32 v3, v3, v4")
        a(f"s_lshl_b32 s{S_T0}, s{S_HKV}, 8")
        a(f"s_lshr_b32 s{S_T1}, s{S_HW}, 2")
        a(f"s_lshl_b32 s{S_T1}, s{S_T1}, 7")
        a(f"s_add_u32 s{S_T0}, s{S_T0}, s{S_T1}")
        a(f"s_and_b32 s{S_T1}, s{S_HW}, 3")
        a(f"s_lshl_b32 s{S_T1}, s{S_T1}, 1")
        a(f"s_add_u32 s{S_T0}, s{S_T0}, s{S_T1}")
        a(f"s_movk_i32 s{S_STRIDE}, {8*1152}")
        a("s_branch L_wp_go")
        a.label("L_wp_b")
        self.srd(SRD_W, S_WD, 4608 * 1152)
        a("v_lshrrev_b32 v3, 4, v0")
        a("v_lshlrev_b32 v3, 3, v3")
        a(f"s_mul_i32 s{S_T0}, s{S_HKV}, 288")
        a(f"s_lshl_b32 s{S_T1}, s{S_HW}, 5")
        a(f"s_add_u32 s{S_T0}, s{S_T0}, s{S_T1}")
        a(f"s_movk_i32 s{S_STRIDE}, 1152")
        a.label("L_wp_go")
        a(f"s_movk_i32 s{S_T1}, 1152")
        a(f"v_mul_lo_u32 v3, v3, s{S_T1}")
        a("v_and_b32 v1, 15, v0")
        a("v_lshl_add_u32 v1, v1, 4, v3")
        a(f"s_mul_i32 s{S_UOFF}, s{S_T0}, 1152")
        a(f"s_lshl_b32 s{S_T1}, s{S_RIDX}, 8")
        a(f"s_add_u32 s{S_UOFF}, s{S_UOFF}, s{S_T1}")
        a(f"s_mov_b32 s{S_CNT}, s{S_HW}")
        a.label("L_wp_loop")
        a(f"s_mov_b32 s{S_T2}, s{S_UOFF}")
        for t in range(8):
            a(f"buffer_load_dwordx4 {vr(64+4*t,4)}, v1, {sr(SRD_W,4)}, s{S_T2} offen nt")
            if t < 7: a(f"s_add_u32 s{S_T2}, s{S_T2}, s{S_STRIDE}")
        a("s_waitcnt vmcnt(0)")
        self.w_unit_to_lds(S_CNT)
        a(f"s_cmp_eq_u32 s{S_ROLE}, {ROLE_B}")
        a("s_cbranch_scc0 L_wp_done")
        a(f"s_cmp_eq_u32 s{S_CNT}, 0")
        a("s_cbranch_scc0 L_wp_done")
        a(f"s_mov_b32 s{S_CNT}, 8")
        a(f"s_add_u32 s{S_UOFF}, s{S_UOFF}, {256*1152}")
        a("s_branch L_wp_loop")
        a.label("L_wp_done")
        a("s_waitcnt lgkmcnt(0)")

    def proj(self, nkb, a_imm, a_stride, wave_sgpr, tag, preloaded=False):
        a = self.a
        if not preloaded:
            self.proj_preload(nkb, wave_sgpr)
        a("v_and_b32 v2, 7, v0")
        a(f"s_movk_i32 s{S_T0}, {a_stride}")
        a(f"v_mul_lo_u32 v2, v2, s{S_T0}")
        a("v_lshrrev_b32 v3, 4, v0")
        a("v_lshl_add_u32 v2, v3, 4, v2")
        AR = [4 + 4 * k for k in range(7)] + [100, 104]
        for kb in range(nkb):
            a(f"ds_read_b128 {vr(AR[kb],4)}, v2 offset:{a_imm + kb*64}")
        for kb in range(nkb):
            a(f"s_waitcnt lgkmcnt({nkb-1-kb})")
            c = "0" if kb == 0 else "v[32:35]"
            a(f"v_mfma_f32_16x16x32_bf16 v[32:35], {vr(AR[kb],4)}, {vr(64+4*kb,4)}, {c}")

    def proj_preload(self, nkb, wave_sgpr):
        a = self.a
        a(f"s_lshl_b32 s{S_T0}, s{wave_sgpr}, 10")
        a("v_lshlrev_b32 v3, 4, v0")
        a(f"v_add_u32 v3, s{S_T0}, v3")
        a(f"v_add_u32 v3, {LDS_W}, v3")
        for kb in range(nkb):
            if kb < 8:
                a(f"ds_read_b128 {vr(64+4*kb,4)}, v3 offset:{kb*8192}")
            else:
                a("v_add_u32 v2, 0x10000, v3")
                a(f"ds_read_b128 {vr(64+4*kb,4)}, v2 offset:{(kb-8)*8192}")

    def publish4(self, acc):
        a = self.a
        for k in range(4):
            a(f"v_min_u32 v{acc+k}, s{S_SENTM1}, v{acc+k}")
        a("v_and_b32 v3, 15, v0")
        a("v_lshlrev_b32 v3, 5, v3")
        a("v_lshrrev_b32 v2, 4, v0")
        a("v_lshl_add_u32 v3, v2, 4, v3")
        self.lane_mask_lt(32)
        a(f"buffer_store_dwordx4 {vr(acc,4)}, v3, {sr(SRD_WS,4)}, s{S_T0} offen sc1")
        self.restore_exec()

    def role_b(self):
        a = self.a
        TS = 32 // self.KT
        self.wait_tiles(48 * TS)
        self.poll_counter(256)
        a(f"s_mul_i32 s{S_T1}, s{S_HW}, 9216")
        a(f"s_mul_i32 s{S_T2}, s{S_HKV}, 576")
        a(f"s_add_u32 s{S_T1}, s{S_T1}, s{S_T2}")
        a(f"s_add_u32 s{S_T1}, s{S_T1}, {WS_H}")
        a("v_lshlrev_b32 v5, 4, v0")
        self.lane_mask_lt(36)
        a(f"s_mov_b32 s{S_SPIN}, 0")
        a.label("L_b_poll")
        a(f"buffer_load_dwordx4 v[8:11], v5, {sr(SRD_WS,4)}, s{S_T1} offen sc1")
        a("s_waitcnt vmcnt(0)")
        a("v_max3_u32 v6, v8, v9, v10")
        a("v_max_u32 v6, v6, v11")
        a("v_cmp_eq_u32 vcc, -1, v6")
        a("s_cbranch_vccz L_b_ok")
        self.spin("L_b_poll", 64, 0x8000)
        a.label("L_b_ok")
        a(f"s_mul_i32 s{S_T1}, s{S_HW}, {H_STRIDE}")
        a(f"v_add_u32 v5, s{S_T1}, v5")
        a(f"ds_write_b128 v5, v[8:11] offset:{LDS_H}")
        self.restore_exec()
        self.helper_sync(0)
        self.proj(9, LDS_H, H_STRIDE, S_HW, "b")
        a(f"s_mul_i32 s{S_T0}, s{S_HKV}, 5")
        a(f"s_add_u32 s{S_T0}, s{S_T0}, s{S_RIDX}")
        a(f"s_lshl_b32 s{S_T0}, s{S_T0}, 12")
        a(f"s_lshl_b32 s{S_T1}, s{S_HW}, 9")
        a(f"s_add_u32 s{S_T0}, s{S_T0}, s{S_T1}")
        a(f"s_add_u32 s{S_T0}, s{S_T0}, {WS_F2}")
        self.publish4(32)

    def role_c(self):
        a = self.a
        a(f"s_mul_i32 s{S_T0}, s{S_HW}, 1152")
        self.xload(16, 0, 4, S_T0)
        self.srd(SRD_W, S_WG, 576 * 9216)
        self.srd(SRD_W2, S_WU, 576 * 9216)
        a("v_lshrrev_b32 v3, 4, v0")
        a(f"s_mov_b32 s{S_T1}, {8*9216}")
        a(f"v_mul_lo_u32 v3, v3, s{S_T1}")
        a("v_and_b32 v1, 7, v0")
        a("v_lshl_add_u32 v1, v1, 4, v3")
        a(f"s_mul_i32 s{S_UOFF}, s{S_HW}, {32*9216}")
        a(f"s_lshl_b32 s{S_T1}, s{S_RIDX}, 7")
        a(f"s_add_u32 s{S_UOFF}, s{S_UOFF}, s{S_T1}")
        def issue(buf):
            a(f"s_mov_b32 s{S_T2}, s{S_UOFF}")
            a("s_mov_b32 exec_lo, 0x00ff00ff"); a("s_mov_b32 exec_hi, 0x00ff00ff")
            for t in range(8):
                a(f"buffer_load_dwordx4 {vr(buf+4*t,4)}, v1, {sr(SRD_W,4)}, s{S_T2} offen nt")
                a(f"s_add_u32 s{S_T2}, s{S_T2}, 9216")
            a(f"s_mov_b32 s{S_T2}, s{S_UOFF}")
            a("s_mov_b32 exec_lo, 0xff00ff00"); a("s_mov_b32 exec_hi, 0xff00ff00")
            for t in range(8):
                a(f"buffer_load_dwordx4 {vr(buf+4*t,4)}, v1, {sr(SRD_W2,4)}, s{S_T2} offen nt")
                a(f"s_add_u32 s{S_T2}, s{S_T2}, 9216")
            a("s_mov_b64 exec, -1")
            a(f"s_add_u32 s{S_UOFF}, s{S_UOFF}, {8*32*9216}")
        issue(64); issue(96)
        a("s_waitcnt vmcnt(32)")
        a(f"s_mul_i32 s{S_T3}, s{S_HW}, {XN_STRIDE}")
        self.layernorm(16, 32, 8, 0, LDS_XN, s_row=S_T3)
        self.helper_sync(0)
        a("v_and_b32 v2, 7, v0")
        a(f"s_movk_i32 s{S_T0}, {XN_STRIDE}")
        a(f"v_mul_lo_u32 v2, v2, s{S_T0}")
        a("v_lshrrev_b32 v3, 4, v0")
        a("v_lshl_add_u32 v2, v3, 4, v2")
        a(f"s_lshl_b32 s{S_T1}, s{S_HW}, 6")
        a(f"v_add_u32 v2, s{S_T1}, v2")
        for k in range(32): a(f"v_mov_b32 v{32+k}, 0")
        def process(buf, u, vm):
            a(f"ds_read_b128 v[16:19], v2 offset:{LDS_XN + u*512}")
            a(f"s_waitcnt vmcnt({vm})")
            self.perm_block(buf, 0, 0, 8); self.perm_block(buf, 0, 1, 12)
            a("s_waitcnt lgkmcnt(0)")
            for c in range(4):
                for e in range(2):
                    j = 2 * c + e
                    a(f"v_mfma_f32_16x16x32_bf16 {vr(32+4*j,4)}, v[16:19], {vr(8+4*e,4)}, {vr(32+4*j,4)}")
                    if c < 3: self.perm_block(buf, c + 1, e, 8 + 4 * e)
        process(64, 0, 16)
        a(f"s_cmp_ge_u32 s{S_HW}, 2")
        a("s_cbranch_scc1 L_c_u1")
        issue(64)
        process(96, 1, 16)
        process(64, 2, 0)
        a("s_branch L_c_ud")
        a.label("L_c_u1")
        process(96, 1, 0)
        a.label("L_c_ud")
        a(f"s_lshl_b32 s{S_T0}, s{S_HW}, 12")
        a("v_and_b32 v3, 15, v0")
        a("v_lshlrev_b32 v3, 8, v3")
        a("v_lshrrev_b32 v4, 4, v0")
        a("v_lshl_add_u32 v3, v4, 4, v3")
        a(f"v_add_u32 v3, s{S_T0}, v3")
        self.lane_mask_lt(32)
        for j in range(8):
            a(f"ds_write_b128 v3, {vr(32+4*j,4)} offset:{LDS_FP + j*32}")
        self.restore_exec()
        self.helper_sync(1)
        a(f"s_lshl_b32 s{S_T0}, s{S_HW}, 6")
        a(f"v_add_u32 v3, s{S_T0}, v0")
        a("v_lshlrev_b32 v4, 2, v3")
        a(f"v_add_u32 v4, {LDS_FP}, v4")
        for k in range(8):
            a(f"ds_read_b32 v{8+k}, v4 offset:{k*4096}")
        for k in range(8):
            a(f"ds_read_b32 v{16+k}, v4 offset:{k*4096 + 2048}")
        a("s_waitcnt lgkmcnt(0)")
        for base in (8, 16):
            for k in range(4):
                a(f"v_add_f32 v{base+k}, v{base+k}, v{base+4+k}")
            a(f"v_add_f32 v{base}, v{base}, v{base+2}")
            a(f"v_add_f32 v{base+1}, v{base+1}, v{base+3}")
            a(f"v_add_f32 v{base}, v{base}, v{base+1}")
            self.rne(base)
        a(f"v_mul_f32 v10, s{S_LOG2E}, v8")
        a("v_exp_f32 v10, -v10")
        a("v_add_f32 v10, 1.0, v10")
        a("v_rcp_f32 v12, v10")
        a("v_mul_f32 v14, v8, v12")
        a("v_fma_f32 v18, -v14, v10, v8")
        a("v_fma_f32 v14, v18, v12, v14")
        self.rne(14)
        a("v_mul_f32 v14, v14, v16")
        a("v_cvt_pk_bf16_f32 v14, v14, v14")
        a("v_lshrrev_b32 v5, 3, v3")
        a("v_and_b32 v6, 7, v3")
        a("v_lshlrev_b32 v6, 7, v6")
        a("v_lshl_add_u32 v6, v5, 1, v6")
        a(f"ds_write_b16 v6, v14 offset:{LDS_H}")
        self.helper_sync(2)
        a(f"s_cmp_lg_u32 s{S_HW}, 0")
        a("s_cbranch_scc1 L_c_done")
        a("v_lshlrev_b32 v3, 4, v0")
        a(f"ds_read_b128 v[4:7], v3 offset:{LDS_H}")
        self.h_addr()
        a("s_waitcnt lgkmcnt(0)")
        for k in range(4, 8):
            a(f"v_min_u32 v{k}, s{S_SENTM1}, v{k}")
        a(f"buffer_store_dwordx4 v[4:7], v8, {sr(SRD_WS,4)}, s{S_T0} offen sc1")
        a.label("L_c_done")

    def reducer_addr(self):
        a = self.a
        a(f"s_lshr_b32 s{S_CB}, s{S_R}, 2")
        a(f"s_and_b32 s{S_T1}, s{S_R}, 3")
        a("v_and_b32 v2, 7, v0")
        a("v_bfe_u32 v3, v0, 3, 2")
        a(f"s_lshl_b32 s{S_T1}, s{S_T1}, 2")
        a(f"v_add_u32 v3, s{S_T1}, v3")
        a("v_lshrrev_b32 v4, 5, v0")
        a("v_lshlrev_b32 v1, 9, v2")
        a("v_lshl_add_u32 v1, v3, 5, v1")
        a("v_lshl_add_u32 v1, v4, 4, v1")
        a(f"s_lshl_b32 s{S_T2}, s{S_CB}, 12")
        a(f"v_add_u32 v1, s{S_T2}, v1")
        a("v_lshl_add_u32 v5, v3, 3, v2")
        a(f"s_lshl_b32 s{S_T2}, s{S_CB}, 7")
        a(f"v_add_u32 v5, s{S_T2}, v5")

    def poll_sum(self, n, base_imm, stride, acc, buf, tag, sleep=2):
        a = self.a
        a(f"s_mov_b32 s{S_SPIN}, 0")
        a.label(f"L_ps_{tag}")
        a(f"s_mov_b32 s{S_T0}, {base_imm}")
        for k in range(n):
            a(f"buffer_load_dwordx4 {vr(buf+4*k,4)}, v1, {sr(SRD_WS,4)}, s{S_T0} offen sc1")
            if k < n - 1:
                a(f"s_add_u32 s{S_T0}, s{S_T0}, {stride}")
        a("s_waitcnt vmcnt(0)")
        a(f"v_max_u32 v6, v{buf}, v{buf+1}")
        k = 2
        while k < 4 * n:
            a(f"v_max3_u32 v6, v6, v{buf+k}, v{buf+k+1}")
            k += 2
        a("v_cmp_eq_u32 vcc, -1, v6")
        a(f"s_cbranch_vccz L_ps_{tag}_done")
        self.spin(f"L_ps_{tag}", sleep, 0x40000)
        a.label(f"L_ps_{tag}_done")
        m = n
        while m > 1:
            for k in range(m // 2):
                for r in range(4):
                    a(f"v_add_f32 v{buf+4*k+r}, v{buf+4*k+r}, v{buf+4*(k+m//2)+r}")
            m //= 2
        for r in range(4):
            a(f"v_mov_b32 v{acc+r}, v{buf+r}")

    def reducer_pre(self):
        a = self.a
        TS = 32 // self.KT
        self.wait_tiles(100 * TS)
        self.poll_counter(256)
        self.reducer_addr()
        self.poll_sum(16, WS_F2, 20480, 8, 64, "f2", sleep=32)
        for r in range(4): self.rne(8 + r)
        self.srd(SRD_X, S_X, 8 * 1152)
        a("v_lshrrev_b32 v4, 5, v0")
        a(f"s_movk_i32 s{S_T0}, {4*1152}")
        a(f"v_mul_lo_u32 v4, v4, s{S_T0}")
        a("v_lshl_add_u32 v7, v5, 1, v4")
        for r in range(4):
            a(f"buffer_load_ushort v{12+r}, v7, {sr(SRD_X,4)}, 0 offen offset:{r*1152}")
        a("s_waitcnt vmcnt(0)")
        for r in range(4):
            a(f"v_lshlrev_b32 v{12+r}, 16, v{12+r}")

    def tail(self):
        a = self.a
        NS = self.NS
        a.label("L_B4")
        a("s_barrier")
        self.stamp(5)
        a("s_setprio 0")
        a("v_mbcnt_lo_u32_b32 v0, -1, 0")
        a("v_mbcnt_hi_u32_b32 v0, -1, v0")
        a(f"s_cmp_lg_u32 s{S_WAVE}, 0")
        a("s_cbranch_scc1 L_nomerge")
        a("v_lshlrev_b32 v2, 4, v0")
        a("v_lshrrev_b32 v3, 5, v0")
        a("v_lshlrev_b32 v3, 3, v3")
        for w in range(NS):
            a(f"ds_read_b64 {vr(16+2*w,2)}, v3 offset:{LDS_SP + w*SP_STRIDE + 1024}")
        for w in range(NS):
            a(f"ds_read_b128 {vr(32+4*w,4)}, v2 offset:{LDS_SP + w*SP_STRIDE}")
        a(f"s_waitcnt lgkmcnt({NS})")
        a("v_max_f32 v4, v16, v18")
        for w in range(2, NS):
            a(f"v_max_f32 v4, v4, v{16+2*w}")
        for w in range(NS):
            a(f"v_sub_f32 v{16+2*w}, v{16+2*w}, v4")
            a(f"v_mul_f32 v{16+2*w}, s{S_LOG2E}, v{16+2*w}")
            a(f"v_exp_f32 v{16+2*w}, v{16+2*w}")
        a("v_mul_f32 v5, v16, v17")
        for w in range(1, NS):
            a(f"v_fmac_f32 v5, v{16+2*w}, v{17+2*w}")
        a("s_waitcnt lgkmcnt(0)")
        for r in range(4):
            a(f"v_mul_f32 v{8+r}, v16, v{32+r}")
        for w in range(1, NS):
            for r in range(4):
                a(f"v_fmac_f32 v{8+r}, v{16+2*w}, v{32+4*w+r}")
        for r in range(4):
            a(f"v_min_u32 v{8+r}, s{S_SENTM1}, v{8+r}")
        a(f"v_min_u32 v4, s{S_SENTM1}, v4")
        a(f"v_min_u32 v5, s{S_SENTM1}, v5")
        a(f"s_lshl_b32 s{S_T0}, s{S_HKV}, 4")
        a(f"s_add_u32 s{S_T0}, s{S_T0}, s{S_J}")
        a(f"s_lshl_b32 s{S_T0}, s{S_T0}, 11")
        a(f"buffer_store_dwordx4 v[8:11], v2, {sr(SRD_WS,4)}, s{S_T0} offen sc1")
        a(f"v_readlane_b32 s{S_T1}, v4, 32")
        a(f"v_readlane_b32 s{S_T2}, v5, 32")
        a("v_mov_b32 v12, v4")
        a("v_mov_b32 v13, v5")
        a(f"v_mov_b32 v14, s{S_T1}")
        a(f"v_mov_b32 v15, s{S_T2}")
        a("v_mov_b32 v3, 0")
        a("s_mov_b64 exec, 1")
        a(f"buffer_store_dwordx4 v[12:15], v3, {sr(SRD_WS,4)}, s{S_T0} offen offset:1024 sc1")
        a("s_mov_b64 exec, -1")
        self.stamp(6)
        a.label("L_nomerge")
        a(f"s_cmp_lt_u32 s{S_J}, 10")
        a("s_cbranch_scc0 L_notcons")
        a(f"s_cmp_eq_u32 s{S_SPLIT}, 1")
        a("s_cbranch_scc1 L_consumer")
        a.label("L_notcons")
        a(f"s_cmp_lg_u32 s{S_WAVE}, 8")
        a("s_cbranch_scc1 L_end")
        a(f"s_cmp_lt_i32 s{S_R}, 0")
        a("s_cbranch_scc1 L_end")
        self.poll_sum(16, WS_P2, 20480, 16, 64, "p2", sleep=1)
        self.stamp(7)
        for r in range(4):
            self.rne(16 + r)
            a(f"v_add_f32 v{16+r}, v{12+r}, v{16+r}")
            self.rne(16 + r)
            a(f"v_add_f32 v{16+r}, v{16+r}, v{8+r}")
            a(f"v_cvt_pk_bf16_f32 v{16+r}, v{16+r}, v{16+r}")
        self.srd(SRD_X, S_OUT, 8 * 1152)
        for r in range(4):
            a(f"buffer_store_short v{16+r}, v7, {sr(SRD_X,4)}, 0 offen offset:{r*1152}")
        a("s_branch L_end")
        a.label("L_consumer")
        a(f"s_cmp_ge_u32 s{S_WAVE}, 8")
        a("s_cbranch_scc1 L_c_nopre")
        self.proj_preload(8, S_WAVE)
        a.label("L_c_nopre")
        a(f"s_lshr_b32 s{S_T1}, s{S_WAVE}, 1")
        a(f"s_and_b32 s{S_T2}, s{S_WAVE}, 1")
        a(f"s_lshl_b32 s{S_T0}, s{S_HKV}, 4")
        a(f"s_lshl_b32 s{S_T3}, s{S_T1}, 1")
        a(f"s_add_u32 s{S_T0}, s{S_T0}, s{S_T3}")
        a(f"s_lshl_b32 s{S_T0}, s{S_T0}, 11")
        a("v_lshrrev_b32 v2, 5, v0")
        a("v_lshlrev_b32 v2, 11, v2")
        a("v_and_b32 v3, 31, v0")
        a("v_lshl_add_u32 v3, v3, 4, v2")
        a(f"s_lshl_b32 s{S_T3}, s{S_T2}, 9")
        a(f"v_add_u32 v3, s{S_T3}, v3")
        a(f"s_mov_b32 s{S_SPIN}, 0")
        a.label("L_c_poll")
        a(f"buffer_load_dwordx4 v[8:11], v3, {sr(SRD_WS,4)}, s{S_T0} offen sc1")
        a(f"buffer_load_dwordx4 v[12:15], v2, {sr(SRD_WS,4)}, s{S_T0} offen offset:1024 sc1")
        a("s_waitcnt vmcnt(0)")
        a("v_max3_u32 v6, v8, v9, v10")
        a("v_max3_u32 v6, v6, v11, v12")
        a("v_max3_u32 v6, v6, v13, v14")
        a("v_max_u32 v6, v6, v15")
        a("v_cmp_eq_u32 vcc, -1, v6")
        a("s_cbranch_vccz L_c_ok")
        self.spin("L_c_poll", 1, 0x40000)
        a.label("L_c_ok")
        self.stamp(7)
        a(f"s_cmp_eq_u32 s{S_T2}, 0")
        a("s_cselect_b64 vcc, -1, 0")
        a("v_cndmask_b32 v4, v14, v12, vcc")
        a("v_cndmask_b32 v5, v15, v13, vcc")
        a("v_mov_b32 v6, v4")
        a("v_permlane32_swap_b32 v4, v6")
        a("v_mov_b32 v7, v5")
        a("v_permlane32_swap_b32 v5, v7")
        a("v_max_f32 v16, v4, v6")
        a("v_sub_f32 v4, v4, v16")
        a("v_sub_f32 v6, v6, v16")
        a(f"v_mul_f32 v4, s{S_LOG2E}, v4")
        a(f"v_mul_f32 v6, s{S_LOG2E}, v6")
        a("v_exp_f32 v4, v4")
        a("v_exp_f32 v6, v6")
        a("v_mul_f32 v5, v4, v5")
        a("v_fmac_f32 v5, v6, v7")
        a("v_rcp_f32 v7, v5")
        a("v_cmp_gt_u32 vcc, 32, v0")
        a("v_cndmask_b32 v4, v6, v4, vcc")
        a("v_fma_f32 v6, -v5, v7, 1.0")
        a("v_fma_f32 v7, v6, v7, v7")
        a("v_mul_f32 v4, v4, v7")
        for r in range(4):
            a(f"v_mul_f32 v{8+r}, v{8+r}, v4")
        for r in range(4):
            a(f"v_mov_b32 v{12+r}, v{8+r}")
        for r in range(4):
            a(f"v_permlane32_swap_b32 v{8+r}, v{12+r}")
        for r in range(4):
            a(f"v_add_f32 v{8+r}, v{8+r}, v{12+r}")
        a("v_cvt_pk_bf16_f32 v8, v8, v9")
        a("v_cvt_pk_bf16_f32 v9, v10, v11")
        a(f"s_mul_i32 s{S_T0}, s{S_T1}, {O_STRIDE}")
        a(f"s_lshl_b32 s{S_T3}, s{S_T2}, 8")
        a(f"s_add_u32 s{S_T0}, s{S_T0}, s{S_T3}")
        a("v_lshlrev_b32 v3, 3, v0")
        a(f"v_add_u32 v3, s{S_T0}, v3")
        self.lane_mask_lt(32)
        a(f"ds_write_b64 v3, v[8:9] offset:{LDS_O}")
        self.restore_exec()
        a("s_waitcnt lgkmcnt(0)")
        a("s_barrier")
        self.stamp(8)
        a(f"s_cmp_ge_u32 s{S_WAVE}, 8")
        a("s_cbranch_scc1 L_end")
        self.proj(8, LDS_O, O_STRIDE, S_WAVE, "a", preloaded=True)
        a(f"s_mul_i32 s{S_T0}, s{S_HKV}, 5")
        a(f"s_add_u32 s{S_T0}, s{S_T0}, s{S_B}")
        a(f"s_lshl_b32 s{S_T0}, s{S_T0}, 12")
        a(f"s_lshl_b32 s{S_T1}, s{S_WAVE}, 9")
        a(f"s_add_u32 s{S_T0}, s{S_T0}, s{S_T1}")
        a(f"s_add_u32 s{S_T0}, s{S_T0}, {WS_P2}")
        self.publish4(32)
        a.label("L_end")
        self.stamp(9)
        self.stamp_flush()
        a.label("L_exit")
        a("s_endpgm")

    def build(self):
        self.prologue()
        self.stream()
        self.aux()
        self.tail()
        body = self.a.finish()
        hdr = open("cdna_kernels/" + NAME + ".s.ref").read().split("; Override launch geometry")[0]
        out = hdr
        out += "; Override launch geometry by editing the next line (default: block=256,\n"
        out += f"; @launch grid=(256,1,1) block=(1024,1,1) lds={LDS_TOTAL}\n"
        out += '.amdgcn_target "amdgcn-amd-amdhsa--gfx950"\n.text\n'
        out += f".globl {NAME}_kernel\n.p2align 8\n.type {NAME}_kernel,@function\n{NAME}_kernel:\n"
        out += body
        out += '.section .rodata,"a"\n.p2align 6\n'
        out += f".amdhsa_kernel {NAME}_kernel\n"
        out += "  .amdhsa_next_free_vgpr 128\n  .amdhsa_next_free_sgpr 100\n  .amdhsa_accum_offset 128\n"
        out += "  .amdhsa_group_segment_fixed_size 0\n  .amdhsa_kernarg_size 96\n  .amdhsa_user_sgpr_count 2\n"
        out += "  .amdhsa_user_sgpr_kernarg_segment_ptr 1\n  .amdhsa_system_sgpr_workgroup_id_x 1\n.end_amdhsa_kernel\n"
        return out

if __name__ == "__main__":
    dbg = "--debug" in sys.argv
    outp = [x for x in sys.argv[1:] if not x.startswith("--")]
    kw = {}
    for x in sys.argv[1:]:
        if x.startswith("--") and "=" in x:
            k_, v_ = x[2:].split("="); kw[k_] = int(v_)
    g = Gen(debug=dbg, stamps="--stamps" in sys.argv, **kw)
    s = g.build()
    path = outp[0] if outp else "cdna_kernels/" + NAME + ".s"
    open(path, "w").write(s)
    print("wrote", path, "lines", s.count("\n"), "nops inserted", g.a.ninserted)
```

```python
import sys
from dsl import Asm, vr, sr

NAME = "parallel_sum__gqa_block_cached__swiglu_ffn__decode"
LOG2E = 0x3fb8aa3b
SCALE = 0x3db504f3

XN_STRIDE = 1184
LDS_XN = 0
LDS_XB = LDS_XN + 8 * XN_STRIDE
LDS_QPART = LDS_XB + 1152
LDS_Q = LDS_QPART + 12 * 512
LDS_SP = LDS_Q + 512
SP_STRIDE = 1040
LDS_O = LDS_SP + 8 * SP_STRIDE
O_STRIDE = 544
LDS_CNT = LDS_O + 8 * O_STRIDE
LDS_H = LDS_CNT + 64
H_STRIDE = 608
LDS_FP = LDS_H + 8 * H_STRIDE
LDS_W = LDS_FP
LDS_TOTAL = LDS_W + 9 * 8192

REC_STRIDE = 2048
WS_REC = 0
WS_P2 = 256 * REC_STRIDE
WS_F2 = WS_P2 + 16 * 5 * 4096
WS_H = WS_F2 + 16 * 5 * 4096
WS_GEN = WS_H + 8 * 9216
WS_QP = WS_GEN + 4096
WS_DBG = WS_QP + 16 * 3 * 16384
WS_STAMP = WS_DBG + (512 << 10)
WS_SIZE = WS_DBG + (1 << 20)

S_WAVE = 3
S_X, S_K, S_V, S_WQ, S_WO, S_BX, S_WG, S_WU = 4, 6, 8, 10, 12, 14, 16, 18
S_WD, S_OUT, S_DBG, S_WS = 20, 22, 24, 26
S_HKV, S_B, S_SPLIT, S_J = 28, 29, 30, 31
SRD_K, SRD_V, SRD_W, SRD_WS = 32, 36, 40, 44
S_SEL_LO, S_SEL_HI = 48, 49
S_OFF, S_OFF2, S_CNT = 50, 51, 52
S_STRIDE, S_UOFF, S_NT, S_FIRST, S_T0 = 53, 54, 55, 56, 57
S_HW, S_ROLE, S_RIDX, S_T1, S_T2, S_T3 = 58, 59, 60, 61, 62, 63
S_LOG2E, S_SCALE, S_MASKHI, S_SENTM1 = 64, 65, 66, 67
S_EX = 68
SRD_W2 = 72
SRD_X = 76
S_SPIN = 80
S_R = 81
S_CB = 82
S_NXT = 83
S_TA, S_TB = 70, 71
S_TS = 84
S_ST0 = 86
ROLE_NONE, ROLE_A, ROLE_B, ROLE_C = 0, 1, 2, 3

class Gen:
    def __init__(self, debug=False, stamps=False, NS=8, KT=32, LA=1, comp=1, map4=1, earlyV=1, earlyK=1, qsleep=8, kvtouch=1, pace=4, kpol=1, vpol=1, noq=0, nowt=0, hsleep=1, only=0, stop=0, qfix=0, qsc=1, qst=1):
        self.qst = qst
        self.qfix = qfix; self.qfl = 'sc1' if qsc else ''
        self.stop = stop
        self.only = only
        self.hsleep = hsleep
        self.nowt = nowt
        self.noq = noq
        POL = {0: '', 1: 'nt', 2: 'sc1', 3: 'sc0 sc1', 4: 'sc1 nt', 5: 'sc0'}
        self.kfl = POL[kpol]; self.vfl = POL[vpol]
        self.pace = pace
        self.kvtouch = kvtouch
        self.earlyK = earlyK
        self.qsleep = qsleep
        self.earlyV = earlyV
        self.map4 = map4
        self.a = Asm()
        self.debug = debug; self.stamps = stamps
        self.NS = NS; self.KT = KT; self.LA = LA; self.comp = comp

    def srd(self, dst, base, size, off_sgpr=None):
        a = self.a
        if off_sgpr is not None:
            a(f"s_add_u32 s{dst}, s{base}, s{off_sgpr}")
            a(f"s_addc_u32 s{dst+1}, s{base+1}, 0")
        else:
            a(f"s_mov_b32 s{dst}, s{base}")
            a(f"s_mov_b32 s{dst+1}, s{base+1}")
        a(f"s_mov_b32 s{dst+2}, {size}")
        a(f"s_mov_b32 s{dst+3}, 0x20000")

    def stamp(self, k):
        if not self.stamps: return
        a = self.a
        a(f"s_memrealtime {sr(S_TS,2)}")
        a("s_waitcnt lgkmcnt(0)")
        a(f"s_mov_b32 s{S_ST0+k}, s{S_TS}")

    def stamp_flush(self):
        if not self.stamps: return
        a = self.a
        a("s_mov_b64 exec, -1")
        a("v_mbcnt_lo_u32_b32 v0, -1, 0")
        a("v_mbcnt_hi_u32_b32 v0, -1, v0")
        a("v_mov_b32 v1, 0")
        for k in range(12):
            a(f"v_writelane_b32 v1, s{S_ST0+k}, {k}")
        a(f"s_lshl_b32 s{S_T0}, s2, 4")
        a(f"s_add_u32 s{S_T0}, s{S_T0}, s{S_WAVE}")
        a(f"s_lshl_b32 s{S_T0}, s{S_T0}, 6")
        a(f"s_add_u32 s{S_T0}, s{S_T0}, {WS_STAMP}")
        a("v_lshlrev_b32 v2, 2, v0")
        a("v_cmp_gt_u32 vcc, 16, v0")
        a(f"s_and_saveexec_b64 {sr(S_EX,2)}, vcc")
        a(f"buffer_store_dword v1, v2, {sr(SRD_WS,4)}, s{S_T0} offen")

    def wave_sum(self, x, t):
        a = self.a
        for pat in ("quad_perm:[1,0,3,2]", "quad_perm:[2,3,0,1]", "row_half_mirror", "row_mirror"):
            a(f"v_add_f32_dpp v{x}, v{x}, v{x} {pat} row_mask:0xf bank_mask:0xf")
        a(f"v_mov_b32 v{t}, v{x}")
        a(f"v_permlane16_swap_b32 v{x}, v{t}")
        a(f"v_add_f32 v{x}, v{x}, v{t}")
        a(f"v_mov_b32 v{t}, v{x}")
        a(f"v_permlane32_swap_b32 v{x}, v{t}")
        a(f"v_add_f32 v{x}, v{x}, v{t}")

    def rne(self, x):
        a = self.a
        a(f"v_cvt_pk_bf16_f32 v{x}, v{x}, v{x}")
        a(f"v_and_b32 v{x}, 0xffff0000, v{x}")

    def lane_mask_lt(self, n, lane="v0"):
        a = self.a
        a(f"v_cmp_gt_u32 vcc, {n}, {lane}")
        a(f"s_and_saveexec_b64 {sr(S_EX,2)}, vcc")
    def restore_exec(self):
        self.a(f"s_mov_b64 exec, {sr(S_EX,2)}")

    def spin(self, lab, sleep, bound):
        a = self.a
        a(f"s_sleep {sleep}")
        a(f"s_add_u32 s{S_SPIN}, s{S_SPIN}, 1")
        a(f"s_cmp_lt_u32 s{S_SPIN}, {bound}")
        a(f"s_cbranch_scc1 {lab}")

    def layernorm(self, R, X, T, vL, lds_imm, s_row=None):
        a = self.a
        t0, t1, t2, t3, t4, t5 = range(T, T + 6)
        for k in range(5):
            a(f"v_lshlrev_b32 v{X+2*k}, 16, v{R+k}")
            a(f"v_and_b32 v{X+2*k+1}, s{S_MASKHI}, v{R+k}")
        a(f"v_add_f32 v{t0}, v{X}, v{X+1}")
        for k in range(2, 10):
            a(f"v_add_f32 v{t0}, v{t0}, v{X+k}")
        self.wave_sum(t0, t1)
        a(f"s_mov_b32 s{S_T1}, 0x44100000")
        a(f"s_mov_b32 s{S_T2}, 0x3ae38e39")
        a(f"v_mul_f32 v{t1}, s{S_T2}, v{t0}")
        a(f"v_fma_f32 v{t2}, -v{t1}, s{S_T1}, v{t0}")
        a(f"v_fma_f32 v{t1}, v{t2}, s{S_T2}, v{t1}")
        a(f"v_cmp_gt_u32 vcc, 32, v{vL}")
        a(f"v_sub_f32 v{t2}, v{X+8}, v{t1}")
        a(f"v_mul_f32 v{t3}, v{t2}, v{t2}")
        a(f"v_sub_f32 v{t2}, v{X+9}, v{t1}")
        a(f"v_fmac_f32 v{t3}, v{t2}, v{t2}")
        a(f"v_cndmask_b32 v{t3}, 0, v{t3}, vcc")
        for k in range(8):
            a(f"v_sub_f32 v{t2}, v{X+k}, v{t1}")
            a(f"v_fmac_f32 v{t3}, v{t2}, v{t2}")
        self.wave_sum(t3, t2)
        a(f"v_mul_f32 v{t2}, s{S_T2}, v{t3}")
        a(f"v_fma_f32 v{t0}, -v{t2}, s{S_T1}, v{t3}")
        a(f"v_fma_f32 v{t2}, v{t0}, s{S_T2}, v{t2}")
        self.rne(t1); self.rne(t2)
        a(f"v_add_f32 v{t2}, 0x3727c5ac, v{t2}")
        self.rne(t2)
        a(f"v_sqrt_f32 v{t3}, v{t2}")
        a(f"v_rcp_f32 v{t0}, v{t3}")
        a(f"v_fma_f32 v{t4}, -v{t3}, v{t3}, v{t2}")
        a(f"v_mul_f32 v{t0}, 0.5, v{t0}")
        a(f"v_fma_f32 v{t3}, v{t4}, v{t0}, v{t3}")
        self.rne(t3)
        a(f"v_rcp_f32 v{t0}, v{t3}")
        for k in range(10):
            a(f"v_sub_f32 v{X+k}, v{X+k}, v{t1}")
        for k in range(5):
            a(f"v_cvt_pk_bf16_f32 v{R+k}, v{X+2*k}, v{X+2*k+1}")
        for k in range(5):
            a(f"v_lshlrev_b32 v{X+2*k}, 16, v{R+k}")
            a(f"v_and_b32 v{X+2*k+1}, s{S_MASKHI}, v{R+k}")
        for k in range(10):
            a(f"v_mul_f32 v{t4}, v{X+k}, v{t0}")
            a(f"v_fma_f32 v{t5}, -v{t4}, v{t3}, v{X+k}")
            a(f"v_fma_f32 v{X+k}, v{t5}, v{t0}, v{t4}")
        for k in range(5):
            a(f"v_cvt_pk_bf16_f32 v{R+k}, v{X+2*k}, v{X+2*k+1}")
        a(f"v_lshlrev_b32 v{t4}, 4, v{vL}")
        a(f"v_lshlrev_b32 v{t5}, 2, v{vL}")
        if s_row is not None:
            a(f"v_add_u32 v{t4}, s{s_row}, v{t4}")
            a(f"v_add_u32 v{t5}, s{s_row}, v{t5}")
        a(f"ds_write_b128 v{t4}, {vr(R,4)} offset:{lds_imm}")
        a(f"s_and_saveexec_b64 {sr(S_EX,2)}, vcc")
        a(f"ds_write_b32 v{t5}, v{R+4} offset:{lds_imm+1024}")
        self.restore_exec()

    def xload(self, R, vL, tmp, s_rowbytes):
        a = self.a
        self.srd(SRD_X, S_X, 1152, off_sgpr=s_rowbytes)
        a(f"v_lshlrev_b32 v{tmp}, 4, v{vL}")
        a(f"buffer_load_dwordx4 {vr(R,4)}, v{tmp}, {sr(SRD_X,4)}, 0 offen")
        a(f"v_lshlrev_b32 v{tmp}, 2, v{vL}")
        a(f"buffer_load_dword v{R+4}, v{tmp}, {sr(SRD_X,4)}, 0 offen offset:1024")

    def prologue(self):
        a = self.a
        a("s_cmp_ge_u32 s2, 256")
        a("s_cbranch_scc1 L_exit")
        a("s_load_dwordx16 s[4:19], s[0:1], 0")
        a("s_load_dwordx8 s[20:27], s[0:1], 64")
        a("v_lshrrev_b32 v1, 6, v0")
        a("v_and_b32 v0, 63, v0")
        a(f"v_readfirstlane_b32 s{S_WAVE}, v1")
        for k in range(2, 8): a(f"v_mov_b32 v{k}, 0")
        if self.map4:
            a(f"s_and_b32 s{S_HKV}, s2, 3")
            a(f"s_lshl_b32 s{S_HKV}, s{S_HKV}, 2")
            a(f"s_bfe_u32 s{S_T1}, s2, 0x20003")
            a(f"s_add_u32 s{S_HKV}, s{S_HKV}, s{S_T1}")
            a(f"s_lshr_b32 s{S_B}, s2, 5")
            a(f"s_bfe_u32 s{S_SPLIT}, s2, 0x10002")
        else:
            a(f"s_and_b32 s{S_HKV}, s2, 7")
            a(f"s_lshr_b32 s{S_T0}, s2, 3")
            a(f"s_and_b32 s{S_T1}, s{S_T0}, 1")
            a(f"s_lshl_b32 s{S_HKV}, s{S_HKV}, 1")
            a(f"s_add_u32 s{S_HKV}, s{S_HKV}, s{S_T1}")
            a(f"s_lshr_b32 s{S_T0}, s{S_T0}, 1")
            a(f"s_and_b32 s{S_B}, s{S_T0}, 7")
            a(f"s_lshr_b32 s{S_SPLIT}, s{S_T0}, 3")
        a(f"s_lshl_b32 s{S_J}, s{S_B}, 1")
        a(f"s_add_u32 s{S_J}, s{S_J}, s{S_SPLIT}")
        a(f"s_mov_b32 s{S_SEL_LO}, 0x05040100")
        a(f"s_mov_b32 s{S_SEL_HI}, 0x07060302")
        a(f"s_mov_b32 s{S_LOG2E}, {LOG2E:#x}")
        a(f"s_mov_b32 s{S_SCALE}, {SCALE:#x}")
        a(f"s_mov_b32 s{S_MASKHI}, 0xffff0000")
        a(f"s_mov_b32 s{S_SENTM1}, 0xfffffffe")
        a(f"s_mov_b32 s{S_R}, -1")
        if self.stamps:
            for k in range(12): a(f"s_mov_b32 s{S_ST0+k}, 0")
        a("s_waitcnt lgkmcnt(0)")
        self.srd(SRD_WS, S_WS, WS_SIZE)
        a(f"s_add_u32 s{S_T0}, s{S_WS}, {WS_GEN}")
        a(f"s_addc_u32 s{S_T1}, s{S_WS+1}, 0")
        a(f"s_mov_b32 s{S_T2}, s{S_T0}")
        a(f"s_mov_b32 s{S_T3}, s{S_T1}")
        a(f"s_load_dword s{S_TA}, {sr(S_T2,2)}, 0")
        self.stamp(0)
        a(f"s_cmp_ge_u32 s{S_WAVE}, 8")
        a("s_cbranch_scc1 L_aux")

    def touch(self, base, size, n, dst):
        a = self.a
        self.srd(SRD_W, base, size)
        a("v_lshlrev_b32 v4, 20, v0")
        self.lane_mask_lt(n)
        a(f"buffer_load_dword v{dst}, v4, {sr(SRD_W,4)}, 0 offen")
        self.restore_exec()

    def stream_setup(self):
        a = self.a
        KT = self.KT; TB = KT * 256; NTP = 8192 // KT
        half = NTP // 2
        u = 32 // KT if KT <= 32 else 1
        dC = 3 * (32 // KT) * self.comp
        dA = -2 * (32 // KT) * self.comp
        dB = 2 * (32 // KT) * self.comp
        a(f"s_mov_b32 s{S_T1}, {half}")
        a(f"s_cmp_lt_u32 s{S_B}, 4")
        a(f"s_cselect_b32 s{S_T1}, {half - dC}, s{S_T1}")
        a(f"s_cmp_eq_u32 s{S_B}, 4")
        a("s_cbranch_scc0 L_sp1")
        a(f"s_cmp_lt_u32 s{S_HKV}, 8")
        a(f"s_mov_b32 s{S_T2}, {half - dA}")
        a(f"s_cselect_b32 s{S_T1}, {half - dC}, s{S_T2}")
        a.label("L_sp1")
        a(f"s_cmp_eq_u32 s{S_B}, 7")
        a(f"s_cselect_b32 s{S_T1}, {half - dB}, s{S_T1}")
        a(f"s_sub_u32 s{S_T2}, {NTP}, s{S_T1}")
        a(f"s_cmp_eq_u32 s{S_SPLIT}, 0")
        a(f"s_cselect_b32 s{S_NT}, s{S_T1}, s{S_T2}")
        a(f"s_cselect_b32 s{S_T1}, 0, s{S_T1}")
        a(f"s_lshl_b32 s{S_T0}, s{S_B}, 4")
        a(f"s_add_u32 s{S_T0}, s{S_T0}, s{S_HKV}")
        a(f"s_lshl_b32 s{S_T0}, s{S_T0}, 21")
        a(f"s_mul_i32 s{S_T1}, s{S_T1}, {TB}")
        a(f"s_add_u32 s{S_T0}, s{S_T0}, s{S_T1}")
        a(f"s_mul_i32 s{S_T2}, s{S_NT}, {TB}")
        self.srd(SRD_K, S_K, f"s{S_T2}", off_sgpr=S_T0)
        self.srd(SRD_V, S_V, f"s{S_T2}", off_sgpr=S_T0)
        a("v_and_b32 v4, 15, v0")
        a("v_lshrrev_b32 v5, 4, v0")
        a("v_lshlrev_b32 v6, 10, v5")
        a("v_lshl_add_u32 v1, v4, 4, v6")
        a("v_lshlrev_b32 v6, 4, v5")
        a("v_and_b32 v7, 1, v0")
        a("v_lshl_add_u32 v7, v7, 8, v6")
        a("v_lshl_add_u32 v0, v4, 8, v6")

    def issueK(self, o1=S_OFF, o2=S_OFF2):
        for u in range(self.KT // 16):
            for s_ in range(4):
                r = 64 + (u * 4 + s_) * 4
                self.a(f"buffer_load_dwordx4 {vr(r,4)}, v0, {sr(SRD_K,4)}, s{o1 if u == 0 else o2} offen offset:{s_*64} {self.kfl}")
    def issueV(self, o1=S_OFF, o2=S_OFF2):
        for u in range(self.KT // 16):
            for r_ in range(4):
                r = 96 + (u * 4 + r_) * 4
                self.a(f"buffer_load_dwordx4 {vr(r,4)}, v1, {sr(SRD_V,4)}, s{o1 if u == 0 else o2} offen offset:{r_*256} {self.vfl}")

    def stream(self):
        a = self.a
        NS, KT, LA = self.NS, self.KT, self.LA
        NU = KT // 16; NL = 4 * NU; TB = KT * 256
        VK, VV, M, L, P, S, Q, O, KB, VB = 0, 1, 2, 3, 4, 8, 16, 32, 64, 96
        a(f"s_cmp_ge_u32 s{S_WAVE}, {NS}")
        a("s_cbranch_scc1 L_idle")
        tl = {1: [(S_WS, WS_SIZE, 4), (S_WO, 4096*1152, 5), (S_OUT, 8*1152, 1)],
              2: [(S_WG, 576*9216, 6), (S_WU, 576*9216, 6), (S_DBG, 256, 1)],
              3: [(S_WD, 4608*1152, 6)]}
        for w in (1, 2, 3):
            lab = f"L_s_t{w}"
            a(f"s_cmp_lg_u32 s{S_WAVE}, {w}")
            a(f"s_cbranch_scc1 {lab}")
            for k, t in enumerate(tl[w]):
                self.touch(*t, 8 + k)
            a.label(lab)
        self.stream_setup()
        if self.kvtouch:
            a(f"s_cmp_lg_u32 s{S_WAVE}, 0")
            a("s_cbranch_scc1 L_s_nkt")
            a("v_mbcnt_lo_u32_b32 v12, -1, 0")
            a("v_mbcnt_hi_u32_b32 v12, -1, v12")
            a("v_lshlrev_b32 v12, 18, v12")
            a("s_mov_b64 exec, 0x1f")
            a(f"buffer_load_dword v13, v12, {sr(SRD_K,4)}, 0 offen nt")
            a(f"buffer_load_dword v14, v12, {sr(SRD_V,4)}, 0 offen nt")
            a("s_mov_b64 exec, -1")
            a.label("L_s_nkt")
        a(f"s_mul_i32 s{S_OFF}, s{S_WAVE}, {TB}")
        a(f"s_add_u32 s{S_OFF2}, s{S_OFF}, 4096")
        seq = []
        for u in range(NU):
            for s_ in range(4):
                seq.append(f"buffer_load_dwordx4 {vr(KB+(u*4+s_)*4,4)}, v0, {sr(SRD_K,4)}, s{S_OFF if u == 0 else S_OFF2} offen offset:{s_*64} {self.kfl}")
        for u in range(NU):
            for r_ in range(4):
                seq.append(f"buffer_load_dwordx4 {vr(VB+(u*4+r_)*4,4)}, v1, {sr(SRD_V,4)}, s{S_OFF if u == 0 else S_OFF2} offen offset:{r_*256} {self.vfl}")
        PS = self.pace
        for k0 in range(0, len(seq), PS):
            if k0 > 0: a("s_waitcnt vmcnt(0)")
            for ins in seq[k0:k0+PS]: a(ins)
            if k0 == 0:
                a("s_barrier")
                for k in range(32):
                    a(f"v_mov_b32 v{O+k}, 0")
                a(f"v_mov_b32 v{M}, 0xff800000")
                a(f"v_mov_b32 v{L}, 0")
        self.stamp(4)
        if not self.noq: a("s_barrier")
        self.stamp(1)
        for s_ in range(4):
            a(f"ds_read_b128 {vr(Q+4*s_,4)}, v7 offset:{LDS_Q + s_*64}")
        a(f"s_mov_b32 s{S_CNT}, s{S_WAVE}")
        a(f"s_mov_b32 s{S_FIRST}, 0")
        a(f"s_mov_b32 s{S_STRIDE}, 0")
        a(f"v_mov_b32 v{P}, {LDS_CNT + 32}")
        a(f"v_mov_b32 v{P+1}, 1")
        a("s_mov_b64 exec, 1")
        a(f"ds_add_rtn_u32 v{P+2}, v{P}, v{P+1}")
        a("s_mov_b64 exec, -1")
        a("s_waitcnt lgkmcnt(0)")
        a(f"v_readfirstlane_b32 s{S_NXT}, v{P+2}")
        a.label("L_sloop")
        a(f"s_mul_i32 s{S_OFF}, s{S_NXT}, {TB}")
        a(f"s_add_u32 s{S_OFF2}, s{S_OFF}, 4096")
        if LA == 2:
            a(f"s_waitcnt vmcnt({NL})")
        else:
            a("s_waitcnt vmcnt(0)")
            a(f"s_cmp_eq_u32 s{S_FIRST}, 0")
            a(f"s_mov_b32 s{S_FIRST}, 1")
            a("s_cbranch_scc1 L_skipV")
            a(f"s_mul_i32 s{S_T2}, s{S_CNT}, {TB}")
            a(f"s_add_u32 s{S_T3}, s{S_T2}, 4096")
            self.issueV(S_T2, S_T3)
            a.label("L_skipV")
        for s_ in range(4):
            for u in range(NU):
                c = "0" if s_ == 0 else vr(S + 4 * u, 4)
                a(f"v_mfma_f32_16x16x32_bf16 {vr(S+4*u,4)}, {vr(KB+(u*4+s_)*4,4)}, {vr(Q+4*s_,4)}, {c}")
        if LA == 2:
            self.issueK()
        NP = 2 * NU; NSV = 4 * NU
        for p in range(NP):
            a(f"v_cvt_pk_bf16_f32 v{P+p}, v{S+2*p}, v{S+2*p+1}")
        for p in range(NP):
            a(f"v_lshlrev_b32 v{S+2*p}, 16, v{P+p}")
            a(f"v_and_b32 v{S+2*p+1}, s{S_MASKHI}, v{P+p}")
        for k in range(NSV):
            a(f"v_mul_f32 v{S+k}, s{S_SCALE}, v{S+k}")
        for p in range(NP):
            a(f"v_cvt_pk_bf16_f32 v{P+p}, v{S+2*p}, v{S+2*p+1}")
        for p in range(NP):
            a(f"v_lshlrev_b32 v{S+2*p}, 16, v{P+p}")
            a(f"v_and_b32 v{S+2*p+1}, s{S_MASKHI}, v{P+p}")
        if NU == 2:
            a(f"v_max3_f32 v{P}, v{S}, v{S+1}, v{S+2}")
            a(f"v_max3_f32 v{P+1}, v{S+3}, v{S+4}, v{S+5}")
            a(f"v_max3_f32 v{P}, v{P}, v{S+6}, v{S+7}")
            a(f"v_max_f32 v{P}, v{P}, v{P+1}")
        else:
            a(f"v_max3_f32 v{P}, v{S}, v{S+1}, v{S+2}")
            a(f"v_max_f32 v{P}, v{P}, v{S+3}")
        a(f"v_cmp_gt_f32 vcc, v{P}, v{M}")
        a("s_cbranch_vccz L_nores")
        a(f"v_mov_b32 v{P+1}, v{P}")
        a(f"v_permlane16_swap_b32 v{P}, v{P+1}")
        a(f"v_max_f32 v{P}, v{P}, v{P+1}")
        a(f"v_mov_b32 v{P+1}, v{P}")
        a(f"v_permlane32_swap_b32 v{P}, v{P+1}")
        a(f"v_max3_f32 v{P}, v{P}, v{P+1}, v{M}")
        a(f"v_sub_f32 v{P+2}, v{M}, v{P}")
        a(f"v_mul_f32 v{P+2}, s{S_LOG2E}, v{P+2}")
        a(f"v_exp_f32 v{P+2}, v{P+2}")
        a(f"v_mov_b32 v{M}, v{P}")
        a(f"v_mov_b32 v{P+3}, v{P+2}")
        a(f"v_mul_f32 v{L}, v{L}, v{P+2}")
        for k in range(16):
            a(f"v_pk_mul_f32 {vr(O+2*k,2)}, {vr(O+2*k,2)}, {vr(P+2,2)}")
        a.label("L_nores")
        a(f"v_mul_f32 v{P}, s{S_LOG2E}, v{M}")
        for k in range(NSV):
            a(f"v_fma_f32 v{S+k}, v{S+k}, s{S_LOG2E}, -v{P}")
        for k in range(NSV):
            a(f"v_exp_f32 v{S+k}, v{S+k}")
        if NU == 2:
            a(f"v_add_f32 v{P+1}, v{S}, v{S+1}")
            a(f"v_add_f32 v{P+2}, v{S+2}, v{S+3}")
            a(f"v_add_f32 v{P+3}, v{S+4}, v{S+5}")
            a(f"v_add_f32 v{P}, v{S+6}, v{S+7}")
            a(f"v_add_f32 v{P+1}, v{P+1}, v{P+2}")
            a(f"v_add_f32 v{P+3}, v{P+3}, v{P}")
            a(f"v_add_f32 v{L}, v{L}, v{P+1}")
            a(f"v_add_f32 v{L}, v{L}, v{P+3}")
        else:
            a(f"v_add_f32 v{P+1}, v{S}, v{S+1}")
            a(f"v_add_f32 v{P+2}, v{S+2}, v{S+3}")
            a(f"v_add_f32 v{L}, v{L}, v{P+1}")
            a(f"v_add_f32 v{L}, v{L}, v{P+2}")
        for p in range(NP):
            a(f"v_cvt_pk_bf16_f32 v{P+p}, v{S+2*p}, v{S+2*p+1}")
        if LA == 2:
            a(f"s_waitcnt vmcnt({NL})")
        else:
            a("s_waitcnt vmcnt(0)")
            self.issueK()
        npp = 4 if NU == 2 else 2
        def perms(c, e):
            for p in range(npp):
                a(f"v_perm_b32 v{S+4*e+p}, v{VB+(2*p+1)*4+c}, v{VB+(2*p)*4+c}, s{S_SEL_LO if e == 0 else S_SEL_HI}")
        def pv(c, e):
            j = 2 * c + e
            if NU == 2:
                a(f"v_mfma_f32_16x16x32_bf16 {vr(O+4*j,4)}, {vr(S+4*e,4)}, {vr(P,4)}, {vr(O+4*j,4)}")
            else:
                a(f"v_mfma_f32_16x16x16_bf16 {vr(O+4*j,4)}, {vr(S+4*e,2)}, {vr(P,2)}, {vr(O+4*j,4)}")
        perms(0, 0); perms(0, 1)
        for c in range(4):
            pv(c, 0)
            if c < 3: perms(c + 1, 0)
            pv(c, 1)
            if c < 3: perms(c + 1, 1)
        a(f"v_mov_b32 v{S}, {LDS_CNT + 32}")
        a(f"v_mov_b32 v{S+1}, 1")
        a("s_mov_b64 exec, 1")
        a(f"ds_add_rtn_u32 v{S+2}, v{S}, v{S+1}")
        a("s_mov_b64 exec, -1")
        if LA == 2:
            self.issueV()
        a(f"s_mov_b32 s{S_CNT}, s{S_NXT}")
        a("s_waitcnt lgkmcnt(0)")
        a(f"v_readfirstlane_b32 s{S_NXT}, v{S+2}")
        if self.stamps:
            a(f"s_add_u32 s{S_STRIDE}, s{S_STRIDE}, 1")
            for slot, it in ((6, 1), (7, 2), (8, 4), (10, 8), (11, 16)):
                lab = a.newlabel("L_its")
                a(f"s_cmp_lg_u32 s{S_STRIDE}, {it}")
                a(f"s_cbranch_scc1 {lab}")
                self.stamp(slot)
                a.label(lab)
        a(f"s_cmp_lt_u32 s{S_CNT}, s{S_NT}")
        a("s_cbranch_scc1 L_sloop")
        self.stamp(2)
        if self.only or self.stop in (1, 2, 11, 12, 13): a("s_branch L_exit")
        a(f"v_mov_b32 v{P}, v{L}")
        a(f"v_permlane16_swap_b32 v{L}, v{P}")
        a(f"v_add_f32 v{L}, v{L}, v{P}")
        a(f"v_mov_b32 v{P}, v{L}")
        a(f"v_permlane32_swap_b32 v{L}, v{P}")
        a(f"v_add_f32 v{L}, v{L}, v{P}")
        a("v_mbcnt_lo_u32_b32 v8, -1, 0")
        a("v_mbcnt_hi_u32_b32 v8, -1, v8")
        a("v_and_b32 v9, 15, v8")
        a("v_lshrrev_b32 v10, 4, v8")
        a(f"s_mul_i32 s{S_T0}, s{S_WAVE}, {SP_STRIDE}")
        a(f"s_add_u32 s{S_T0}, s{S_T0}, {LDS_SP}")
        a("v_lshlrev_b32 v11, 9, v9")
        a("v_lshl_add_u32 v11, v10, 4, v11")
        a(f"v_add_u32 v11, s{S_T0}, v11")
        a("v_cmp_gt_u32 vcc, 2, v9")
        a(f"s_and_saveexec_b64 {sr(S_EX,2)}, vcc")
        for j in range(8):
            a(f"ds_write_b128 v11, {vr(O+4*j,4)} offset:{j*64}")
        a("v_cmp_gt_u32 vcc, 2, v8")
        a("s_and_b64 exec, exec, vcc")
        a("v_lshlrev_b32 v12, 3, v9")
        a(f"v_add_u32 v12, s{S_T0}, v12")
        a(f"ds_write_b64 v12, {vr(M,2)} offset:1024")
        self.restore_exec()
        a("s_waitcnt vmcnt(0) lgkmcnt(0)")
        a("s_branch L_B4")
        a.label("L_idle")
        if self.only:
            a("s_barrier")
            a("s_branch L_exit")
        for _ in range(2 - self.noq): a("s_barrier")
        if self.stop in (1, 2, 11, 12, 13): a("s_branch L_exit")
        a("s_branch L_B4")

    def perm_block(self, buf, c, e, T):
        for p in range(4):
            self.a(f"v_perm_b32 v{T+p}, v{buf+(2*p+1)*4+c}, v{buf+(2*p)*4+c}, s{S_SEL_LO if e == 0 else S_SEL_HI}")

    def aux(self):
        a = self.a
        a.label("L_aux")
        if self.only:
            a("v_mov_b32 v8, 0")
            a("v_cmp_eq_u32 vcc, 8, v0")
            a(f"v_mov_b32 v9, {self.NS}")
            a("v_cndmask_b32 v8, v8, v9, vcc")
            a("v_lshlrev_b32 v9, 2, v0")
            self.lane_mask_lt(16)
            a(f"ds_write_b32 v9, v8 offset:{LDS_CNT}")
            self.restore_exec()
            a("s_waitcnt lgkmcnt(0)")
            a("s_barrier")
            a("s_branch L_exit")
        a("s_setprio 3")
        a(f"s_sub_u32 s{S_HW}, s{S_WAVE}, 8")
        a(f"s_mul_i32 s{S_T0}, s{S_HW}, 1152")
        self.xload(16, 0, 4, S_T0)
        a(f"s_cmp_lg_u32 s{S_HW}, 0")
        a("s_cbranch_scc1 L_a_nc")
        a("v_mov_b32 v8, 0")
        a("v_cmp_eq_u32 vcc, 8, v0")
        a(f"v_mov_b32 v9, {self.NS}")
        a("v_cndmask_b32 v8, v8, v9, vcc")
        a("v_lshlrev_b32 v9, 2, v0")
        self.lane_mask_lt(16)
        a(f"ds_write_b32 v9, v8 offset:{LDS_CNT}")
        self.restore_exec()
        a("s_waitcnt lgkmcnt(0)")
        a.label("L_a_nc")
        a(f"s_mov_b32 s{S_ROLE}, 0")
        a(f"s_cmp_lt_u32 s{S_J}, 6")
        a("s_cbranch_scc0 L_a_np")
        a(f"s_mov_b32 s{S_ROLE}, 1")
        a(f"s_cmp_lt_u32 s{S_HW}, 6")
        a("s_cbranch_scc0 L_a_np")
        self.srd(SRD_W, S_WQ, 576 * 8192)
        a("v_lshrrev_b32 v3, 4, v0")
        a("v_lshlrev_b32 v3, 16, v3")
        a("v_and_b32 v1, 15, v0")
        a("v_lshl_add_u32 v1, v1, 4, v3")
        a(f"s_lshr_b32 s{S_T1}, s{S_J}, 1")
        a(f"s_mul_i32 s{S_T1}, s{S_T1}, 6")
        a(f"s_add_u32 s{S_T1}, s{S_T1}, s{S_HW}")
        a(f"s_mov_b32 s{S_RIDX}, s{S_T1}")
        a(f"s_lshl_b32 s{S_UOFF}, s{S_T1}, 18")
        a(f"s_and_b32 s{S_T2}, s{S_J}, 1")
        a(f"s_lshl_b32 s{S_T2}, s{S_T2}, 8")
        a(f"s_lshl_b32 s{S_T3}, s{S_HKV}, 9")
        a(f"s_add_u32 s{S_UOFF}, s{S_UOFF}, s{S_T2}")
        a(f"s_add_u32 s{S_UOFF}, s{S_UOFF}, s{S_T3}")
        for t in range(8):
            a(f"buffer_load_dwordx4 {vr(64+4*t,4)}, v1, {sr(SRD_W,4)}, s{S_UOFF} offen nt")
            if t < 7: a(f"s_add_u32 s{S_UOFF}, s{S_UOFF}, 8192")
        a("s_barrier")
        a("s_waitcnt vmcnt(8)")
        a("s_branch L_a_ln")
        a.label("L_a_np")
        a("s_barrier")
        a("s_waitcnt vmcnt(0)")
        a.label("L_a_ln")
        self.stamp(4)
        a(f"s_mul_i32 s{S_T3}, s{S_HW}, {XN_STRIDE}")
        self.layernorm(16, 32, 8, 0, LDS_XN, s_row=S_T3)
        self.stamp(2)
        self.helper_sync(3)
        if self.stop == 12: a("s_branch L_exit")
        a(f"s_xor_b32 s{S_TB}, s{S_TA}, 0x5bd1e995")
        a(f"s_add_u32 s{S_TB}, s{S_TB}, 0x7f4a7c15")
        a(f"s_add_u32 s{S_TA}, s{S_TA}, 0x9e3779b9")
        a(f"s_cmp_eq_u32 s{S_ROLE}, 0")
        a("s_cbranch_scc1 L_a_cons")
        a(f"s_cmp_lt_u32 s{S_HW}, 6")
        a("s_cbranch_scc0 L_a_pr")
        a("v_and_b32 v2, 7, v0")
        a(f"s_movk_i32 s{S_T0}, {XN_STRIDE}")
        a(f"v_mul_lo_u32 v2, v2, s{S_T0}")
        a("v_lshrrev_b32 v3, 4, v0")
        a("v_lshl_add_u32 v2, v3, 4, v2")
        a(f"s_lshl_b32 s{S_T1}, s{S_RIDX}, 6")
        a(f"v_add_u32 v2, s{S_T1}, v2")
        a(f"ds_read_b128 v[16:19], v2 offset:{LDS_XN}")
        a("s_waitcnt vmcnt(0)")
        self.stamp(7)
        self.perm_block(64, 0, 0, 8); self.perm_block(64, 0, 1, 12)
        a("s_waitcnt lgkmcnt(0)")
        for c in range(4):
            for e in range(2):
                j = 2 * c + e
                a(f"v_mfma_f32_16x16x32_bf16 {vr(32+4*j,4)}, {vr(8+4*e,4)}, v[16:19], 0")
                if c < 3: self.perm_block(64, c + 1, e, 8 + 4 * e)
        a("v_and_b32 v2, 15, v0")
        a("v_lshlrev_b32 v3, 9, v2")
        a("v_lshrrev_b32 v4, 4, v0")
        a("v_lshl_add_u32 v3, v4, 4, v3")
        a(f"s_lshl_b32 s{S_T1}, s{S_HW}, 12")
        a(f"s_add_u32 s{S_T1}, s{S_T1}, {LDS_FP}")
        a(f"v_add_u32 v3, s{S_T1}, v3")
        a("v_cmp_gt_u32 vcc, 8, v2")
        a(f"s_and_saveexec_b64 {sr(S_EX,2)}, vcc")
        for j in range(8):
            a(f"ds_write_b128 v3, {vr(32+4*j,4)} offset:{j*64}")
        self.restore_exec()
        a.label("L_a_pr")
        self.helper_sync(4)
        a(f"s_lshl_b32 s{S_T1}, s{S_HW}, 9")
        a(f"s_add_u32 s{S_T1}, s{S_T1}, {LDS_FP}")
        a("v_lshlrev_b32 v3, 3, v0")
        a(f"v_add_u32 v3, s{S_T1}, v3")
        for w in range(6):
            a(f"ds_read_b64 {vr(64+2*w,2)}, v3 offset:{w*4096}")
        a(f"s_lshr_b32 s{S_T0}, s{S_J}, 1")
        a(f"s_mul_i32 s{S_T1}, s{S_HKV}, 3")
        a(f"s_add_u32 s{S_T0}, s{S_T0}, s{S_T1}")
        a(f"s_lshl_b32 s{S_T0}, s{S_T0}, 3")
        a(f"s_add_u32 s{S_T0}, s{S_T0}, s{S_HW}")
        a(f"s_lshl_b32 s{S_T0}, s{S_T0}, 11")
        a(f"s_and_b32 s{S_T1}, s{S_J}, 1")
        a(f"s_lshl_b32 s{S_T1}, s{S_T1}, 10")
        a(f"s_add_u32 s{S_T0}, s{S_T0}, s{S_T1}")
        a(f"s_add_u32 s{S_T0}, s{S_T0}, {WS_QP}")
        a(f"v_mov_b32 v10, s{S_TA}")
        a(f"v_mov_b32 v11, s{S_TB}")
        a("v_lshlrev_b32 v3, 4, v0")
        a("s_waitcnt lgkmcnt(0)")
        for r in range(2):
            a(f"v_add_f32 v{64+r}, v{64+r}, v{66+r}")
            a(f"v_add_f32 v{68+r}, v{68+r}, v{70+r}")
            a(f"v_add_f32 v{72+r}, v{72+r}, v{74+r}")
            a(f"v_add_f32 v{64+r}, v{64+r}, v{68+r}")
            a(f"v_add_f32 v{8+r}, v{64+r}, v{72+r}")
        if self.qst == 1: a(f"buffer_store_dwordx4 v[8:11], v3, {sr(SRD_WS,4)}, s{S_T0} offen sc1")
        if self.qst == 2: a(f"buffer_store_dwordx4 v[8:11], v3, {sr(SRD_WS,4)}, s{S_T0} offen")
        if self.qst == 3: a(f"buffer_store_dwordx4 v[8:11], v3, {sr(SRD_WS,4)}, s{S_T0} offen sc1 nt")
        if self.qst == 4: a(f"buffer_store_dwordx4 v[8:11], v3, {sr(SRD_WS,4)}, s{S_T0} offen sc0 sc1")
        self.stamp(6)
        a.label("L_a_cons")
        a(f"s_sub_u32 s{S_T3}, s{S_HW}, 2")
        a(f"s_cmp_lt_u32 s{S_T3}, 2")
        a("s_cbranch_scc0 L_a_B2")
        if self.stop == 13: a("s_branch L_exit")
        a(f"s_mul_i32 s{S_T1}, s{S_HKV}, {3*16384}")
        a(f"s_lshl_b32 s{S_T2}, s{S_B}, 11")
        a(f"s_add_u32 s{S_T1}, s{S_T1}, s{S_T2}")
        a(f"s_lshl_b32 s{S_T2}, s{S_T3}, 10")
        a(f"s_add_u32 s{S_T1}, s{S_T1}, s{S_T2}")
        a(f"s_add_u32 s{S_T1}, s{S_T1}, {WS_QP}")
        a("v_lshlrev_b32 v3, 4, v0")
        a(f"s_mov_b32 s{S_SPIN}, 0")
        a.label("L_q_poll")
        a(f"s_mov_b32 s{S_T0}, s{S_T1}")
        for p in range(3):
            a(f"buffer_load_dwordx4 {vr(64+4*p,4)}, v3, {sr(SRD_WS,4)}, s{S_T0} offen {self.qfl}")
            if p < 2: a(f"s_add_u32 s{S_T0}, s{S_T0}, 16384")
        a("s_waitcnt vmcnt(0)")
        a(f"v_xor_b32 v4, s{S_TA}, v66")
        a(f"v_xor_b32 v5, s{S_TB}, v67")
        a("v_or_b32 v4, v4, v5")
        for p in range(1, 3):
            a(f"v_xor_b32 v5, s{S_TA}, v{64+4*p+2}")
            a(f"v_xor_b32 v6, s{S_TB}, v{64+4*p+3}")
            a("v_or3_b32 v4, v4, v5, v6")
        a("v_cmp_ne_u32 vcc, 0, v4")
        if self.qfix == 0: a("s_cbranch_vccz L_q_ok")
        self.spin("L_q_poll", self.qsleep, 0x40000 if self.qfix == 0 else self.qfix)
        a.label("L_q_ok")
        self.stamp(8)
        for r in range(2):
            a(f"v_add_f32 v{64+r}, v{64+r}, v{68+r}")
            a(f"v_add_f32 v{64+r}, v{64+r}, v{72+r}")
        a("v_cvt_pk_bf16_f32 v64, v64, v65")
        a("v_lshrrev_b32 v5, 3, v0")
        a("v_and_b32 v6, 7, v0")
        a("v_lshlrev_b32 v4, 5, v6")
        a("v_lshl_add_u32 v4, v5, 1, v4")
        a(f"s_lshl_b32 s{S_T2}, s{S_T3}, 8")
        a(f"v_add_u32 v4, s{S_T2}, v4")
        a(f"ds_write_b16 v4, v64 offset:{LDS_Q}")
        a(f"ds_write_b16_d16_hi v4, v64 offset:{LDS_Q+16}")
        if self.debug:
            a("v_lshlrev_b32 v12, 16, v64")
            a("v_and_b32 v13, 0xffff0000, v64")
            a(f"s_lshl_b32 s{S_T0}, s2, 10")
            a(f"s_add_u32 s{S_T0}, s{S_T0}, {WS_DBG}")
            a("v_lshlrev_b32 v10, 1, v4")
            a(f"buffer_store_dword v12, v10, {sr(SRD_WS,4)}, s{S_T0} offen")
            a(f"buffer_store_dword v13, v10, {sr(SRD_WS,4)}, s{S_T0} offen offset:32")
        a("s_waitcnt lgkmcnt(0)")
        a.label("L_a_B2")
        if not self.noq: a("s_barrier")
        if self.stop in (1, 13): a("s_branch L_exit")
        self.stamp(3)
        self.helper_mid()
        self.stamp(1)
        if self.stop == 2: a("s_branch L_exit")
        a("s_branch L_B4")

    def role_decode(self):
        a = self.a
        a(f"s_mov_b32 s{S_ROLE}, {ROLE_NONE}")
        a(f"s_mov_b32 s{S_RIDX}, 0")
        a(f"s_cmp_lt_u32 s{S_J}, 10")
        a("s_cbranch_scc0 L_rd_hi")
        a(f"s_cmp_eq_u32 s{S_SPLIT}, 0")
        a("s_cbranch_scc1 L_rd_even")
        a(f"s_mov_b32 s{S_ROLE}, {ROLE_A}")
        a(f"s_mov_b32 s{S_RIDX}, s{S_B}")
        a("s_branch L_rd_done")
        a.label("L_rd_even")
        a(f"s_lshl_b32 s{S_T0}, s{S_B}, 4")
        a(f"s_add_u32 s{S_T0}, s{S_T0}, s{S_HKV}")
        a(f"s_cmp_lt_u32 s{S_T0}, 72")
        a("s_cbranch_scc0 L_rd_red2")
        a(f"s_mov_b32 s{S_ROLE}, {ROLE_C}")
        a(f"s_mov_b32 s{S_RIDX}, s{S_T0}")
        a("s_branch L_rd_done")
        a.label("L_rd_red2")
        a(f"s_cmp_lt_u32 s{S_HKV}, 10")
        a("s_cbranch_scc0 L_rd_done")
        a(f"s_add_u32 s{S_R}, s{S_HKV}, 8")
        a("s_branch L_rd_done")
        a.label("L_rd_hi")
        a(f"s_cmp_eq_u32 s{S_J}, 15")
        a("s_cbranch_scc1 L_rd_red")
        a(f"s_mov_b32 s{S_ROLE}, {ROLE_B}")
        a(f"s_sub_u32 s{S_RIDX}, s{S_J}, 10")
        a("s_branch L_rd_done")
        a.label("L_rd_red")
        a(f"s_mov_b32 s{S_R}, s{S_HKV}")
        a.label("L_rd_done")

    def helper_sync(self, idx):
        a = self.a
        lab = a.newlabel("L_hs")
        a("s_waitcnt lgkmcnt(0)")
        a(f"v_mov_b32 v3, {LDS_CNT + 4*idx}")
        a("v_mov_b32 v4, 1")
        a("s_mov_b64 exec, 1")
        a("ds_add_u32 v3, v4")
        a("s_mov_b64 exec, -1")
        a(f"s_mov_b32 s{S_SPIN}, 0")
        a.label(lab)
        a("ds_read_b32 v4, v3")
        a("s_waitcnt lgkmcnt(0)")
        a(f"v_readfirstlane_b32 s{S_T0}, v4")
        a(f"s_cmp_ge_u32 s{S_T0}, 8")
        a(f"s_cbranch_scc1 {lab}_done")
        self.spin(lab, self.hsleep, 0x100000)
        a.label(lab + "_done")

    def wait_tiles(self, thr):
        a = self.a
        lab = a.newlabel("L_wt")
        a(f"s_mov_b32 s{S_SPIN}, 0")
        a(f"v_mov_b32 v3, {LDS_CNT + 32}")
        a.label(lab)
        a("ds_read_b32 v4, v3")
        a("s_waitcnt lgkmcnt(0)")
        a(f"v_readfirstlane_b32 s{S_T0}, v4")
        a(f"s_cmp_ge_u32 s{S_T0}, {thr}")
        a(f"s_cbranch_scc1 {lab}_done")
        self.spin(lab, 32, 0x10000)
        a.label(lab + "_done")

    def poll_counter(self, target):
        a = self.a
        lab = a.newlabel("L_pc")
        a(f"s_mov_b32 s{S_SPIN}, 0")
        a("v_mov_b32 v3, 0")
        a.label(lab)
        a(f"global_load_dword v4, v3, {sr(S_DBG,2)} sc1")
        a("s_waitcnt vmcnt(0)")
        a(f"v_readfirstlane_b32 s{S_T0}, v4")
        a(f"s_cmp_ge_u32 s{S_T0}, {target}")
        a(f"s_cbranch_scc1 {lab}_done")
        self.spin(lab, 32, 0x10000)
        a.label(lab + "_done")

    def helper_mid(self):
        a = self.a
        KT = self.KT; TS = 32 // KT
        self.role_decode()
        a(f"s_cmp_lg_u32 s{S_HW}, 7")
        a("s_cbranch_scc1 L_reset_done")
        for k in range(4, 8): a(f"v_mov_b32 v{k}, -1")
        a("v_lshlrev_b32 v3, 4, v0")
        a(f"s_lshl_b32 s{S_T0}, s{S_HKV}, 4")
        a(f"s_add_u32 s{S_T0}, s{S_T0}, s{S_J}")
        a(f"s_lshl_b32 s{S_T0}, s{S_T0}, 11")
        a(f"buffer_store_dwordx4 v[4:7], v3, {sr(SRD_WS,4)}, s{S_T0} offen sc1")
        a(f"buffer_store_dwordx4 v[4:7], v3, {sr(SRD_WS,4)}, s{S_T0} offen offset:1024 sc1")
        a(f"s_cmp_eq_u32 s{S_ROLE}, {ROLE_NONE}")
        a("s_cbranch_scc1 L_reset_sig")
        a(f"s_cmp_eq_u32 s{S_ROLE}, {ROLE_C}")
        a("s_cbranch_scc1 L_reset_c")
        a(f"s_mul_i32 s{S_T0}, s{S_HKV}, 5")
        a(f"s_add_u32 s{S_T0}, s{S_T0}, s{S_RIDX}")
        a(f"s_lshl_b32 s{S_T0}, s{S_T0}, 12")
        a(f"s_cmp_eq_u32 s{S_ROLE}, {ROLE_A}")
        a(f"s_mov_b32 s{S_T2}, {WS_F2}")
        a(f"s_cselect_b32 s{S_T1}, {WS_P2}, s{S_T2}")
        a(f"s_add_u32 s{S_T0}, s{S_T0}, s{S_T1}")
        for k in range(4):
            a(f"buffer_store_dwordx4 v[4:7], v3, {sr(SRD_WS,4)}, s{S_T0} offen offset:{k*1024} sc1")
        a("s_branch L_reset_sig")
        a.label("L_reset_c")
        self.h_addr()
        a(f"buffer_store_dwordx4 v[4:7], v8, {sr(SRD_WS,4)}, s{S_T0} offen sc1")
        a.label("L_reset_sig")
        a("s_waitcnt vmcnt(0)")
        a("v_mov_b32 v3, 0")
        a("v_mov_b32 v4, 1")
        a("s_mov_b64 exec, 1")
        a(f"global_atomic_add v3, v4, {sr(S_DBG,2)} sc1")
        a("s_mov_b64 exec, -1")
        a.label("L_reset_done")
        self.stamp(11)
        a(f"s_cmp_eq_u32 s{S_ROLE}, {ROLE_C}")
        a("s_cbranch_scc1 L_role_c")
        a(f"s_cmp_eq_u32 s{S_ROLE}, {ROLE_NONE}")
        a("s_cbranch_scc1 L_role_none")
        self.w_prefetch()
        a(f"s_cmp_eq_u32 s{S_ROLE}, {ROLE_B}")
        a("s_cbranch_scc1 L_role_b")
        a(f"s_cmp_lg_u32 s{S_HW}, 0")
        a("s_cbranch_scc1 L_mid_done")
        self.wait_tiles(80 * TS)
        self.poll_counter(256)
        a("s_branch L_mid_done")
        a.label("L_role_b")
        self.role_b()
        a("s_branch L_mid_done")
        a.label("L_role_c")
        self.role_c()
        a("s_branch L_mid_done")
        a.label("L_role_none")
        a(f"s_cmp_lt_i32 s{S_R}, 0")
        a("s_cbranch_scc1 L_mid_done")
        a(f"s_cmp_lg_u32 s{S_HW}, 0")
        a("s_cbranch_scc1 L_mid_done")
        self.reducer_pre()
        a.label("L_mid_done")

    def h_addr(self):
        a = self.a
        a("v_lshrrev_b32 v8, 3, v0")
        a(f"s_movk_i32 s{S_T1}, 9216")
        a(f"v_mul_lo_u32 v8, v8, s{S_T1}")
        a("v_and_b32 v9, 7, v0")
        a("v_lshl_add_u32 v8, v9, 4, v8")
        a(f"s_lshl_b32 s{S_T0}, s{S_RIDX}, 7")
        a(f"s_add_u32 s{S_T0}, s{S_T0}, {WS_H}")

    def w_unit_to_lds(self, kb_sgpr):
        a = self.a
        a(f"s_lshl_b32 s{S_T0}, s{kb_sgpr}, 13")
        a("v_lshlrev_b32 v3, 4, v0")
        a(f"v_add_u32 v3, s{S_T0}, v3")
        a(f"v_add_u32 v3, {LDS_W}, v3")
        for c in range(4):
            for e in range(2):
                j = 2 * c + e
                T = 8 + 4 * (j & 3)
                self.perm_block(64, c, e, T)
                a(f"ds_write_b128 v3, {vr(T,4)} offset:{j*1024}")

    def w_prefetch(self):
        a = self.a
        a(f"s_cmp_eq_u32 s{S_ROLE}, {ROLE_B}")
        a("s_cbranch_scc1 L_wp_b")
        self.srd(SRD_W, S_WO, 0 if (self.nowt & 1) else 4096 * 1152)
        a("v_lshrrev_b32 v3, 4, v0")
        a("v_and_b32 v4, 1, v3")
        a("v_lshlrev_b32 v4, 6, v4")
        a("v_lshrrev_b32 v3, 1, v3")
        a("v_add_u32 v3, v3, v4")
        a(f"s_lshl_b32 s{S_T0}, s{S_HKV}, 8")
        a(f"s_lshr_b32 s{S_T1}, s{S_HW}, 2")
        a(f"s_lshl_b32 s{S_T1}, s{S_T1}, 7")
        a(f"s_add_u32 s{S_T0}, s{S_T0}, s{S_T1}")
        a(f"s_and_b32 s{S_T1}, s{S_HW}, 3")
        a(f"s_lshl_b32 s{S_T1}, s{S_T1}, 1")
        a(f"s_add_u32 s{S_T0}, s{S_T0}, s{S_T1}")
        a(f"s_movk_i32 s{S_STRIDE}, {8*1152}")
        a("s_branch L_wp_go")
        a.label("L_wp_b")
        self.srd(SRD_W, S_WD, 0 if (self.nowt & 1) else 4608 * 1152)
        a("v_lshrrev_b32 v3, 4, v0")
        a("v_lshlrev_b32 v3, 3, v3")
        a(f"s_mul_i32 s{S_T0}, s{S_HKV}, 288")
        a(f"s_lshl_b32 s{S_T1}, s{S_HW}, 5")
        a(f"s_add_u32 s{S_T0}, s{S_T0}, s{S_T1}")
        a(f"s_movk_i32 s{S_STRIDE}, 1152")
        a.label("L_wp_go")
        a(f"s_movk_i32 s{S_T1}, 1152")
        a(f"v_mul_lo_u32 v3, v3, s{S_T1}")
        a("v_and_b32 v1, 15, v0")
        a("v_lshl_add_u32 v1, v1, 4, v3")
        a(f"s_mul_i32 s{S_UOFF}, s{S_T0}, 1152")
        a(f"s_lshl_b32 s{S_T1}, s{S_RIDX}, 8")
        a(f"s_add_u32 s{S_UOFF}, s{S_UOFF}, s{S_T1}")
        a(f"s_mov_b32 s{S_CNT}, s{S_HW}")
        a.label("L_wp_loop")
        a(f"s_mov_b32 s{S_T2}, s{S_UOFF}")
        for t in range(8):
            a(f"buffer_load_dwordx4 {vr(64+4*t,4)}, v1, {sr(SRD_W,4)}, s{S_T2} offen nt")
            if t < 7: a(f"s_add_u32 s{S_T2}, s{S_T2}, s{S_STRIDE}")
        a("s_waitcnt vmcnt(0)")
        self.w_unit_to_lds(S_CNT)
        a(f"s_cmp_eq_u32 s{S_ROLE}, {ROLE_B}")
        a("s_cbranch_scc0 L_wp_done")
        a(f"s_cmp_eq_u32 s{S_CNT}, 0")
        a("s_cbranch_scc0 L_wp_done")
        a(f"s_mov_b32 s{S_CNT}, 8")
        a(f"s_add_u32 s{S_UOFF}, s{S_UOFF}, {256*1152}")
        a("s_branch L_wp_loop")
        a.label("L_wp_done")
        a("s_waitcnt lgkmcnt(0)")

    def proj(self, nkb, a_imm, a_stride, wave_sgpr, tag, preloaded=False):
        a = self.a
        if not preloaded:
            self.proj_preload(nkb, wave_sgpr)
        a("v_and_b32 v2, 7, v0")
        a(f"s_movk_i32 s{S_T0}, {a_stride}")
        a(f"v_mul_lo_u32 v2, v2, s{S_T0}")
        a("v_lshrrev_b32 v3, 4, v0")
        a("v_lshl_add_u32 v2, v3, 4, v2")
        AR = [4 + 4 * k for k in range(7)] + [100, 104]
        for kb in range(nkb):
            a(f"ds_read_b128 {vr(AR[kb],4)}, v2 offset:{a_imm + kb*64}")
        for kb in range(nkb):
            a(f"s_waitcnt lgkmcnt({nkb-1-kb})")
            c = "0" if kb == 0 else "v[32:35]"
            a(f"v_mfma_f32_16x16x32_bf16 v[32:35], {vr(AR[kb],4)}, {vr(64+4*kb,4)}, {c}")

    def proj_preload(self, nkb, wave_sgpr):
        a = self.a
        a(f"s_lshl_b32 s{S_T0}, s{wave_sgpr}, 10")
        a("v_lshlrev_b32 v3, 4, v0")
        a(f"v_add_u32 v3, s{S_T0}, v3")
        a(f"v_add_u32 v3, {LDS_W}, v3")
        for kb in range(nkb):
            if kb < 8:
                a(f"ds_read_b128 {vr(64+4*kb,4)}, v3 offset:{kb*8192}")
            else:
                a("v_add_u32 v2, 0x10000, v3")
                a(f"ds_read_b128 {vr(64+4*kb,4)}, v2 offset:{(kb-8)*8192}")

    def publish4(self, acc):
        a = self.a
        for k in range(4):
            a(f"v_min_u32 v{acc+k}, s{S_SENTM1}, v{acc+k}")
        a("v_and_b32 v3, 15, v0")
        a("v_lshlrev_b32 v3, 5, v3")
        a("v_lshrrev_b32 v2, 4, v0")
        a("v_lshl_add_u32 v3, v2, 4, v3")
        self.lane_mask_lt(32)
        a(f"buffer_store_dwordx4 {vr(acc,4)}, v3, {sr(SRD_WS,4)}, s{S_T0} offen sc1")
        self.restore_exec()

    def role_b(self):
        a = self.a
        TS = 32 // self.KT
        self.wait_tiles(48 * TS)
        self.poll_counter(256)
        a(f"s_mul_i32 s{S_T1}, s{S_HW}, 9216")
        a(f"s_mul_i32 s{S_T2}, s{S_HKV}, 576")
        a(f"s_add_u32 s{S_T1}, s{S_T1}, s{S_T2}")
        a(f"s_add_u32 s{S_T1}, s{S_T1}, {WS_H}")
        a("v_lshlrev_b32 v5, 4, v0")
        self.lane_mask_lt(36)
        a(f"s_mov_b32 s{S_SPIN}, 0")
        a.label("L_b_poll")
        a(f"buffer_load_dwordx4 v[8:11], v5, {sr(SRD_WS,4)}, s{S_T1} offen sc1")
        a("s_waitcnt vmcnt(0)")
        a("v_max3_u32 v6, v8, v9, v10")
        a("v_max_u32 v6, v6, v11")
        a("v_cmp_eq_u32 vcc, -1, v6")
        a("s_cbranch_vccz L_b_ok")
        self.spin("L_b_poll", 64, 0x8000)
        a.label("L_b_ok")
        a(f"s_mul_i32 s{S_T1}, s{S_HW}, {H_STRIDE}")
        a(f"v_add_u32 v5, s{S_T1}, v5")
        a(f"ds_write_b128 v5, v[8:11] offset:{LDS_H}")
        self.restore_exec()
        self.helper_sync(0)
        self.proj(9, LDS_H, H_STRIDE, S_HW, "b")
        a(f"s_mul_i32 s{S_T0}, s{S_HKV}, 5")
        a(f"s_add_u32 s{S_T0}, s{S_T0}, s{S_RIDX}")
        a(f"s_lshl_b32 s{S_T0}, s{S_T0}, 12")
        a(f"s_lshl_b32 s{S_T1}, s{S_HW}, 9")
        a(f"s_add_u32 s{S_T0}, s{S_T0}, s{S_T1}")
        a(f"s_add_u32 s{S_T0}, s{S_T0}, {WS_F2}")
        self.publish4(32)

    def role_c(self):
        a = self.a
        self.srd(SRD_W, S_WG, 0 if (self.nowt & 2) else 576 * 9216)
        self.srd(SRD_W2, S_WU, 0 if (self.nowt & 2) else 576 * 9216)
        a("v_lshrrev_b32 v3, 4, v0")
        a(f"s_mov_b32 s{S_T1}, {8*9216}")
        a(f"v_mul_lo_u32 v3, v3, s{S_T1}")
        a("v_and_b32 v1, 7, v0")
        a("v_lshl_add_u32 v1, v1, 4, v3")
        a(f"s_mul_i32 s{S_UOFF}, s{S_HW}, {32*9216}")
        a(f"s_lshl_b32 s{S_T1}, s{S_RIDX}, 7")
        a(f"s_add_u32 s{S_UOFF}, s{S_UOFF}, s{S_T1}")
        def issue(buf):
            a(f"s_mov_b32 s{S_T2}, s{S_UOFF}")
            a("s_mov_b32 exec_lo, 0x00ff00ff"); a("s_mov_b32 exec_hi, 0x00ff00ff")
            for t in range(8):
                a(f"buffer_load_dwordx4 {vr(buf+4*t,4)}, v1, {sr(SRD_W,4)}, s{S_T2} offen nt")
                a(f"s_add_u32 s{S_T2}, s{S_T2}, 9216")
            a(f"s_mov_b32 s{S_T2}, s{S_UOFF}")
            a("s_mov_b32 exec_lo, 0xff00ff00"); a("s_mov_b32 exec_hi, 0xff00ff00")
            for t in range(8):
                a(f"buffer_load_dwordx4 {vr(buf+4*t,4)}, v1, {sr(SRD_W2,4)}, s{S_T2} offen nt")
                a(f"s_add_u32 s{S_T2}, s{S_T2}, 9216")
            a("s_mov_b64 exec, -1")
            a(f"s_add_u32 s{S_UOFF}, s{S_UOFF}, {8*32*9216}")
        issue(64); issue(96)
        a("v_and_b32 v2, 7, v0")
        a(f"s_movk_i32 s{S_T0}, {XN_STRIDE}")
        a(f"v_mul_lo_u32 v2, v2, s{S_T0}")
        a("v_lshrrev_b32 v3, 4, v0")
        a("v_lshl_add_u32 v2, v3, 4, v2")
        a(f"s_lshl_b32 s{S_T1}, s{S_HW}, 6")
        a(f"v_add_u32 v2, s{S_T1}, v2")
        for k in range(32): a(f"v_mov_b32 v{32+k}, 0")
        def process(buf, u, vm):
            a(f"ds_read_b128 v[16:19], v2 offset:{LDS_XN + u*512}")
            a(f"s_waitcnt vmcnt({vm})")
            self.perm_block(buf, 0, 0, 8); self.perm_block(buf, 0, 1, 12)
            a("s_waitcnt lgkmcnt(0)")
            for c in range(4):
                for e in range(2):
                    j = 2 * c + e
                    a(f"v_mfma_f32_16x16x32_bf16 {vr(32+4*j,4)}, v[16:19], {vr(8+4*e,4)}, {vr(32+4*j,4)}")
                    if c < 3: self.perm_block(buf, c + 1, e, 8 + 4 * e)
        process(64, 0, 16)
        a(f"s_cmp_ge_u32 s{S_HW}, 2")
        a("s_cbranch_scc1 L_c_u1")
        issue(64)
        process(96, 1, 16)
        process(64, 2, 0)
        a("s_branch L_c_ud")
        a.label("L_c_u1")
        process(96, 1, 0)
        a.label("L_c_ud")
        a(f"s_lshl_b32 s{S_T0}, s{S_HW}, 12")
        a("v_and_b32 v3, 15, v0")
        a("v_lshlrev_b32 v3, 8, v3")
        a("v_lshrrev_b32 v4, 4, v0")
        a("v_lshl_add_u32 v3, v4, 4, v3")
        a(f"v_add_u32 v3, s{S_T0}, v3")
        self.lane_mask_lt(32)
        for j in range(8):
            a(f"ds_write_b128 v3, {vr(32+4*j,4)} offset:{LDS_FP + j*32}")
        self.restore_exec()
        self.helper_sync(1)
        a(f"s_lshl_b32 s{S_T0}, s{S_HW}, 6")
        a(f"v_add_u32 v3, s{S_T0}, v0")
        a("v_lshlrev_b32 v4, 2, v3")
        a(f"v_add_u32 v4, {LDS_FP}, v4")
        for k in range(8):
            a(f"ds_read_b32 v{8+k}, v4 offset:{k*4096}")
        for k in range(8):
            a(f"ds_read_b32 v{16+k}, v4 offset:{k*4096 + 2048}")
        a("s_waitcnt lgkmcnt(0)")
        for base in (8, 16):
            for k in range(4):
                a(f"v_add_f32 v{base+k}, v{base+k}, v{base+4+k}")
            a(f"v_add_f32 v{base}, v{base}, v{base+2}")
            a(f"v_add_f32 v{base+1}, v{base+1}, v{base+3}")
            a(f"v_add_f32 v{base}, v{base}, v{base+1}")
            self.rne(base)
        a(f"v_mul_f32 v10, s{S_LOG2E}, v8")
        a("v_exp_f32 v10, -v10")
        a("v_add_f32 v10, 1.0, v10")
        a("v_rcp_f32 v12, v10")
        a("v_mul_f32 v14, v8, v12")
        a("v_fma_f32 v18, -v14, v10, v8")
        a("v_fma_f32 v14, v18, v12, v14")
        self.rne(14)
        a("v_mul_f32 v14, v14, v16")
        a("v_cvt_pk_bf16_f32 v14, v14, v14")
        a("v_lshrrev_b32 v5, 3, v3")
        a("v_and_b32 v6, 7, v3")
        a("v_lshlrev_b32 v6, 7, v6")
        a("v_lshl_add_u32 v6, v5, 1, v6")
        a(f"ds_write_b16 v6, v14 offset:{LDS_H}")
        self.helper_sync(2)
        a(f"s_cmp_lg_u32 s{S_HW}, 0")
        a("s_cbranch_scc1 L_c_done")
        a("v_lshlrev_b32 v3, 4, v0")
        a(f"ds_read_b128 v[4:7], v3 offset:{LDS_H}")
        self.h_addr()
        a("s_waitcnt lgkmcnt(0)")
        for k in range(4, 8):
            a(f"v_min_u32 v{k}, s{S_SENTM1}, v{k}")
        a(f"buffer_store_dwordx4 v[4:7], v8, {sr(SRD_WS,4)}, s{S_T0} offen sc1")
        a.label("L_c_done")

    def reducer_addr(self):
        a = self.a
        a(f"s_lshr_b32 s{S_CB}, s{S_R}, 2")
        a(f"s_and_b32 s{S_T1}, s{S_R}, 3")
        a("v_and_b32 v2, 7, v0")
        a("v_bfe_u32 v3, v0, 3, 2")
        a(f"s_lshl_b32 s{S_T1}, s{S_T1}, 2")
        a(f"v_add_u32 v3, s{S_T1}, v3")
        a("v_lshrrev_b32 v4, 5, v0")
        a("v_lshlrev_b32 v1, 9, v2")
        a("v_lshl_add_u32 v1, v3, 5, v1")
        a("v_lshl_add_u32 v1, v4, 4, v1")
        a(f"s_lshl_b32 s{S_T2}, s{S_CB}, 12")
        a(f"v_add_u32 v1, s{S_T2}, v1")
        a("v_lshl_add_u32 v5, v3, 3, v2")
        a(f"s_lshl_b32 s{S_T2}, s{S_CB}, 7")
        a(f"v_add_u32 v5, s{S_T2}, v5")

    def poll_sum(self, n, base_imm, stride, acc, buf, tag, sleep=2):
        a = self.a
        a(f"s_mov_b32 s{S_SPIN}, 0")
        a.label(f"L_ps_{tag}")
        a(f"s_mov_b32 s{S_T0}, {base_imm}")
        for k in range(n):
            a(f"buffer_load_dwordx4 {vr(buf+4*k,4)}, v1, {sr(SRD_WS,4)}, s{S_T0} offen sc1")
            if k < n - 1:
                a(f"s_add_u32 s{S_T0}, s{S_T0}, {stride}")
        a("s_waitcnt vmcnt(0)")
        a(f"v_max_u32 v6, v{buf}, v{buf+1}")
        k = 2
        while k < 4 * n:
            a(f"v_max3_u32 v6, v6, v{buf+k}, v{buf+k+1}")
            k += 2
        a("v_cmp_eq_u32 vcc, -1, v6")
        a(f"s_cbranch_vccz L_ps_{tag}_done")
        self.spin(f"L_ps_{tag}", sleep, 0x40000)
        a.label(f"L_ps_{tag}_done")
        m = n
        while m > 1:
            for k in range(m // 2):
                for r in range(4):
                    a(f"v_add_f32 v{buf+4*k+r}, v{buf+4*k+r}, v{buf+4*(k+m//2)+r}")
            m //= 2
        for r in range(4):
            a(f"v_mov_b32 v{acc+r}, v{buf+r}")

    def reducer_pre(self):
        a = self.a
        TS = 32 // self.KT
        self.wait_tiles(100 * TS)
        self.poll_counter(256)
        self.reducer_addr()
        self.poll_sum(16, WS_F2, 20480, 8, 64, "f2", sleep=32)
        for r in range(4): self.rne(8 + r)
        self.srd(SRD_X, S_X, 8 * 1152)
        a("v_lshrrev_b32 v4, 5, v0")
        a(f"s_movk_i32 s{S_T0}, {4*1152}")
        a(f"v_mul_lo_u32 v4, v4, s{S_T0}")
        a("v_lshl_add_u32 v7, v5, 1, v4")
        for r in range(4):
            a(f"buffer_load_ushort v{12+r}, v7, {sr(SRD_X,4)}, 0 offen offset:{r*1152}")
        a("s_waitcnt vmcnt(0)")
        for r in range(4):
            a(f"v_lshlrev_b32 v{12+r}, 16, v{12+r}")

    def tail(self):
        a = self.a
        NS = self.NS
        a.label("L_B4")
        a("s_barrier")
        self.stamp(5)
        a("s_setprio 0")
        a("v_mbcnt_lo_u32_b32 v0, -1, 0")
        a("v_mbcnt_hi_u32_b32 v0, -1, v0")
        a(f"s_cmp_lg_u32 s{S_WAVE}, 0")
        a("s_cbranch_scc1 L_nomerge")
        a("v_lshlrev_b32 v2, 4, v0")
        a("v_lshrrev_b32 v3, 5, v0")
        a("v_lshlrev_b32 v3, 3, v3")
        for w in range(NS):
            a(f"ds_read_b64 {vr(16+2*w,2)}, v3 offset:{LDS_SP + w*SP_STRIDE + 1024}")
        for w in range(NS):
            a(f"ds_read_b128 {vr(32+4*w,4)}, v2 offset:{LDS_SP + w*SP_STRIDE}")
        a(f"s_waitcnt lgkmcnt({NS})")
        a("v_max_f32 v4, v16, v18")
        for w in range(2, NS):
            a(f"v_max_f32 v4, v4, v{16+2*w}")
        for w in range(NS):
            a(f"v_sub_f32 v{16+2*w}, v{16+2*w}, v4")
            a(f"v_mul_f32 v{16+2*w}, s{S_LOG2E}, v{16+2*w}")
            a(f"v_exp_f32 v{16+2*w}, v{16+2*w}")
        a("v_mul_f32 v5, v16, v17")
        for w in range(1, NS):
            a(f"v_fmac_f32 v5, v{16+2*w}, v{17+2*w}")
        a("s_waitcnt lgkmcnt(0)")
        for r in range(4):
            a(f"v_mul_f32 v{8+r}, v16, v{32+r}")
        for w in range(1, NS):
            for r in range(4):
                a(f"v_fmac_f32 v{8+r}, v{16+2*w}, v{32+4*w+r}")
        for r in range(4):
            a(f"v_min_u32 v{8+r}, s{S_SENTM1}, v{8+r}")
        a(f"v_min_u32 v4, s{S_SENTM1}, v4")
        a(f"v_min_u32 v5, s{S_SENTM1}, v5")
        a(f"s_lshl_b32 s{S_T0}, s{S_HKV}, 4")
        a(f"s_add_u32 s{S_T0}, s{S_T0}, s{S_J}")
        a(f"s_lshl_b32 s{S_T0}, s{S_T0}, 11")
        a(f"buffer_store_dwordx4 v[8:11], v2, {sr(SRD_WS,4)}, s{S_T0} offen sc1")
        a(f"v_readlane_b32 s{S_T1}, v4, 32")
        a(f"v_readlane_b32 s{S_T2}, v5, 32")
        a("v_mov_b32 v12, v4")
        a("v_mov_b32 v13, v5")
        a(f"v_mov_b32 v14, s{S_T1}")
        a(f"v_mov_b32 v15, s{S_T2}")
        a("v_mov_b32 v3, 0")
        a("s_mov_b64 exec, 1")
        a(f"buffer_store_dwordx4 v[12:15], v3, {sr(SRD_WS,4)}, s{S_T0} offen offset:1024 sc1")
        a("s_mov_b64 exec, -1")
        self.stamp(6)
        a.label("L_nomerge")
        a(f"s_cmp_lt_u32 s{S_J}, 10")
        a("s_cbranch_scc0 L_notcons")
        a(f"s_cmp_eq_u32 s{S_SPLIT}, 1")
        a("s_cbranch_scc1 L_consumer")
        a.label("L_notcons")
        a(f"s_cmp_lg_u32 s{S_WAVE}, 8")
        a("s_cbranch_scc1 L_end")
        a(f"s_cmp_lt_i32 s{S_R}, 0")
        a("s_cbranch_scc1 L_end")
        self.poll_sum(16, WS_P2, 20480, 16, 64, "p2", sleep=1)
        self.stamp(7)
        for r in range(4):
            self.rne(16 + r)
            a(f"v_add_f32 v{16+r}, v{12+r}, v{16+r}")
            self.rne(16 + r)
            a(f"v_add_f32 v{16+r}, v{16+r}, v{8+r}")
            a(f"v_cvt_pk_bf16_f32 v{16+r}, v{16+r}, v{16+r}")
        self.srd(SRD_X, S_OUT, 8 * 1152)
        for r in range(4):
            a(f"buffer_store_short v{16+r}, v7, {sr(SRD_X,4)}, 0 offen offset:{r*1152}")
        a(f"s_cmp_lg_u32 s{S_R}, 0")
        a("s_cbranch_scc1 L_end")
        a(f"v_mov_b32 v3, s{S_TA}")
        a("v_mov_b32 v2, 0")
        a(f"s_mov_b32 s{S_T0}, {WS_GEN}")
        a("s_mov_b64 exec, 1")
        a(f"buffer_store_dword v3, v2, {sr(SRD_WS,4)}, s{S_T0} offen sc1")
        a("s_mov_b64 exec, -1")
        a("s_branch L_end")
        a.label("L_consumer")
        a(f"s_cmp_ge_u32 s{S_WAVE}, 8")
        a("s_cbranch_scc1 L_c_nopre")
        self.proj_preload(8, S_WAVE)
        a.label("L_c_nopre")
        a(f"s_lshr_b32 s{S_T1}, s{S_WAVE}, 1")
        a(f"s_and_b32 s{S_T2}, s{S_WAVE}, 1")
        a(f"s_lshl_b32 s{S_T0}, s{S_HKV}, 4")
        a(f"s_lshl_b32 s{S_T3}, s{S_T1}, 1")
        a(f"s_add_u32 s{S_T0}, s{S_T0}, s{S_T3}")
        a(f"s_lshl_b32 s{S_T0}, s{S_T0}, 11")
        a("v_lshrrev_b32 v2, 5, v0")
        a("v_lshlrev_b32 v2, 11, v2")
        a("v_and_b32 v3, 31, v0")
        a("v_lshl_add_u32 v3, v3, 4, v2")
        a(f"s_lshl_b32 s{S_T3}, s{S_T2}, 9")
        a(f"v_add_u32 v3, s{S_T3}, v3")
        a(f"s_mov_b32 s{S_SPIN}, 0")
        a.label("L_c_poll")
        a(f"buffer_load_dwordx4 v[8:11], v3, {sr(SRD_WS,4)}, s{S_T0} offen sc1")
        a(f"buffer_load_dwordx4 v[12:15], v2, {sr(SRD_WS,4)}, s{S_T0} offen offset:1024 sc1")
        a("s_waitcnt vmcnt(0)")
        a("v_max3_u32 v6, v8, v9, v10")
        a("v_max3_u32 v6, v6, v11, v12")
        a("v_max3_u32 v6, v6, v13, v14")
        a("v_max_u32 v6, v6, v15")
        a("v_cmp_eq_u32 vcc, -1, v6")
        a("s_cbranch_vccz L_c_ok")
        self.spin("L_c_poll", 1, 0x40000)
        a.label("L_c_ok")
        self.stamp(7)
        a(f"s_cmp_eq_u32 s{S_T2}, 0")
        a("s_cselect_b64 vcc, -1, 0")
        a("v_cndmask_b32 v4, v14, v12, vcc")
        a("v_cndmask_b32 v5, v15, v13, vcc")
        a("v_mov_b32 v6, v4")
        a("v_permlane32_swap_b32 v4, v6")
        a("v_mov_b32 v7, v5")
        a("v_permlane32_swap_b32 v5, v7")
        a("v_max_f32 v16, v4, v6")
        a("v_sub_f32 v4, v4, v16")
        a("v_sub_f32 v6, v6, v16")
        a(f"v_mul_f32 v4, s{S_LOG2E}, v4")
        a(f"v_mul_f32 v6, s{S_LOG2E}, v6")
        a("v_exp_f32 v4, v4")
        a("v_exp_f32 v6, v6")
        a("v_mul_f32 v5, v4, v5")
        a("v_fmac_f32 v5, v6, v7")
        a("v_rcp_f32 v7, v5")
        a("v_cmp_gt_u32 vcc, 32, v0")
        a("v_cndmask_b32 v4, v6, v4, vcc")
        a("v_fma_f32 v6, -v5, v7, 1.0")
        a("v_fma_f32 v7, v6, v7, v7")
        a("v_mul_f32 v4, v4, v7")
        for r in range(4):
            a(f"v_mul_f32 v{8+r}, v{8+r}, v4")
        for r in range(4):
            a(f"v_mov_b32 v{12+r}, v{8+r}")
        for r in range(4):
            a(f"v_permlane32_swap_b32 v{8+r}, v{12+r}")
        for r in range(4):
            a(f"v_add_f32 v{8+r}, v{8+r}, v{12+r}")
        a("v_cvt_pk_bf16_f32 v8, v8, v9")
        a("v_cvt_pk_bf16_f32 v9, v10, v11")
        a(f"s_mul_i32 s{S_T0}, s{S_T1}, {O_STRIDE}")
        a(f"s_lshl_b32 s{S_T3}, s{S_T2}, 8")
        a(f"s_add_u32 s{S_T0}, s{S_T0}, s{S_T3}")
        a("v_lshlrev_b32 v3, 3, v0")
        a(f"v_add_u32 v3, s{S_T0}, v3")
        self.lane_mask_lt(32)
        a(f"ds_write_b64 v3, v[8:9] offset:{LDS_O}")
        self.restore_exec()
        a("s_waitcnt lgkmcnt(0)")
        a("s_barrier")
        self.stamp(8)
        a(f"s_cmp_ge_u32 s{S_WAVE}, 8")
        a("s_cbranch_scc1 L_end")
        self.proj(8, LDS_O, O_STRIDE, S_WAVE, "a", preloaded=True)
        a(f"s_mul_i32 s{S_T0}, s{S_HKV}, 5")
        a(f"s_add_u32 s{S_T0}, s{S_T0}, s{S_B}")
        a(f"s_lshl_b32 s{S_T0}, s{S_T0}, 12")
        a(f"s_lshl_b32 s{S_T1}, s{S_WAVE}, 9")
        a(f"s_add_u32 s{S_T0}, s{S_T0}, s{S_T1}")
        a(f"s_add_u32 s{S_T0}, s{S_T0}, {WS_P2}")
        self.publish4(32)
        a.label("L_end")
        self.stamp(9)
        self.stamp_flush()
        a.label("L_exit")
        a("s_endpgm")

    def build(self):
        self.prologue()
        self.stream()
        self.aux()
        self.tail()
        body = self.a.finish()
        hdr = open("cdna_kernels/" + NAME + ".s.ref").read().split("; Override launch geometry")[0]
        out = hdr
        out += "; Override launch geometry by editing the next line (default: block=256,\n"
        out += f"; @launch grid=(256,1,1) block=(1024,1,1) lds={LDS_TOTAL}\n"
        out += '.amdgcn_target "amdgcn-amd-amdhsa--gfx950"\n.text\n'
        out += f".globl {NAME}_kernel\n.p2align 8\n.type {NAME}_kernel,@function\n{NAME}_kernel:\n"
        out += body
        out += '.section .rodata,"a"\n.p2align 6\n'
        out += f".amdhsa_kernel {NAME}_kernel\n"
        out += "  .amdhsa_next_free_vgpr 128\n  .amdhsa_next_free_sgpr 100\n  .amdhsa_accum_offset 128\n"
        out += "  .amdhsa_group_segment_fixed_size 0\n  .amdhsa_kernarg_size 96\n  .amdhsa_user_sgpr_count 2\n"
        out += "  .amdhsa_user_sgpr_kernarg_segment_ptr 1\n  .amdhsa_system_sgpr_workgroup_id_x 1\n.end_amdhsa_kernel\n"
        return out

if __name__ == "__main__":
    dbg = "--debug" in sys.argv
    outp = [x for x in sys.argv[1:] if not x.startswith("--")]
    kw = {}
    for x in sys.argv[1:]:
        if x.startswith("--") and "=" in x:
            k_, v_ = x[2:].split("="); kw[k_] = int(v_)
    g = Gen(debug=dbg, stamps="--stamps" in sys.argv, **kw)
    s = g.build()
    path = outp[0] if outp else "cdna_kernels/" + NAME + ".s"
    open(path, "w").write(s)
    print("wrote", path, "lines", s.count("\n"), "nops inserted", g.a.ninserted)
```

```python
import sys
from dsl import Asm, vr, sr

NAME = "parallel_sum__gqa_block_cached__swiglu_ffn__decode"
LOG2E = 0x3fb8aa3b
SCALE = 0x3db504f3

XN_STRIDE = 1184
LDS_XN = 0
LDS_XB = LDS_XN + 8 * XN_STRIDE
LDS_QPART = LDS_XB + 1152
LDS_Q = LDS_QPART + 12 * 512
LDS_SP = LDS_Q + 512
SP_STRIDE = 1040
LDS_O = LDS_SP + 8 * SP_STRIDE
O_STRIDE = 544
LDS_CNT = LDS_O + 8 * O_STRIDE
LDS_H = LDS_CNT + 64
H_STRIDE = 608
LDS_FP = LDS_H + 8 * H_STRIDE
LDS_W = LDS_FP
LDS_QFP = LDS_W + 9 * 8192
LDS_TOTAL = LDS_QFP + 6 * 4096

REC_STRIDE = 2048
WS_REC = 0
WS_P2 = 256 * REC_STRIDE
WS_F2 = WS_P2 + 16 * 5 * 4096
WS_H = WS_F2 + 16 * 5 * 4096
WS_GEN = WS_H + 8 * 9216
WS_QP = WS_GEN + 4096
WS_DBG = WS_QP + 16 * 3 * 16384
WS_STAMP = WS_DBG + (512 << 10)
WS_SIZE = WS_DBG + (1 << 20)

S_WAVE = 3
S_X, S_K, S_V, S_WQ, S_WO, S_BX, S_WG, S_WU = 4, 6, 8, 10, 12, 14, 16, 18
S_WD, S_OUT, S_DBG, S_WS = 20, 22, 24, 26
S_HKV, S_B, S_SPLIT, S_J = 28, 29, 30, 31
SRD_K, SRD_V, SRD_W, SRD_WS = 32, 36, 40, 44
S_SEL_LO, S_SEL_HI = 48, 49
S_OFF, S_OFF2, S_CNT = 50, 51, 52
S_STRIDE, S_UOFF, S_NT, S_FIRST, S_T0 = 53, 54, 55, 56, 57
S_HW, S_ROLE, S_RIDX, S_T1, S_T2, S_T3 = 58, 59, 60, 61, 62, 63
S_LOG2E, S_SCALE, S_MASKHI, S_SENTM1 = 64, 65, 66, 67
S_EX = 68
SRD_W2 = 72
SRD_X = 76
S_SPIN = 80
S_R = 81
S_CB = 82
S_NXT = 83
S_TA, S_TB = 70, 71
S_TS = 84
S_ST0 = 86
ROLE_NONE, ROLE_A, ROLE_B, ROLE_C = 0, 1, 2, 3

class Gen:
    def __init__(self, debug=False, stamps=False, NS=8, KT=32, LA=1, comp=1, map4=1, earlyV=1, earlyK=1, qsleep=8, kvtouch=1, pace=4, kpol=1, vpol=1, noq=0, nowt=0, hsleep=1, only=0, stop=0, qfix=0, qsc=1, qst=1, dC=6, dA=4, dB=4, pj0=10):
        self.dC = dC; self.dA = dA; self.dB = dB; self.pj0 = pj0
        self.qst = qst
        self.qfix = qfix; self.qfl = 'sc1' if qsc else ''
        self.stop = stop
        self.only = only
        self.hsleep = hsleep
        self.nowt = nowt
        self.noq = noq
        POL = {0: '', 1: 'nt', 2: 'sc1', 3: 'sc0 sc1', 4: 'sc1 nt', 5: 'sc0'}
        self.kfl = POL[kpol]; self.vfl = POL[vpol]
        self.pace = pace
        self.kvtouch = kvtouch
        self.earlyK = earlyK
        self.qsleep = qsleep
        self.earlyV = earlyV
        self.map4 = map4
        self.a = Asm()
        self.debug = debug; self.stamps = stamps
        self.NS = NS; self.KT = KT; self.LA = LA; self.comp = comp

    def srd(self, dst, base, size, off_sgpr=None):
        a = self.a
        if off_sgpr is not None:
            a(f"s_add_u32 s{dst}, s{base}, s{off_sgpr}")
            a(f"s_addc_u32 s{dst+1}, s{base+1}, 0")
        else:
            a(f"s_mov_b32 s{dst}, s{base}")
            a(f"s_mov_b32 s{dst+1}, s{base+1}")
        a(f"s_mov_b32 s{dst+2}, {size}")
        a(f"s_mov_b32 s{dst+3}, 0x20000")

    def stamp(self, k):
        if not self.stamps: return
        a = self.a
        a(f"s_memrealtime {sr(S_TS,2)}")
        a("s_waitcnt lgkmcnt(0)")
        a(f"s_mov_b32 s{S_ST0+k}, s{S_TS}")

    def stamp_flush(self):
        if not self.stamps: return
        a = self.a
        a("s_mov_b64 exec, -1")
        a("v_mbcnt_lo_u32_b32 v0, -1, 0")
        a("v_mbcnt_hi_u32_b32 v0, -1, v0")
        a("v_mov_b32 v1, 0")
        for k in range(12):
            a(f"v_writelane_b32 v1, s{S_ST0+k}, {k}")
        a(f"s_lshl_b32 s{S_T0}, s2, 4")
        a(f"s_add_u32 s{S_T0}, s{S_T0}, s{S_WAVE}")
        a(f"s_lshl_b32 s{S_T0}, s{S_T0}, 6")
        a(f"s_add_u32 s{S_T0}, s{S_T0}, {WS_STAMP}")
        a("v_lshlrev_b32 v2, 2, v0")
        a("v_cmp_gt_u32 vcc, 16, v0")
        a(f"s_and_saveexec_b64 {sr(S_EX,2)}, vcc")
        a(f"buffer_store_dword v1, v2, {sr(SRD_WS,4)}, s{S_T0} offen")

    def wave_sum(self, x, t):
        a = self.a
        for pat in ("quad_perm:[1,0,3,2]", "quad_perm:[2,3,0,1]", "row_half_mirror", "row_mirror"):
            a(f"v_add_f32_dpp v{x}, v{x}, v{x} {pat} row_mask:0xf bank_mask:0xf")
        a(f"v_mov_b32 v{t}, v{x}")
        a(f"v_permlane16_swap_b32 v{x}, v{t}")
        a(f"v_add_f32 v{x}, v{x}, v{t}")
        a(f"v_mov_b32 v{t}, v{x}")
        a(f"v_permlane32_swap_b32 v{x}, v{t}")
        a(f"v_add_f32 v{x}, v{x}, v{t}")

    def rne(self, x):
        a = self.a
        a(f"v_cvt_pk_bf16_f32 v{x}, v{x}, v{x}")
        a(f"v_and_b32 v{x}, 0xffff0000, v{x}")

    def lane_mask_lt(self, n, lane="v0"):
        a = self.a
        a(f"v_cmp_gt_u32 vcc, {n}, {lane}")
        a(f"s_and_saveexec_b64 {sr(S_EX,2)}, vcc")
    def restore_exec(self):
        self.a(f"s_mov_b64 exec, {sr(S_EX,2)}")

    def spin(self, lab, sleep, bound):
        a = self.a
        a(f"s_sleep {sleep}")
        a(f"s_add_u32 s{S_SPIN}, s{S_SPIN}, 1")
        a(f"s_cmp_lt_u32 s{S_SPIN}, {bound}")
        a(f"s_cbranch_scc1 {lab}")

    def layernorm(self, R, X, T, vL, lds_imm, s_row=None):
        a = self.a
        t0, t1, t2, t3, t4, t5 = range(T, T + 6)
        for k in range(5):
            a(f"v_lshlrev_b32 v{X+2*k}, 16, v{R+k}")
            a(f"v_and_b32 v{X+2*k+1}, s{S_MASKHI}, v{R+k}")
        a(f"v_add_f32 v{t0}, v{X}, v{X+1}")
        for k in range(2, 10):
            a(f"v_add_f32 v{t0}, v{t0}, v{X+k}")
        self.wave_sum(t0, t1)
        a(f"s_mov_b32 s{S_T1}, 0x44100000")
        a(f"s_mov_b32 s{S_T2}, 0x3ae38e39")
        a(f"v_mul_f32 v{t1}, s{S_T2}, v{t0}")
        a(f"v_fma_f32 v{t2}, -v{t1}, s{S_T1}, v{t0}")
        a(f"v_fma_f32 v{t1}, v{t2}, s{S_T2}, v{t1}")
        a(f"v_cmp_gt_u32 vcc, 32, v{vL}")
        a(f"v_sub_f32 v{t2}, v{X+8}, v{t1}")
        a(f"v_mul_f32 v{t3}, v{t2}, v{t2}")
        a(f"v_sub_f32 v{t2}, v{X+9}, v{t1}")
        a(f"v_fmac_f32 v{t3}, v{t2}, v{t2}")
        a(f"v_cndmask_b32 v{t3}, 0, v{t3}, vcc")
        for k in range(8):
            a(f"v_sub_f32 v{t2}, v{X+k}, v{t1}")
            a(f"v_fmac_f32 v{t3}, v{t2}, v{t2}")
        self.wave_sum(t3, t2)
        a(f"v_mul_f32 v{t2}, s{S_T2}, v{t3}")
        a(f"v_fma_f32 v{t0}, -v{t2}, s{S_T1}, v{t3}")
        a(f"v_fma_f32 v{t2}, v{t0}, s{S_T2}, v{t2}")
        self.rne(t1); self.rne(t2)
        a(f"v_add_f32 v{t2}, 0x3727c5ac, v{t2}")
        self.rne(t2)
        a(f"v_sqrt_f32 v{t3}, v{t2}")
        a(f"v_rcp_f32 v{t0}, v{t3}")
        a(f"v_fma_f32 v{t4}, -v{t3}, v{t3}, v{t2}")
        a(f"v_mul_f32 v{t0}, 0.5, v{t0}")
        a(f"v_fma_f32 v{t3}, v{t4}, v{t0}, v{t3}")
        self.rne(t3)
        a(f"v_rcp_f32 v{t0}, v{t3}")
        for k in range(10):
            a(f"v_sub_f32 v{X+k}, v{X+k}, v{t1}")
        for k in range(5):
            a(f"v_cvt_pk_bf16_f32 v{R+k}, v{X+2*k}, v{X+2*k+1}")
        for k in range(5):
            a(f"v_lshlrev_b32 v{X+2*k}, 16, v{R+k}")
            a(f"v_and_b32 v{X+2*k+1}, s{S_MASKHI}, v{R+k}")
        for k in range(10):
            a(f"v_mul_f32 v{t4}, v{X+k}, v{t0}")
            a(f"v_fma_f32 v{t5}, -v{t4}, v{t3}, v{X+k}")
            a(f"v_fma_f32 v{X+k}, v{t5}, v{t0}, v{t4}")
        for k in range(5):
            a(f"v_cvt_pk_bf16_f32 v{R+k}, v{X+2*k}, v{X+2*k+1}")
        a(f"v_lshlrev_b32 v{t4}, 4, v{vL}")
        a(f"v_lshlrev_b32 v{t5}, 2, v{vL}")
        if s_row is not None:
            a(f"v_add_u32 v{t4}, s{s_row}, v{t4}")
            a(f"v_add_u32 v{t5}, s{s_row}, v{t5}")
        a(f"ds_write_b128 v{t4}, {vr(R,4)} offset:{lds_imm}")
        a(f"s_and_saveexec_b64 {sr(S_EX,2)}, vcc")
        a(f"ds_write_b32 v{t5}, v{R+4} offset:{lds_imm+1024}")
        self.restore_exec()

    def xload(self, R, vL, tmp, s_rowbytes):
        a = self.a
        self.srd(SRD_X, S_X, 1152, off_sgpr=s_rowbytes)
        a(f"v_lshlrev_b32 v{tmp}, 4, v{vL}")
        a(f"buffer_load_dwordx4 {vr(R,4)}, v{tmp}, {sr(SRD_X,4)}, 0 offen")
        a(f"v_lshlrev_b32 v{tmp}, 2, v{vL}")
        a(f"buffer_load_dword v{R+4}, v{tmp}, {sr(SRD_X,4)}, 0 offen offset:1024")

    def prologue(self):
        a = self.a
        a("s_cmp_ge_u32 s2, 256")
        a("s_cbranch_scc1 L_exit")
        a("s_load_dwordx16 s[4:19], s[0:1], 0")
        a("s_load_dwordx8 s[20:27], s[0:1], 64")
        a("v_lshrrev_b32 v1, 6, v0")
        a("v_and_b32 v0, 63, v0")
        a(f"v_readfirstlane_b32 s{S_WAVE}, v1")
        for k in range(2, 8): a(f"v_mov_b32 v{k}, 0")
        if self.map4:
            a(f"s_and_b32 s{S_HKV}, s2, 3")
            a(f"s_lshl_b32 s{S_HKV}, s{S_HKV}, 2")
            a(f"s_bfe_u32 s{S_T1}, s2, 0x20003")
            a(f"s_add_u32 s{S_HKV}, s{S_HKV}, s{S_T1}")
            a(f"s_lshr_b32 s{S_B}, s2, 5")
            a(f"s_bfe_u32 s{S_SPLIT}, s2, 0x10002")
        else:
            a(f"s_and_b32 s{S_HKV}, s2, 7")
            a(f"s_lshr_b32 s{S_T0}, s2, 3")
            a(f"s_and_b32 s{S_T1}, s{S_T0}, 1")
            a(f"s_lshl_b32 s{S_HKV}, s{S_HKV}, 1")
            a(f"s_add_u32 s{S_HKV}, s{S_HKV}, s{S_T1}")
            a(f"s_lshr_b32 s{S_T0}, s{S_T0}, 1")
            a(f"s_and_b32 s{S_B}, s{S_T0}, 7")
            a(f"s_lshr_b32 s{S_SPLIT}, s{S_T0}, 3")
        a(f"s_lshl_b32 s{S_J}, s{S_B}, 1")
        a(f"s_add_u32 s{S_J}, s{S_J}, s{S_SPLIT}")
        a(f"s_mov_b32 s{S_SEL_LO}, 0x05040100")
        a(f"s_mov_b32 s{S_SEL_HI}, 0x07060302")
        a(f"s_mov_b32 s{S_LOG2E}, {LOG2E:#x}")
        a(f"s_mov_b32 s{S_SCALE}, {SCALE:#x}")
        a(f"s_mov_b32 s{S_MASKHI}, 0xffff0000")
        a(f"s_mov_b32 s{S_SENTM1}, 0xfffffffe")
        a(f"s_mov_b32 s{S_R}, -1")
        if self.stamps:
            for k in range(12): a(f"s_mov_b32 s{S_ST0+k}, 0")
        a("s_waitcnt lgkmcnt(0)")
        self.srd(SRD_WS, S_WS, WS_SIZE)
        a(f"s_add_u32 s{S_T0}, s{S_WS}, {WS_GEN}")
        a(f"s_addc_u32 s{S_T1}, s{S_WS+1}, 0")
        a(f"s_mov_b32 s{S_T2}, s{S_T0}")
        a(f"s_mov_b32 s{S_T3}, s{S_T1}")
        a(f"s_load_dword s{S_TA}, {sr(S_T2,2)}, 0")
        self.stamp(0)
        a(f"s_cmp_ge_u32 s{S_WAVE}, 8")
        a("s_cbranch_scc1 L_aux")

    def touch(self, base, size, n, dst):
        a = self.a
        self.srd(SRD_W, base, size)
        a("v_lshlrev_b32 v4, 20, v0")
        self.lane_mask_lt(n)
        a(f"buffer_load_dword v{dst}, v4, {sr(SRD_W,4)}, 0 offen")
        self.restore_exec()

    def stream_setup(self):
        a = self.a
        KT = self.KT; TB = KT * 256; NTP = 8192 // KT
        half = NTP // 2
        u = 32 // KT if KT <= 32 else 1
        dC = self.dC * (32 // KT) * self.comp // 2
        dA = -self.dA * (32 // KT) * self.comp // 2
        dB = self.dB * (32 // KT) * self.comp // 2
        a(f"s_mov_b32 s{S_T1}, {half}")
        a(f"s_cmp_lt_u32 s{S_B}, 4")
        a(f"s_cselect_b32 s{S_T1}, {half - dC}, s{S_T1}")
        a(f"s_cmp_eq_u32 s{S_B}, 4")
        a("s_cbranch_scc0 L_sp1")
        a(f"s_cmp_lt_u32 s{S_HKV}, 8")
        a(f"s_mov_b32 s{S_T2}, {half - dA}")
        a(f"s_cselect_b32 s{S_T1}, {half - dC}, s{S_T2}")
        a.label("L_sp1")
        a(f"s_cmp_eq_u32 s{S_B}, 7")
        a(f"s_cselect_b32 s{S_T1}, {half - dB}, s{S_T1}")
        a(f"s_sub_u32 s{S_T2}, {NTP}, s{S_T1}")
        a(f"s_cmp_eq_u32 s{S_SPLIT}, 0")
        a(f"s_cselect_b32 s{S_NT}, s{S_T1}, s{S_T2}")
        a(f"s_cselect_b32 s{S_T1}, 0, s{S_T1}")
        a(f"s_lshl_b32 s{S_T0}, s{S_B}, 4")
        a(f"s_add_u32 s{S_T0}, s{S_T0}, s{S_HKV}")
        a(f"s_lshl_b32 s{S_T0}, s{S_T0}, 21")
        a(f"s_mul_i32 s{S_T1}, s{S_T1}, {TB}")
        a(f"s_add_u32 s{S_T0}, s{S_T0}, s{S_T1}")
        a(f"s_mul_i32 s{S_T2}, s{S_NT}, {TB}")
        self.srd(SRD_K, S_K, f"s{S_T2}", off_sgpr=S_T0)
        self.srd(SRD_V, S_V, f"s{S_T2}", off_sgpr=S_T0)
        a("v_and_b32 v4, 15, v0")
        a("v_lshrrev_b32 v5, 4, v0")
        a("v_lshlrev_b32 v6, 10, v5")
        a("v_lshl_add_u32 v1, v4, 4, v6")
        a("v_lshlrev_b32 v6, 4, v5")
        a("v_and_b32 v7, 1, v0")
        a("v_lshl_add_u32 v7, v7, 8, v6")
        a("v_lshl_add_u32 v0, v4, 8, v6")

    def issueK(self, o1=S_OFF, o2=S_OFF2):
        for u in range(self.KT // 16):
            for s_ in range(4):
                r = 64 + (u * 4 + s_) * 4
                self.a(f"buffer_load_dwordx4 {vr(r,4)}, v0, {sr(SRD_K,4)}, s{o1 if u == 0 else o2} offen offset:{s_*64} {self.kfl}")
    def issueV(self, o1=S_OFF, o2=S_OFF2):
        for u in range(self.KT // 16):
            for r_ in range(4):
                r = 96 + (u * 4 + r_) * 4
                self.a(f"buffer_load_dwordx4 {vr(r,4)}, v1, {sr(SRD_V,4)}, s{o1 if u == 0 else o2} offen offset:{r_*256} {self.vfl}")

    def stream(self):
        a = self.a
        NS, KT, LA = self.NS, self.KT, self.LA
        NU = KT // 16; NL = 4 * NU; TB = KT * 256
        VK, VV, M, L, P, S, Q, O, KB, VB = 0, 1, 2, 3, 4, 8, 16, 32, 64, 96
        a(f"s_cmp_ge_u32 s{S_WAVE}, {NS}")
        a("s_cbranch_scc1 L_idle")
        tl = {1: [(S_WS, WS_SIZE, 4), (S_WO, 4096*1152, 5), (S_OUT, 8*1152, 1)],
              2: [(S_WG, 576*9216, 6), (S_WU, 576*9216, 6), (S_DBG, 256, 1)],
              3: [(S_WD, 4608*1152, 6)]}
        for w in (1, 2, 3):
            lab = f"L_s_t{w}"
            a(f"s_cmp_lg_u32 s{S_WAVE}, {w}")
            a(f"s_cbranch_scc1 {lab}")
            for k, t in enumerate(tl[w]):
                self.touch(*t, 8 + k)
            a.label(lab)
        self.stream_setup()
        if self.kvtouch:
            a(f"s_cmp_lg_u32 s{S_WAVE}, 0")
            a("s_cbranch_scc1 L_s_nkt")
            a("v_mbcnt_lo_u32_b32 v12, -1, 0")
            a("v_mbcnt_hi_u32_b32 v12, -1, v12")
            a("v_lshlrev_b32 v12, 18, v12")
            a("s_mov_b64 exec, 0x1f")
            a(f"buffer_load_dword v13, v12, {sr(SRD_K,4)}, 0 offen nt")
            a(f"buffer_load_dword v14, v12, {sr(SRD_V,4)}, 0 offen nt")
            a("s_mov_b64 exec, -1")
            a.label("L_s_nkt")
        a(f"s_mul_i32 s{S_OFF}, s{S_WAVE}, {TB}")
        a(f"s_add_u32 s{S_OFF2}, s{S_OFF}, 4096")
        seq = []
        for u in range(NU):
            for s_ in range(4):
                seq.append(f"buffer_load_dwordx4 {vr(KB+(u*4+s_)*4,4)}, v0, {sr(SRD_K,4)}, s{S_OFF if u == 0 else S_OFF2} offen offset:{s_*64} {self.kfl}")
        for u in range(NU):
            for r_ in range(4):
                seq.append(f"buffer_load_dwordx4 {vr(VB+(u*4+r_)*4,4)}, v1, {sr(SRD_V,4)}, s{S_OFF if u == 0 else S_OFF2} offen offset:{r_*256} {self.vfl}")
        PS = self.pace
        for k0 in range(0, len(seq), PS):
            if k0 > 0: a("s_waitcnt vmcnt(0)")
            for ins in seq[k0:k0+PS]: a(ins)
            if k0 == 0:
                a("s_barrier")
                for k in range(32):
                    a(f"v_mov_b32 v{O+k}, 0")
                a(f"v_mov_b32 v{M}, 0xff800000")
                a(f"v_mov_b32 v{L}, 0")
        self.stamp(4)
        a(f"v_mov_b32 v{P}, {LDS_CNT + 20}")
        a(f"s_mov_b32 s{S_SPIN}, 0")
        a.label("L_s_qw")
        a(f"ds_read_b32 v{P+1}, v{P}")
        a("s_waitcnt lgkmcnt(0)")
        a(f"v_readfirstlane_b32 s{S_T0}, v{P+1}")
        a(f"s_cmp_ge_u32 s{S_T0}, 2")
        a("s_cbranch_scc1 L_s_qok")
        self.spin("L_s_qw", 2, 0x100000)
        a.label("L_s_qok")
        self.stamp(1)
        for s_ in range(4):
            a(f"ds_read_b128 {vr(Q+4*s_,4)}, v7 offset:{LDS_Q + s_*64}")
        a(f"s_mov_b32 s{S_CNT}, s{S_WAVE}")
        a(f"s_mov_b32 s{S_FIRST}, 0")
        a(f"s_mov_b32 s{S_STRIDE}, 0")
        a(f"v_mov_b32 v{P}, {LDS_CNT + 32}")
        a(f"v_mov_b32 v{P+1}, 1")
        a("s_mov_b64 exec, 1")
        a(f"ds_add_rtn_u32 v{P+2}, v{P}, v{P+1}")
        a("s_mov_b64 exec, -1")
        a("s_waitcnt lgkmcnt(0)")
        a(f"v_readfirstlane_b32 s{S_NXT}, v{P+2}")
        a.label("L_sloop")
        a(f"s_mul_i32 s{S_OFF}, s{S_NXT}, {TB}")
        a(f"s_add_u32 s{S_OFF2}, s{S_OFF}, 4096")
        if LA == 2:
            a(f"s_waitcnt vmcnt({NL})")
        else:
            a("s_waitcnt vmcnt(0)")
            a(f"s_cmp_eq_u32 s{S_FIRST}, 0")
            a(f"s_mov_b32 s{S_FIRST}, 1")
            a("s_cbranch_scc1 L_skipV")
            a(f"s_mul_i32 s{S_T2}, s{S_CNT}, {TB}")
            a(f"s_add_u32 s{S_T3}, s{S_T2}, 4096")
            self.issueV(S_T2, S_T3)
            a.label("L_skipV")
        for s_ in range(4):
            for u in range(NU):
                c = "0" if s_ == 0 else vr(S + 4 * u, 4)
                a(f"v_mfma_f32_16x16x32_bf16 {vr(S+4*u,4)}, {vr(KB+(u*4+s_)*4,4)}, {vr(Q+4*s_,4)}, {c}")
        if LA == 2:
            self.issueK()
        NP = 2 * NU; NSV = 4 * NU
        for p in range(NP):
            a(f"v_cvt_pk_bf16_f32 v{P+p}, v{S+2*p}, v{S+2*p+1}")
        for p in range(NP):
            a(f"v_lshlrev_b32 v{S+2*p}, 16, v{P+p}")
            a(f"v_and_b32 v{S+2*p+1}, s{S_MASKHI}, v{P+p}")
        for k in range(NSV):
            a(f"v_mul_f32 v{S+k}, s{S_SCALE}, v{S+k}")
        for p in range(NP):
            a(f"v_cvt_pk_bf16_f32 v{P+p}, v{S+2*p}, v{S+2*p+1}")
        for p in range(NP):
            a(f"v_lshlrev_b32 v{S+2*p}, 16, v{P+p}")
            a(f"v_and_b32 v{S+2*p+1}, s{S_MASKHI}, v{P+p}")
        if NU == 2:
            a(f"v_max3_f32 v{P}, v{S}, v{S+1}, v{S+2}")
            a(f"v_max3_f32 v{P+1}, v{S+3}, v{S+4}, v{S+5}")
            a(f"v_max3_f32 v{P}, v{P}, v{S+6}, v{S+7}")
            a(f"v_max_f32 v{P}, v{P}, v{P+1}")
        else:
            a(f"v_max3_f32 v{P}, v{S}, v{S+1}, v{S+2}")
            a(f"v_max_f32 v{P}, v{P}, v{S+3}")
        a(f"v_cmp_gt_f32 vcc, v{P}, v{M}")
        a("s_cbranch_vccz L_nores")
        a(f"v_mov_b32 v{P+1}, v{P}")
        a(f"v_permlane16_swap_b32 v{P}, v{P+1}")
        a(f"v_max_f32 v{P}, v{P}, v{P+1}")
        a(f"v_mov_b32 v{P+1}, v{P}")
        a(f"v_permlane32_swap_b32 v{P}, v{P+1}")
        a(f"v_max3_f32 v{P}, v{P}, v{P+1}, v{M}")
        a(f"v_sub_f32 v{P+2}, v{M}, v{P}")
        a(f"v_mul_f32 v{P+2}, s{S_LOG2E}, v{P+2}")
        a(f"v_exp_f32 v{P+2}, v{P+2}")
        a(f"v_mov_b32 v{M}, v{P}")
        a(f"v_mov_b32 v{P+3}, v{P+2}")
        a(f"v_mul_f32 v{L}, v{L}, v{P+2}")
        for k in range(16):
            a(f"v_pk_mul_f32 {vr(O+2*k,2)}, {vr(O+2*k,2)}, {vr(P+2,2)}")
        a.label("L_nores")
        a(f"v_mul_f32 v{P}, s{S_LOG2E}, v{M}")
        for k in range(NSV):
            a(f"v_fma_f32 v{S+k}, v{S+k}, s{S_LOG2E}, -v{P}")
        for k in range(NSV):
            a(f"v_exp_f32 v{S+k}, v{S+k}")
        if NU == 2:
            a(f"v_add_f32 v{P+1}, v{S}, v{S+1}")
            a(f"v_add_f32 v{P+2}, v{S+2}, v{S+3}")
            a(f"v_add_f32 v{P+3}, v{S+4}, v{S+5}")
            a(f"v_add_f32 v{P}, v{S+6}, v{S+7}")
            a(f"v_add_f32 v{P+1}, v{P+1}, v{P+2}")
            a(f"v_add_f32 v{P+3}, v{P+3}, v{P}")
            a(f"v_add_f32 v{L}, v{L}, v{P+1}")
            a(f"v_add_f32 v{L}, v{L}, v{P+3}")
        else:
            a(f"v_add_f32 v{P+1}, v{S}, v{S+1}")
            a(f"v_add_f32 v{P+2}, v{S+2}, v{S+3}")
            a(f"v_add_f32 v{L}, v{L}, v{P+1}")
            a(f"v_add_f32 v{L}, v{L}, v{P+2}")
        for p in range(NP):
            a(f"v_cvt_pk_bf16_f32 v{P+p}, v{S+2*p}, v{S+2*p+1}")
        if LA == 2:
            a(f"s_waitcnt vmcnt({NL})")
        else:
            a("s_waitcnt vmcnt(0)")
            self.issueK()
        npp = 4 if NU == 2 else 2
        def perms(c, e):
            for p in range(npp):
                a(f"v_perm_b32 v{S+4*e+p}, v{VB+(2*p+1)*4+c}, v{VB+(2*p)*4+c}, s{S_SEL_LO if e == 0 else S_SEL_HI}")
        def pv(c, e):
            j = 2 * c + e
            if NU == 2:
                a(f"v_mfma_f32_16x16x32_bf16 {vr(O+4*j,4)}, {vr(S+4*e,4)}, {vr(P,4)}, {vr(O+4*j,4)}")
            else:
                a(f"v_mfma_f32_16x16x16_bf16 {vr(O+4*j,4)}, {vr(S+4*e,2)}, {vr(P,2)}, {vr(O+4*j,4)}")
        perms(0, 0); perms(0, 1)
        for c in range(4):
            pv(c, 0)
            if c < 3: perms(c + 1, 0)
            pv(c, 1)
            if c < 3: perms(c + 1, 1)
        a(f"v_mov_b32 v{S}, {LDS_CNT + 32}")
        a(f"v_mov_b32 v{S+1}, 1")
        a("s_mov_b64 exec, 1")
        a(f"ds_add_rtn_u32 v{S+2}, v{S}, v{S+1}")
        a("s_mov_b64 exec, -1")
        if LA == 2:
            self.issueV()
        a(f"s_mov_b32 s{S_CNT}, s{S_NXT}")
        a("s_waitcnt lgkmcnt(0)")
        a(f"v_readfirstlane_b32 s{S_NXT}, v{S+2}")
        if self.stamps:
            a(f"s_add_u32 s{S_STRIDE}, s{S_STRIDE}, 1")
            for slot, it in ((6, 1), (7, 2), (8, 4), (10, 8), (11, 16)):
                lab = a.newlabel("L_its")
                a(f"s_cmp_lg_u32 s{S_STRIDE}, {it}")
                a(f"s_cbranch_scc1 {lab}")
                self.stamp(slot)
                a.label(lab)
        a(f"s_cmp_lt_u32 s{S_CNT}, s{S_NT}")
        a("s_cbranch_scc1 L_sloop")
        self.stamp(2)
        if self.only or self.stop in (1, 2, 11, 12, 13): a("s_branch L_exit")
        a(f"v_mov_b32 v{P}, v{L}")
        a(f"v_permlane16_swap_b32 v{L}, v{P}")
        a(f"v_add_f32 v{L}, v{L}, v{P}")
        a(f"v_mov_b32 v{P}, v{L}")
        a(f"v_permlane32_swap_b32 v{L}, v{P}")
        a(f"v_add_f32 v{L}, v{L}, v{P}")
        a("v_mbcnt_lo_u32_b32 v8, -1, 0")
        a("v_mbcnt_hi_u32_b32 v8, -1, v8")
        a("v_and_b32 v9, 15, v8")
        a("v_lshrrev_b32 v10, 4, v8")
        a(f"s_mul_i32 s{S_T0}, s{S_WAVE}, {SP_STRIDE}")
        a(f"s_add_u32 s{S_T0}, s{S_T0}, {LDS_SP}")
        a("v_lshlrev_b32 v11, 9, v9")
        a("v_lshl_add_u32 v11, v10, 4, v11")
        a(f"v_add_u32 v11, s{S_T0}, v11")
        a("v_cmp_gt_u32 vcc, 2, v9")
        a(f"s_and_saveexec_b64 {sr(S_EX,2)}, vcc")
        for j in range(8):
            a(f"ds_write_b128 v11, {vr(O+4*j,4)} offset:{j*64}")
        a("v_cmp_gt_u32 vcc, 2, v8")
        a("s_and_b64 exec, exec, vcc")
        a("v_lshlrev_b32 v12, 3, v9")
        a(f"v_add_u32 v12, s{S_T0}, v12")
        a(f"ds_write_b64 v12, {vr(M,2)} offset:1024")
        self.restore_exec()
        a("s_waitcnt vmcnt(0) lgkmcnt(0)")
        a("s_branch L_B4")
        a.label("L_idle")
        if self.only:
            a("s_barrier")
            a("s_branch L_exit")
        for _ in range(1): a("s_barrier")
        if self.stop in (1, 2, 11, 12, 13): a("s_branch L_exit")
        a("s_branch L_B4")

    def perm_block(self, buf, c, e, T):
        for p in range(4):
            self.a(f"v_perm_b32 v{T+p}, v{buf+(2*p+1)*4+c}, v{buf+(2*p)*4+c}, s{S_SEL_LO if e == 0 else S_SEL_HI}")

    def aux(self):
        a = self.a
        a.label("L_aux")
        if self.only:
            a("v_mov_b32 v8, 0")
            a("v_cmp_eq_u32 vcc, 8, v0")
            a(f"v_mov_b32 v9, {self.NS}")
            a("v_cndmask_b32 v8, v8, v9, vcc")
            a("v_lshlrev_b32 v9, 2, v0")
            self.lane_mask_lt(16)
            a(f"ds_write_b32 v9, v8 offset:{LDS_CNT}")
            self.restore_exec()
            a("s_waitcnt lgkmcnt(0)")
            a("s_barrier")
            a("s_branch L_exit")
        a("s_setprio 3")
        a(f"s_sub_u32 s{S_HW}, s{S_WAVE}, 8")
        a(f"s_mul_i32 s{S_T0}, s{S_HW}, 1152")
        self.xload(16, 0, 4, S_T0)
        a(f"s_cmp_lg_u32 s{S_HW}, 0")
        a("s_cbranch_scc1 L_a_nc")
        a("v_mov_b32 v8, 0")
        a("v_cmp_eq_u32 vcc, 8, v0")
        a(f"v_mov_b32 v9, {self.NS}")
        a("v_cndmask_b32 v8, v8, v9, vcc")
        a("v_lshlrev_b32 v9, 2, v0")
        self.lane_mask_lt(16)
        a(f"ds_write_b32 v9, v8 offset:{LDS_CNT}")
        self.restore_exec()
        a("s_waitcnt lgkmcnt(0)")
        a.label("L_a_nc")
        a(f"s_mov_b32 s{S_ROLE}, 0")
        a(f"s_sub_u32 s{S_CB}, s{S_J}, {self.pj0}")
        a(f"s_cmp_lt_u32 s{S_CB}, 6")
        a("s_cbranch_scc0 L_a_np")
        a(f"s_mov_b32 s{S_ROLE}, 1")
        a(f"s_cmp_lt_u32 s{S_HW}, 6")
        a("s_cbranch_scc0 L_a_np")
        self.srd(SRD_W, S_WQ, 576 * 8192)
        a("v_lshrrev_b32 v3, 4, v0")
        a("v_lshlrev_b32 v3, 16, v3")
        a("v_and_b32 v1, 15, v0")
        a("v_lshl_add_u32 v1, v1, 4, v3")
        a(f"s_lshr_b32 s{S_T1}, s{S_CB}, 1")
        a(f"s_mul_i32 s{S_T1}, s{S_T1}, 6")
        a(f"s_add_u32 s{S_T1}, s{S_T1}, s{S_HW}")
        a(f"s_mov_b32 s{S_RIDX}, s{S_T1}")
        a(f"s_lshl_b32 s{S_UOFF}, s{S_T1}, 18")
        a(f"s_and_b32 s{S_T2}, s{S_CB}, 1")
        a(f"s_lshl_b32 s{S_T2}, s{S_T2}, 8")
        a(f"s_lshl_b32 s{S_T3}, s{S_HKV}, 9")
        a(f"s_add_u32 s{S_UOFF}, s{S_UOFF}, s{S_T2}")
        a(f"s_add_u32 s{S_UOFF}, s{S_UOFF}, s{S_T3}")
        for t in range(8):
            a(f"buffer_load_dwordx4 {vr(64+4*t,4)}, v1, {sr(SRD_W,4)}, s{S_UOFF} offen nt")
            if t < 7: a(f"s_add_u32 s{S_UOFF}, s{S_UOFF}, 8192")
        a("s_barrier")
        a("s_waitcnt vmcnt(8)")
        a("s_branch L_a_ln")
        a.label("L_a_np")
        a("s_barrier")
        a("s_waitcnt vmcnt(0)")
        a.label("L_a_ln")
        self.stamp(4)
        a(f"s_mul_i32 s{S_T3}, s{S_HW}, {XN_STRIDE}")
        self.layernorm(16, 32, 8, 0, LDS_XN, s_row=S_T3)
        self.stamp(2)
        self.helper_sync(3)
        if self.stop == 12: a("s_branch L_exit")
        a(f"s_xor_b32 s{S_TB}, s{S_TA}, 0x5bd1e995")
        a(f"s_add_u32 s{S_TB}, s{S_TB}, 0x7f4a7c15")
        a(f"s_add_u32 s{S_TA}, s{S_TA}, 0x9e3779b9")
        a(f"s_cmp_eq_u32 s{S_ROLE}, 0")
        a("s_cbranch_scc1 L_a_cons")
        a(f"s_cmp_lt_u32 s{S_HW}, 6")
        a("s_cbranch_scc0 L_a_pr")
        a("v_and_b32 v2, 7, v0")
        a(f"s_movk_i32 s{S_T0}, {XN_STRIDE}")
        a(f"v_mul_lo_u32 v2, v2, s{S_T0}")
        a("v_lshrrev_b32 v3, 4, v0")
        a("v_lshl_add_u32 v2, v3, 4, v2")
        a(f"s_lshl_b32 s{S_T1}, s{S_RIDX}, 6")
        a(f"v_add_u32 v2, s{S_T1}, v2")
        a(f"ds_read_b128 v[16:19], v2 offset:{LDS_XN}")
        a("s_waitcnt vmcnt(0)")
        self.stamp(7)
        self.perm_block(64, 0, 0, 8); self.perm_block(64, 0, 1, 12)
        a("s_waitcnt lgkmcnt(0)")
        for c in range(4):
            for e in range(2):
                j = 2 * c + e
                a(f"v_mfma_f32_16x16x32_bf16 {vr(32+4*j,4)}, {vr(8+4*e,4)}, v[16:19], 0")
                if c < 3: self.perm_block(64, c + 1, e, 8 + 4 * e)
        a("v_and_b32 v2, 15, v0")
        a("v_lshlrev_b32 v3, 9, v2")
        a("v_lshrrev_b32 v4, 4, v0")
        a("v_lshl_add_u32 v3, v4, 4, v3")
        a(f"s_lshl_b32 s{S_T1}, s{S_HW}, 12")
        a(f"s_add_u32 s{S_T1}, s{S_T1}, {LDS_QFP}")
        a(f"v_add_u32 v3, s{S_T1}, v3")
        a("v_cmp_gt_u32 vcc, 8, v2")
        a(f"s_and_saveexec_b64 {sr(S_EX,2)}, vcc")
        for j in range(8):
            a(f"ds_write_b128 v3, {vr(32+4*j,4)} offset:{j*64}")
        self.restore_exec()
        a.label("L_a_pr")
        self.helper_sync(4)
        a(f"s_lshl_b32 s{S_T1}, s{S_HW}, 9")
        a(f"s_add_u32 s{S_T1}, s{S_T1}, {LDS_QFP}")
        a("v_lshlrev_b32 v3, 3, v0")
        a(f"v_add_u32 v3, s{S_T1}, v3")
        for w in range(6):
            a(f"ds_read_b64 {vr(64+2*w,2)}, v3 offset:{w*4096}")
        a(f"s_lshr_b32 s{S_T0}, s{S_CB}, 1")
        a(f"s_mul_i32 s{S_T1}, s{S_HKV}, 3")
        a(f"s_add_u32 s{S_T0}, s{S_T0}, s{S_T1}")
        a(f"s_lshl_b32 s{S_T0}, s{S_T0}, 3")
        a(f"s_add_u32 s{S_T0}, s{S_T0}, s{S_HW}")
        a(f"s_lshl_b32 s{S_T0}, s{S_T0}, 11")
        a(f"s_and_b32 s{S_T1}, s{S_CB}, 1")
        a(f"s_lshl_b32 s{S_T1}, s{S_T1}, 10")
        a(f"s_add_u32 s{S_T0}, s{S_T0}, s{S_T1}")
        a(f"s_add_u32 s{S_T0}, s{S_T0}, {WS_QP}")
        a(f"v_mov_b32 v10, s{S_TA}")
        a(f"v_mov_b32 v11, s{S_TB}")
        a("v_lshlrev_b32 v3, 4, v0")
        a("s_waitcnt lgkmcnt(0)")
        for r in range(2):
            a(f"v_add_f32 v{64+r}, v{64+r}, v{66+r}")
            a(f"v_add_f32 v{68+r}, v{68+r}, v{70+r}")
            a(f"v_add_f32 v{72+r}, v{72+r}, v{74+r}")
            a(f"v_add_f32 v{64+r}, v{64+r}, v{68+r}")
            a(f"v_add_f32 v{8+r}, v{64+r}, v{72+r}")
        if self.qst == 1: a(f"buffer_store_dwordx4 v[8:11], v3, {sr(SRD_WS,4)}, s{S_T0} offen sc1")
        if self.qst == 5:
            a("s_mov_b64 exec, 0xffff")
            a(f"buffer_store_dwordx4 v[8:11], v3, {sr(SRD_WS,4)}, s{S_T0} offen sc1")
            a("s_mov_b64 exec, -1")
        if self.qst == 6:
            a(f"s_cmp_lt_u32 s{S_HW}, 2")
            a("s_cbranch_scc0 L_qst6")
            a(f"buffer_store_dwordx4 v[8:11], v3, {sr(SRD_WS,4)}, s{S_T0} offen sc1")
            a.label("L_qst6")
        if self.qst == 2: a(f"buffer_store_dwordx4 v[8:11], v3, {sr(SRD_WS,4)}, s{S_T0} offen")
        if self.qst == 3: a(f"buffer_store_dwordx4 v[8:11], v3, {sr(SRD_WS,4)}, s{S_T0} offen sc1 nt")
        if self.qst == 4: a(f"buffer_store_dwordx4 v[8:11], v3, {sr(SRD_WS,4)}, s{S_T0} offen sc0 sc1")
        self.stamp(6)
        a.label("L_a_cons")
        a(f"s_sub_u32 s{S_T3}, s{S_HW}, 2")
        a(f"s_cmp_lt_u32 s{S_T3}, 2")
        a("s_cbranch_scc0 L_a_B2")
        if self.stop == 13: a("s_branch L_exit")
        a(f"s_mul_i32 s{S_T1}, s{S_HKV}, {3*16384}")
        a(f"s_lshl_b32 s{S_T2}, s{S_B}, 11")
        a(f"s_add_u32 s{S_T1}, s{S_T1}, s{S_T2}")
        a(f"s_lshl_b32 s{S_T2}, s{S_T3}, 10")
        a(f"s_add_u32 s{S_T1}, s{S_T1}, s{S_T2}")
        a(f"s_add_u32 s{S_T1}, s{S_T1}, {WS_QP}")
        a("v_lshlrev_b32 v3, 4, v0")
        a(f"s_mov_b32 s{S_SPIN}, 0")
        a.label("L_q_poll")
        a(f"s_mov_b32 s{S_T0}, s{S_T1}")
        for p in range(3):
            a(f"buffer_load_dwordx4 {vr(64+4*p,4)}, v3, {sr(SRD_WS,4)}, s{S_T0} offen {self.qfl}")
            if p < 2: a(f"s_add_u32 s{S_T0}, s{S_T0}, 16384")
        a("s_waitcnt vmcnt(0)")
        a(f"v_xor_b32 v4, s{S_TA}, v66")
        a(f"v_xor_b32 v5, s{S_TB}, v67")
        a("v_or_b32 v4, v4, v5")
        for p in range(1, 3):
            a(f"v_xor_b32 v5, s{S_TA}, v{64+4*p+2}")
            a(f"v_xor_b32 v6, s{S_TB}, v{64+4*p+3}")
            a("v_or3_b32 v4, v4, v5, v6")
        a("v_cmp_ne_u32 vcc, 0, v4")
        if self.qfix == 0: a("s_cbranch_vccz L_q_ok")
        self.spin("L_q_poll", self.qsleep, 0x40000 if self.qfix == 0 else self.qfix)
        a.label("L_q_ok")
        self.stamp(8)
        for r in range(2):
            a(f"v_add_f32 v{64+r}, v{64+r}, v{68+r}")
            a(f"v_add_f32 v{64+r}, v{64+r}, v{72+r}")
        a("v_cvt_pk_bf16_f32 v64, v64, v65")
        a("v_lshrrev_b32 v5, 3, v0")
        a("v_and_b32 v6, 7, v0")
        a("v_lshlrev_b32 v4, 5, v6")
        a("v_lshl_add_u32 v4, v5, 1, v4")
        a(f"s_lshl_b32 s{S_T2}, s{S_T3}, 8")
        a(f"v_add_u32 v4, s{S_T2}, v4")
        a(f"ds_write_b16 v4, v64 offset:{LDS_Q}")
        a(f"ds_write_b16_d16_hi v4, v64 offset:{LDS_Q+16}")
        if self.debug:
            a("v_lshlrev_b32 v12, 16, v64")
            a("v_and_b32 v13, 0xffff0000, v64")
            a(f"s_lshl_b32 s{S_T0}, s2, 10")
            a(f"s_add_u32 s{S_T0}, s{S_T0}, {WS_DBG}")
            a("v_lshlrev_b32 v10, 1, v4")
            a(f"buffer_store_dword v12, v10, {sr(SRD_WS,4)}, s{S_T0} offen")
            a(f"buffer_store_dword v13, v10, {sr(SRD_WS,4)}, s{S_T0} offen offset:32")
        a("s_waitcnt lgkmcnt(0)")
        a(f"v_mov_b32 v3, {LDS_CNT + 20}")
        a("v_mov_b32 v4, 1")
        a("s_mov_b64 exec, 1")
        a("ds_add_u32 v3, v4")
        a("s_mov_b64 exec, -1")
        a.label("L_a_B2")
        if self.stop in (1, 13): a("s_branch L_exit")
        self.stamp(3)
        self.helper_mid()
        self.stamp(1)
        if self.stop == 2: a("s_branch L_exit")
        a("s_branch L_B4")

    def role_decode(self):
        a = self.a
        a(f"s_mov_b32 s{S_ROLE}, {ROLE_NONE}")
        a(f"s_mov_b32 s{S_RIDX}, 0")
        a(f"s_cmp_lt_u32 s{S_J}, 10")
        a("s_cbranch_scc0 L_rd_hi")
        a(f"s_cmp_eq_u32 s{S_SPLIT}, 0")
        a("s_cbranch_scc1 L_rd_even")
        a(f"s_mov_b32 s{S_ROLE}, {ROLE_A}")
        a(f"s_mov_b32 s{S_RIDX}, s{S_B}")
        a("s_branch L_rd_done")
        a.label("L_rd_even")
        a(f"s_lshl_b32 s{S_T0}, s{S_B}, 4")
        a(f"s_add_u32 s{S_T0}, s{S_T0}, s{S_HKV}")
        a(f"s_cmp_lt_u32 s{S_T0}, 72")
        a("s_cbranch_scc0 L_rd_red2")
        a(f"s_mov_b32 s{S_ROLE}, {ROLE_C}")
        a(f"s_mov_b32 s{S_RIDX}, s{S_T0}")
        a("s_branch L_rd_done")
        a.label("L_rd_red2")
        a(f"s_cmp_lt_u32 s{S_HKV}, 10")
        a("s_cbranch_scc0 L_rd_done")
        a(f"s_add_u32 s{S_R}, s{S_HKV}, 8")
        a("s_branch L_rd_done")
        a.label("L_rd_hi")
        a(f"s_cmp_eq_u32 s{S_J}, 15")
        a("s_cbranch_scc1 L_rd_red")
        a(f"s_mov_b32 s{S_ROLE}, {ROLE_B}")
        a(f"s_sub_u32 s{S_RIDX}, s{S_J}, 10")
        a("s_branch L_rd_done")
        a.label("L_rd_red")
        a(f"s_mov_b32 s{S_R}, s{S_HKV}")
        a.label("L_rd_done")

    def helper_sync(self, idx):
        a = self.a
        lab = a.newlabel("L_hs")
        a("s_waitcnt lgkmcnt(0)")
        a(f"v_mov_b32 v3, {LDS_CNT + 4*idx}")
        a("v_mov_b32 v4, 1")
        a("s_mov_b64 exec, 1")
        a("ds_add_u32 v3, v4")
        a("s_mov_b64 exec, -1")
        a(f"s_mov_b32 s{S_SPIN}, 0")
        a.label(lab)
        a("ds_read_b32 v4, v3")
        a("s_waitcnt lgkmcnt(0)")
        a(f"v_readfirstlane_b32 s{S_T0}, v4")
        a(f"s_cmp_ge_u32 s{S_T0}, 8")
        a(f"s_cbranch_scc1 {lab}_done")
        self.spin(lab, self.hsleep, 0x100000)
        a.label(lab + "_done")

    def wait_tiles(self, thr):
        a = self.a
        lab = a.newlabel("L_wt")
        a(f"s_mov_b32 s{S_SPIN}, 0")
        a(f"v_mov_b32 v3, {LDS_CNT + 32}")
        a.label(lab)
        a("ds_read_b32 v4, v3")
        a("s_waitcnt lgkmcnt(0)")
        a(f"v_readfirstlane_b32 s{S_T0}, v4")
        a(f"s_cmp_ge_u32 s{S_T0}, {thr}")
        a(f"s_cbranch_scc1 {lab}_done")
        self.spin(lab, 32, 0x10000)
        a.label(lab + "_done")

    def poll_counter(self, target):
        a = self.a
        lab = a.newlabel("L_pc")
        a(f"s_mov_b32 s{S_SPIN}, 0")
        a("v_mov_b32 v3, 0")
        a.label(lab)
        a(f"global_load_dword v4, v3, {sr(S_DBG,2)} sc1")
        a("s_waitcnt vmcnt(0)")
        a(f"v_readfirstlane_b32 s{S_T0}, v4")
        a(f"s_cmp_ge_u32 s{S_T0}, {target}")
        a(f"s_cbranch_scc1 {lab}_done")
        self.spin(lab, 32, 0x10000)
        a.label(lab + "_done")

    def helper_mid(self):
        a = self.a
        KT = self.KT; TS = 32 // KT
        self.role_decode()
        a(f"s_cmp_lg_u32 s{S_HW}, 7")
        a("s_cbranch_scc1 L_reset_done")
        for k in range(4, 8): a(f"v_mov_b32 v{k}, -1")
        a("v_lshlrev_b32 v3, 4, v0")
        a(f"s_lshl_b32 s{S_T0}, s{S_HKV}, 4")
        a(f"s_add_u32 s{S_T0}, s{S_T0}, s{S_J}")
        a(f"s_lshl_b32 s{S_T0}, s{S_T0}, 11")
        a(f"buffer_store_dwordx4 v[4:7], v3, {sr(SRD_WS,4)}, s{S_T0} offen sc1")
        a(f"buffer_store_dwordx4 v[4:7], v3, {sr(SRD_WS,4)}, s{S_T0} offen offset:1024 sc1")
        a(f"s_cmp_eq_u32 s{S_ROLE}, {ROLE_NONE}")
        a("s_cbranch_scc1 L_reset_sig")
        a(f"s_cmp_eq_u32 s{S_ROLE}, {ROLE_C}")
        a("s_cbranch_scc1 L_reset_c")
        a(f"s_mul_i32 s{S_T0}, s{S_HKV}, 5")
        a(f"s_add_u32 s{S_T0}, s{S_T0}, s{S_RIDX}")
        a(f"s_lshl_b32 s{S_T0}, s{S_T0}, 12")
        a(f"s_cmp_eq_u32 s{S_ROLE}, {ROLE_A}")
        a(f"s_mov_b32 s{S_T2}, {WS_F2}")
        a(f"s_cselect_b32 s{S_T1}, {WS_P2}, s{S_T2}")
        a(f"s_add_u32 s{S_T0}, s{S_T0}, s{S_T1}")
        for k in range(4):
            a(f"buffer_store_dwordx4 v[4:7], v3, {sr(SRD_WS,4)}, s{S_T0} offen offset:{k*1024} sc1")
        a("s_branch L_reset_sig")
        a.label("L_reset_c")
        self.h_addr()
        a(f"buffer_store_dwordx4 v[4:7], v8, {sr(SRD_WS,4)}, s{S_T0} offen sc1")
        a.label("L_reset_sig")
        a("s_waitcnt vmcnt(0)")
        a("v_mov_b32 v3, 0")
        a("v_mov_b32 v4, 1")
        a("s_mov_b64 exec, 1")
        a(f"global_atomic_add v3, v4, {sr(S_DBG,2)} sc1")
        a("s_mov_b64 exec, -1")
        a.label("L_reset_done")
        self.stamp(11)
        a(f"s_cmp_eq_u32 s{S_ROLE}, {ROLE_C}")
        a("s_cbranch_scc1 L_role_c")
        a(f"s_cmp_eq_u32 s{S_ROLE}, {ROLE_NONE}")
        a("s_cbranch_scc1 L_role_none")
        self.w_prefetch()
        a(f"s_cmp_eq_u32 s{S_ROLE}, {ROLE_B}")
        a("s_cbranch_scc1 L_role_b")
        a(f"s_cmp_lg_u32 s{S_HW}, 0")
        a("s_cbranch_scc1 L_mid_done")
        self.wait_tiles(80 * TS)
        self.poll_counter(256)
        a("s_branch L_mid_done")
        a.label("L_role_b")
        self.role_b()
        a("s_branch L_mid_done")
        a.label("L_role_c")
        self.role_c()
        a("s_branch L_mid_done")
        a.label("L_role_none")
        a(f"s_cmp_lt_i32 s{S_R}, 0")
        a("s_cbranch_scc1 L_mid_done")
        a(f"s_cmp_lg_u32 s{S_HW}, 0")
        a("s_cbranch_scc1 L_mid_done")
        self.reducer_pre()
        a.label("L_mid_done")

    def h_addr(self):
        a = self.a
        a("v_lshrrev_b32 v8, 3, v0")
        a(f"s_movk_i32 s{S_T1}, 9216")
        a(f"v_mul_lo_u32 v8, v8, s{S_T1}")
        a("v_and_b32 v9, 7, v0")
        a("v_lshl_add_u32 v8, v9, 4, v8")
        a(f"s_lshl_b32 s{S_T0}, s{S_RIDX}, 7")
        a(f"s_add_u32 s{S_T0}, s{S_T0}, {WS_H}")

    def w_unit_to_lds(self, kb_sgpr):
        a = self.a
        a(f"s_lshl_b32 s{S_T0}, s{kb_sgpr}, 13")
        a("v_lshlrev_b32 v3, 4, v0")
        a(f"v_add_u32 v3, s{S_T0}, v3")
        a(f"v_add_u32 v3, {LDS_W}, v3")
        for c in range(4):
            for e in range(2):
                j = 2 * c + e
                T = 8 + 4 * (j & 3)
                self.perm_block(64, c, e, T)
                a(f"ds_write_b128 v3, {vr(T,4)} offset:{j*1024}")

    def w_prefetch(self):
        a = self.a
        a(f"s_cmp_eq_u32 s{S_ROLE}, {ROLE_B}")
        a("s_cbranch_scc1 L_wp_b")
        self.srd(SRD_W, S_WO, 0 if (self.nowt & 1) else 4096 * 1152)
        a("v_lshrrev_b32 v3, 4, v0")
        a("v_and_b32 v4, 1, v3")
        a("v_lshlrev_b32 v4, 6, v4")
        a("v_lshrrev_b32 v3, 1, v3")
        a("v_add_u32 v3, v3, v4")
        a(f"s_lshl_b32 s{S_T0}, s{S_HKV}, 8")
        a(f"s_lshr_b32 s{S_T1}, s{S_HW}, 2")
        a(f"s_lshl_b32 s{S_T1}, s{S_T1}, 7")
        a(f"s_add_u32 s{S_T0}, s{S_T0}, s{S_T1}")
        a(f"s_and_b32 s{S_T1}, s{S_HW}, 3")
        a(f"s_lshl_b32 s{S_T1}, s{S_T1}, 1")
        a(f"s_add_u32 s{S_T0}, s{S_T0}, s{S_T1}")
        a(f"s_movk_i32 s{S_STRIDE}, {8*1152}")
        a("s_branch L_wp_go")
        a.label("L_wp_b")
        self.srd(SRD_W, S_WD, 0 if (self.nowt & 1) else 4608 * 1152)
        a("v_lshrrev_b32 v3, 4, v0")
        a("v_lshlrev_b32 v3, 3, v3")
        a(f"s_mul_i32 s{S_T0}, s{S_HKV}, 288")
        a(f"s_lshl_b32 s{S_T1}, s{S_HW}, 5")
        a(f"s_add_u32 s{S_T0}, s{S_T0}, s{S_T1}")
        a(f"s_movk_i32 s{S_STRIDE}, 1152")
        a.label("L_wp_go")
        a(f"s_movk_i32 s{S_T1}, 1152")
        a(f"v_mul_lo_u32 v3, v3, s{S_T1}")
        a("v_and_b32 v1, 15, v0")
        a("v_lshl_add_u32 v1, v1, 4, v3")
        a(f"s_mul_i32 s{S_UOFF}, s{S_T0}, 1152")
        a(f"s_lshl_b32 s{S_T1}, s{S_RIDX}, 8")
        a(f"s_add_u32 s{S_UOFF}, s{S_UOFF}, s{S_T1}")
        a(f"s_mov_b32 s{S_CNT}, s{S_HW}")
        a.label("L_wp_loop")
        a(f"s_mov_b32 s{S_T2}, s{S_UOFF}")
        for t in range(8):
            a(f"buffer_load_dwordx4 {vr(64+4*t,4)}, v1, {sr(SRD_W,4)}, s{S_T2} offen nt")
            if t < 7: a(f"s_add_u32 s{S_T2}, s{S_T2}, s{S_STRIDE}")
        a("s_waitcnt vmcnt(0)")
        self.w_unit_to_lds(S_CNT)
        a(f"s_cmp_eq_u32 s{S_ROLE}, {ROLE_B}")
        a("s_cbranch_scc0 L_wp_done")
        a(f"s_cmp_eq_u32 s{S_CNT}, 0")
        a("s_cbranch_scc0 L_wp_done")
        a(f"s_mov_b32 s{S_CNT}, 8")
        a(f"s_add_u32 s{S_UOFF}, s{S_UOFF}, {256*1152}")
        a("s_branch L_wp_loop")
        a.label("L_wp_done")
        a("s_waitcnt lgkmcnt(0)")

    def proj(self, nkb, a_imm, a_stride, wave_sgpr, tag, preloaded=False):
        a = self.a
        if not preloaded:
            self.proj_preload(nkb, wave_sgpr)
        a("v_and_b32 v2, 7, v0")
        a(f"s_movk_i32 s{S_T0}, {a_stride}")
        a(f"v_mul_lo_u32 v2, v2, s{S_T0}")
        a("v_lshrrev_b32 v3, 4, v0")
        a("v_lshl_add_u32 v2, v3, 4, v2")
        AR = [4 + 4 * k for k in range(7)] + [100, 104]
        for kb in range(nkb):
            a(f"ds_read_b128 {vr(AR[kb],4)}, v2 offset:{a_imm + kb*64}")
        for kb in range(nkb):
            a(f"s_waitcnt lgkmcnt({nkb-1-kb})")
            c = "0" if kb == 0 else "v[32:35]"
            a(f"v_mfma_f32_16x16x32_bf16 v[32:35], {vr(AR[kb],4)}, {vr(64+4*kb,4)}, {c}")

    def proj_preload(self, nkb, wave_sgpr):
        a = self.a
        a(f"s_lshl_b32 s{S_T0}, s{wave_sgpr}, 10")
        a("v_lshlrev_b32 v3, 4, v0")
        a(f"v_add_u32 v3, s{S_T0}, v3")
        a(f"v_add_u32 v3, {LDS_W}, v3")
        for kb in range(nkb):
            if kb < 8:
                a(f"ds_read_b128 {vr(64+4*kb,4)}, v3 offset:{kb*8192}")
            else:
                a("v_add_u32 v2, 0x10000, v3")
                a(f"ds_read_b128 {vr(64+4*kb,4)}, v2 offset:{(kb-8)*8192}")

    def publish4(self, acc):
        a = self.a
        for k in range(4):
            a(f"v_min_u32 v{acc+k}, s{S_SENTM1}, v{acc+k}")
        a("v_and_b32 v3, 15, v0")
        a("v_lshlrev_b32 v3, 5, v3")
        a("v_lshrrev_b32 v2, 4, v0")
        a("v_lshl_add_u32 v3, v2, 4, v3")
        self.lane_mask_lt(32)
        a(f"buffer_store_dwordx4 {vr(acc,4)}, v3, {sr(SRD_WS,4)}, s{S_T0} offen sc1")
        self.restore_exec()

    def role_b(self):
        a = self.a
        TS = 32 // self.KT
        self.wait_tiles(48 * TS)
        self.poll_counter(256)
        a(f"s_mul_i32 s{S_T1}, s{S_HW}, 9216")
        a(f"s_mul_i32 s{S_T2}, s{S_HKV}, 576")
        a(f"s_add_u32 s{S_T1}, s{S_T1}, s{S_T2}")
        a(f"s_add_u32 s{S_T1}, s{S_T1}, {WS_H}")
        a("v_lshlrev_b32 v5, 4, v0")
        self.lane_mask_lt(36)
        a(f"s_mov_b32 s{S_SPIN}, 0")
        a.label("L_b_poll")
        a(f"buffer_load_dwordx4 v[8:11], v5, {sr(SRD_WS,4)}, s{S_T1} offen sc1")
        a("s_waitcnt vmcnt(0)")
        a("v_max3_u32 v6, v8, v9, v10")
        a("v_max_u32 v6, v6, v11")
        a("v_cmp_eq_u32 vcc, -1, v6")
        a("s_cbranch_vccz L_b_ok")
        self.spin("L_b_poll", 64, 0x8000)
        a.label("L_b_ok")
        a(f"s_mul_i32 s{S_T1}, s{S_HW}, {H_STRIDE}")
        a(f"v_add_u32 v5, s{S_T1}, v5")
        a(f"ds_write_b128 v5, v[8:11] offset:{LDS_H}")
        self.restore_exec()
        self.helper_sync(0)
        self.proj(9, LDS_H, H_STRIDE, S_HW, "b")
        a(f"s_mul_i32 s{S_T0}, s{S_HKV}, 5")
        a(f"s_add_u32 s{S_T0}, s{S_T0}, s{S_RIDX}")
        a(f"s_lshl_b32 s{S_T0}, s{S_T0}, 12")
        a(f"s_lshl_b32 s{S_T1}, s{S_HW}, 9")
        a(f"s_add_u32 s{S_T0}, s{S_T0}, s{S_T1}")
        a(f"s_add_u32 s{S_T0}, s{S_T0}, {WS_F2}")
        self.publish4(32)

    def role_c(self):
        a = self.a
        self.srd(SRD_W, S_WG, 0 if (self.nowt & 2) else 576 * 9216)
        self.srd(SRD_W2, S_WU, 0 if (self.nowt & 2) else 576 * 9216)
        a("v_lshrrev_b32 v3, 4, v0")
        a(f"s_mov_b32 s{S_T1}, {8*9216}")
        a(f"v_mul_lo_u32 v3, v3, s{S_T1}")
        a("v_and_b32 v1, 7, v0")
        a("v_lshl_add_u32 v1, v1, 4, v3")
        a(f"s_mul_i32 s{S_UOFF}, s{S_HW}, {32*9216}")
        a(f"s_lshl_b32 s{S_T1}, s{S_RIDX}, 7")
        a(f"s_add_u32 s{S_UOFF}, s{S_UOFF}, s{S_T1}")
        def issue(buf):
            a(f"s_mov_b32 s{S_T2}, s{S_UOFF}")
            a("s_mov_b32 exec_lo, 0x00ff00ff"); a("s_mov_b32 exec_hi, 0x00ff00ff")
            for t in range(8):
                a(f"buffer_load_dwordx4 {vr(buf+4*t,4)}, v1, {sr(SRD_W,4)}, s{S_T2} offen nt")
                a(f"s_add_u32 s{S_T2}, s{S_T2}, 9216")
            a(f"s_mov_b32 s{S_T2}, s{S_UOFF}")
            a("s_mov_b32 exec_lo, 0xff00ff00"); a("s_mov_b32 exec_hi, 0xff00ff00")
            for t in range(8):
                a(f"buffer_load_dwordx4 {vr(buf+4*t,4)}, v1, {sr(SRD_W2,4)}, s{S_T2} offen nt")
                a(f"s_add_u32 s{S_T2}, s{S_T2}, 9216")
            a("s_mov_b64 exec, -1")
            a(f"s_add_u32 s{S_UOFF}, s{S_UOFF}, {8*32*9216}")
        issue(64); issue(96)
        a("v_and_b32 v2, 7, v0")
        a(f"s_movk_i32 s{S_T0}, {XN_STRIDE}")
        a(f"v_mul_lo_u32 v2, v2, s{S_T0}")
        a("v_lshrrev_b32 v3, 4, v0")
        a("v_lshl_add_u32 v2, v3, 4, v2")
        a(f"s_lshl_b32 s{S_T1}, s{S_HW}, 6")
        a(f"v_add_u32 v2, s{S_T1}, v2")
        for k in range(32): a(f"v_mov_b32 v{32+k}, 0")
        def process(buf, u, vm):
            a(f"ds_read_b128 v[16:19], v2 offset:{LDS_XN + u*512}")
            a(f"s_waitcnt vmcnt({vm})")
            self.perm_block(buf, 0, 0, 8); self.perm_block(buf, 0, 1, 12)
            a("s_waitcnt lgkmcnt(0)")
            for c in range(4):
                for e in range(2):
                    j = 2 * c + e
                    a(f"v_mfma_f32_16x16x32_bf16 {vr(32+4*j,4)}, v[16:19], {vr(8+4*e,4)}, {vr(32+4*j,4)}")
                    if c < 3: self.perm_block(buf, c + 1, e, 8 + 4 * e)
        process(64, 0, 16)
        a(f"s_cmp_ge_u32 s{S_HW}, 2")
        a("s_cbranch_scc1 L_c_u1")
        issue(64)
        process(96, 1, 16)
        process(64, 2, 0)
        a("s_branch L_c_ud")
        a.label("L_c_u1")
        process(96, 1, 0)
        a.label("L_c_ud")
        a(f"s_lshl_b32 s{S_T0}, s{S_HW}, 12")
        a("v_and_b32 v3, 15, v0")
        a("v_lshlrev_b32 v3, 8, v3")
        a("v_lshrrev_b32 v4, 4, v0")
        a("v_lshl_add_u32 v3, v4, 4, v3")
        a(f"v_add_u32 v3, s{S_T0}, v3")
        self.lane_mask_lt(32)
        for j in range(8):
            a(f"ds_write_b128 v3, {vr(32+4*j,4)} offset:{LDS_FP + j*32}")
        self.restore_exec()
        self.helper_sync(1)
        a(f"s_lshl_b32 s{S_T0}, s{S_HW}, 6")
        a(f"v_add_u32 v3, s{S_T0}, v0")
        a("v_lshlrev_b32 v4, 2, v3")
        a(f"v_add_u32 v4, {LDS_FP}, v4")
        for k in range(8):
            a(f"ds_read_b32 v{8+k}, v4 offset:{k*4096}")
        for k in range(8):
            a(f"ds_read_b32 v{16+k}, v4 offset:{k*4096 + 2048}")
        a("s_waitcnt lgkmcnt(0)")
        for base in (8, 16):
            for k in range(4):
                a(f"v_add_f32 v{base+k}, v{base+k}, v{base+4+k}")
            a(f"v_add_f32 v{base}, v{base}, v{base+2}")
            a(f"v_add_f32 v{base+1}, v{base+1}, v{base+3}")
            a(f"v_add_f32 v{base}, v{base}, v{base+1}")
            self.rne(base)
        a(f"v_mul_f32 v10, s{S_LOG2E}, v8")
        a("v_exp_f32 v10, -v10")
        a("v_add_f32 v10, 1.0, v10")
        a("v_rcp_f32 v12, v10")
        a("v_mul_f32 v14, v8, v12")
        a("v_fma_f32 v18, -v14, v10, v8")
        a("v_fma_f32 v14, v18, v12, v14")
        self.rne(14)
        a("v_mul_f32 v14, v14, v16")
        a("v_cvt_pk_bf16_f32 v14, v14, v14")
        a("v_lshrrev_b32 v5, 3, v3")
        a("v_and_b32 v6, 7, v3")
        a("v_lshlrev_b32 v6, 7, v6")
        a("v_lshl_add_u32 v6, v5, 1, v6")
        a(f"ds_write_b16 v6, v14 offset:{LDS_H}")
        self.helper_sync(2)
        a(f"s_cmp_lg_u32 s{S_HW}, 0")
        a("s_cbranch_scc1 L_c_done")
        a("v_lshlrev_b32 v3, 4, v0")
        a(f"ds_read_b128 v[4:7], v3 offset:{LDS_H}")
        self.h_addr()
        a("s_waitcnt lgkmcnt(0)")
        for k in range(4, 8):
            a(f"v_min_u32 v{k}, s{S_SENTM1}, v{k}")
        a(f"buffer_store_dwordx4 v[4:7], v8, {sr(SRD_WS,4)}, s{S_T0} offen sc1")
        a.label("L_c_done")

    def reducer_addr(self):
        a = self.a
        a(f"s_lshr_b32 s{S_CB}, s{S_R}, 2")
        a(f"s_and_b32 s{S_T1}, s{S_R}, 3")
        a("v_and_b32 v2, 7, v0")
        a("v_bfe_u32 v3, v0, 3, 2")
        a(f"s_lshl_b32 s{S_T1}, s{S_T1}, 2")
        a(f"v_add_u32 v3, s{S_T1}, v3")
        a("v_lshrrev_b32 v4, 5, v0")
        a("v_lshlrev_b32 v1, 9, v2")
        a("v_lshl_add_u32 v1, v3, 5, v1")
        a("v_lshl_add_u32 v1, v4, 4, v1")
        a(f"s_lshl_b32 s{S_T2}, s{S_CB}, 12")
        a(f"v_add_u32 v1, s{S_T2}, v1")
        a("v_lshl_add_u32 v5, v3, 3, v2")
        a(f"s_lshl_b32 s{S_T2}, s{S_CB}, 7")
        a(f"v_add_u32 v5, s{S_T2}, v5")

    def poll_sum(self, n, base_imm, stride, acc, buf, tag, sleep=2):
        a = self.a
        a(f"s_mov_b32 s{S_SPIN}, 0")
        a.label(f"L_ps_{tag}")
        a(f"s_mov_b32 s{S_T0}, {base_imm}")
        for k in range(n):
            a(f"buffer_load_dwordx4 {vr(buf+4*k,4)}, v1, {sr(SRD_WS,4)}, s{S_T0} offen sc1")
            if k < n - 1:
                a(f"s_add_u32 s{S_T0}, s{S_T0}, {stride}")
        a("s_waitcnt vmcnt(0)")
        a(f"v_max_u32 v6, v{buf}, v{buf+1}")
        k = 2
        while k < 4 * n:
            a(f"v_max3_u32 v6, v6, v{buf+k}, v{buf+k+1}")
            k += 2
        a("v_cmp_eq_u32 vcc, -1, v6")
        a(f"s_cbranch_vccz L_ps_{tag}_done")
        self.spin(f"L_ps_{tag}", sleep, 0x40000)
        a.label(f"L_ps_{tag}_done")
        m = n
        while m > 1:
            for k in range(m // 2):
                for r in range(4):
                    a(f"v_add_f32 v{buf+4*k+r}, v{buf+4*k+r}, v{buf+4*(k+m//2)+r}")
            m //= 2
        for r in range(4):
            a(f"v_mov_b32 v{acc+r}, v{buf+r}")

    def reducer_pre(self):
        a = self.a
        TS = 32 // self.KT
        self.wait_tiles(100 * TS)
        self.poll_counter(256)
        self.reducer_addr()
        self.poll_sum(16, WS_F2, 20480, 8, 64, "f2", sleep=32)
        for r in range(4): self.rne(8 + r)
        self.srd(SRD_X, S_X, 8 * 1152)
        a("v_lshrrev_b32 v4, 5, v0")
        a(f"s_movk_i32 s{S_T0}, {4*1152}")
        a(f"v_mul_lo_u32 v4, v4, s{S_T0}")
        a("v_lshl_add_u32 v7, v5, 1, v4")
        for r in range(4):
            a(f"buffer_load_ushort v{12+r}, v7, {sr(SRD_X,4)}, 0 offen offset:{r*1152}")
        a("s_waitcnt vmcnt(0)")
        for r in range(4):
            a(f"v_lshlrev_b32 v{12+r}, 16, v{12+r}")

    def tail(self):
        a = self.a
        NS = self.NS
        a.label("L_B4")
        a("s_barrier")
        self.stamp(5)
        a("s_setprio 0")
        a("v_mbcnt_lo_u32_b32 v0, -1, 0")
        a("v_mbcnt_hi_u32_b32 v0, -1, v0")
        a(f"s_cmp_lg_u32 s{S_WAVE}, 0")
        a("s_cbranch_scc1 L_nomerge")
        a("v_lshlrev_b32 v2, 4, v0")
        a("v_lshrrev_b32 v3, 5, v0")
        a("v_lshlrev_b32 v3, 3, v3")
        for w in range(NS):
            a(f"ds_read_b64 {vr(16+2*w,2)}, v3 offset:{LDS_SP + w*SP_STRIDE + 1024}")
        for w in range(NS):
            a(f"ds_read_b128 {vr(32+4*w,4)}, v2 offset:{LDS_SP + w*SP_STRIDE}")
        a(f"s_waitcnt lgkmcnt({NS})")
        a("v_max_f32 v4, v16, v18")
        for w in range(2, NS):
            a(f"v_max_f32 v4, v4, v{16+2*w}")
        for w in range(NS):
            a(f"v_sub_f32 v{16+2*w}, v{16+2*w}, v4")
            a(f"v_mul_f32 v{16+2*w}, s{S_LOG2E}, v{16+2*w}")
            a(f"v_exp_f32 v{16+2*w}, v{16+2*w}")
        a("v_mul_f32 v5, v16, v17")
        for w in range(1, NS):
            a(f"v_fmac_f32 v5, v{16+2*w}, v{17+2*w}")
        a("s_waitcnt lgkmcnt(0)")
        for r in range(4):
            a(f"v_mul_f32 v{8+r}, v16, v{32+r}")
        for w in range(1, NS):
            for r in range(4):
                a(f"v_fmac_f32 v{8+r}, v{16+2*w}, v{32+4*w+r}")
        for r in range(4):
            a(f"v_min_u32 v{8+r}, s{S_SENTM1}, v{8+r}")
        a(f"v_min_u32 v4, s{S_SENTM1}, v4")
        a(f"v_min_u32 v5, s{S_SENTM1}, v5")
        a(f"s_lshl_b32 s{S_T0}, s{S_HKV}, 4")
        a(f"s_add_u32 s{S_T0}, s{S_T0}, s{S_J}")
        a(f"s_lshl_b32 s{S_T0}, s{S_T0}, 11")
        a(f"buffer_store_dwordx4 v[8:11], v2, {sr(SRD_WS,4)}, s{S_T0} offen sc1")
        a(f"v_readlane_b32 s{S_T1}, v4, 32")
        a(f"v_readlane_b32 s{S_T2}, v5, 32")
        a("v_mov_b32 v12, v4")
        a("v_mov_b32 v13, v5")
        a(f"v_mov_b32 v14, s{S_T1}")
        a(f"v_mov_b32 v15, s{S_T2}")
        a("v_mov_b32 v3, 0")
        a("s_mov_b64 exec, 1")
        a(f"buffer_store_dwordx4 v[12:15], v3, {sr(SRD_WS,4)}, s{S_T0} offen offset:1024 sc1")
        a("s_mov_b64 exec, -1")
        self.stamp(6)
        a.label("L_nomerge")
        a(f"s_cmp_lt_u32 s{S_J}, 10")
        a("s_cbranch_scc0 L_notcons")
        a(f"s_cmp_eq_u32 s{S_SPLIT}, 1")
        a("s_cbranch_scc1 L_consumer")
        a.label("L_notcons")
        a(f"s_cmp_lg_u32 s{S_WAVE}, 8")
        a("s_cbranch_scc1 L_end")
        a(f"s_cmp_lt_i32 s{S_R}, 0")
        a("s_cbranch_scc1 L_end")
        self.poll_sum(16, WS_P2, 20480, 16, 64, "p2", sleep=1)
        self.stamp(7)
        for r in range(4):
            self.rne(16 + r)
            a(f"v_add_f32 v{16+r}, v{12+r}, v{16+r}")
            self.rne(16 + r)
            a(f"v_add_f32 v{16+r}, v{16+r}, v{8+r}")
            a(f"v_cvt_pk_bf16_f32 v{16+r}, v{16+r}, v{16+r}")
        self.srd(SRD_X, S_OUT, 8 * 1152)
        for r in range(4):
            a(f"buffer_store_short v{16+r}, v7, {sr(SRD_X,4)}, 0 offen offset:{r*1152}")
        a(f"s_cmp_lg_u32 s{S_R}, 0")
        a("s_cbranch_scc1 L_end")
        a(f"v_mov_b32 v3, s{S_TA}")
        a("v_mov_b32 v2, 0")
        a(f"s_mov_b32 s{S_T0}, {WS_GEN}")
        a("s_mov_b64 exec, 1")
        a(f"buffer_store_dword v3, v2, {sr(SRD_WS,4)}, s{S_T0} offen sc1")
        a("s_mov_b64 exec, -1")
        a("s_branch L_end")
        a.label("L_consumer")
        a(f"s_cmp_ge_u32 s{S_WAVE}, 8")
        a("s_cbranch_scc1 L_c_nopre")
        self.proj_preload(8, S_WAVE)
        a.label("L_c_nopre")
        a(f"s_lshr_b32 s{S_T1}, s{S_WAVE}, 1")
        a(f"s_and_b32 s{S_T2}, s{S_WAVE}, 1")
        a(f"s_lshl_b32 s{S_T0}, s{S_HKV}, 4")
        a(f"s_lshl_b32 s{S_T3}, s{S_T1}, 1")
        a(f"s_add_u32 s{S_T0}, s{S_T0}, s{S_T3}")
        a(f"s_lshl_b32 s{S_T0}, s{S_T0}, 11")
        a("v_lshrrev_b32 v2, 5, v0")
        a("v_lshlrev_b32 v2, 11, v2")
        a("v_and_b32 v3, 31, v0")
        a("v_lshl_add_u32 v3, v3, 4, v2")
        a(f"s_lshl_b32 s{S_T3}, s{S_T2}, 9")
        a(f"v_add_u32 v3, s{S_T3}, v3")
        a(f"s_mov_b32 s{S_SPIN}, 0")
        a.label("L_c_poll")
        a(f"buffer_load_dwordx4 v[8:11], v3, {sr(SRD_WS,4)}, s{S_T0} offen sc1")
        a(f"buffer_load_dwordx4 v[12:15], v2, {sr(SRD_WS,4)}, s{S_T0} offen offset:1024 sc1")
        a("s_waitcnt vmcnt(0)")
        a("v_max3_u32 v6, v8, v9, v10")
        a("v_max3_u32 v6, v6, v11, v12")
        a("v_max3_u32 v6, v6, v13, v14")
        a("v_max_u32 v6, v6, v15")
        a("v_cmp_eq_u32 vcc, -1, v6")
        a("s_cbranch_vccz L_c_ok")
        self.spin("L_c_poll", 1, 0x40000)
        a.label("L_c_ok")
        self.stamp(7)
        a(f"s_cmp_eq_u32 s{S_T2}, 0")
        a("s_cselect_b64 vcc, -1, 0")
        a("v_cndmask_b32 v4, v14, v12, vcc")
        a("v_cndmask_b32 v5, v15, v13, vcc")
        a("v_mov_b32 v6, v4")
        a("v_permlane32_swap_b32 v4, v6")
        a("v_mov_b32 v7, v5")
        a("v_permlane32_swap_b32 v5, v7")
        a("v_max_f32 v16, v4, v6")
        a("v_sub_f32 v4, v4, v16")
        a("v_sub_f32 v6, v6, v16")
        a(f"v_mul_f32 v4, s{S_LOG2E}, v4")
        a(f"v_mul_f32 v6, s{S_LOG2E}, v6")
        a("v_exp_f32 v4, v4")
        a("v_exp_f32 v6, v6")
        a("v_mul_f32 v5, v4, v5")
        a("v_fmac_f32 v5, v6, v7")
        a("v_rcp_f32 v7, v5")
        a("v_cmp_gt_u32 vcc, 32, v0")
        a("v_cndmask_b32 v4, v6, v4, vcc")
        a("v_fma_f32 v6, -v5, v7, 1.0")
        a("v_fma_f32 v7, v6, v7, v7")
        a("v_mul_f32 v4, v4, v7")
        for r in range(4):
            a(f"v_mul_f32 v{8+r}, v{8+r}, v4")
        for r in range(4):
            a(f"v_mov_b32 v{12+r}, v{8+r}")
        for r in range(4):
            a(f"v_permlane32_swap_b32 v{8+r}, v{12+r}")
        for r in range(4):
            a(f"v_add_f32 v{8+r}, v{8+r}, v{12+r}")
        a("v_cvt_pk_bf16_f32 v8, v8, v9")
        a("v_cvt_pk_bf16_f32 v9, v10, v11")
        a(f"s_mul_i32 s{S_T0}, s{S_T1}, {O_STRIDE}")
        a(f"s_lshl_b32 s{S_T3}, s{S_T2}, 8")
        a(f"s_add_u32 s{S_T0}, s{S_T0}, s{S_T3}")
        a("v_lshlrev_b32 v3, 3, v0")
        a(f"v_add_u32 v3, s{S_T0}, v3")
        self.lane_mask_lt(32)
        a(f"ds_write_b64 v3, v[8:9] offset:{LDS_O}")
        self.restore_exec()
        a("s_waitcnt lgkmcnt(0)")
        a("s_barrier")
        self.stamp(8)
        a(f"s_cmp_ge_u32 s{S_WAVE}, 8")
        a("s_cbranch_scc1 L_end")
        self.proj(8, LDS_O, O_STRIDE, S_WAVE, "a", preloaded=True)
        a(f"s_mul_i32 s{S_T0}, s{S_HKV}, 5")
        a(f"s_add_u32 s{S_T0}, s{S_T0}, s{S_B}")
        a(f"s_lshl_b32 s{S_T0}, s{S_T0}, 12")
        a(f"s_lshl_b32 s{S_T1}, s{S_WAVE}, 9")
        a(f"s_add_u32 s{S_T0}, s{S_T0}, s{S_T1}")
        a(f"s_add_u32 s{S_T0}, s{S_T0}, {WS_P2}")
        self.publish4(32)
        a.label("L_end")
        self.stamp(9)
        self.stamp_flush()
        a.label("L_exit")
        a("s_endpgm")

    def build(self):
        self.prologue()
        self.stream()
        self.aux()
        self.tail()
        body = self.a.finish()
        hdr = open("cdna_kernels/" + NAME + ".s.ref").read().split("; Override launch geometry")[0]
        out = hdr
        out += "; Override launch geometry by editing the next line (default: block=256,\n"
        out += f"; @launch grid=(256,1,1) block=(1024,1,1) lds={LDS_TOTAL}\n"
        out += '.amdgcn_target "amdgcn-amd-amdhsa--gfx950"\n.text\n'
        out += f".globl {NAME}_kernel\n.p2align 8\n.type {NAME}_kernel,@function\n{NAME}_kernel:\n"
        out += body
        out += '.section .rodata,"a"\n.p2align 6\n'
        out += f".amdhsa_kernel {NAME}_kernel\n"
        out += "  .amdhsa_next_free_vgpr 128\n  .amdhsa_next_free_sgpr 100\n  .amdhsa_accum_offset 128\n"
        out += "  .amdhsa_group_segment_fixed_size 0\n  .amdhsa_kernarg_size 96\n  .amdhsa_user_sgpr_count 2\n"
        out += "  .amdhsa_user_sgpr_kernarg_segment_ptr 1\n  .amdhsa_system_sgpr_workgroup_id_x 1\n.end_amdhsa_kernel\n"
        return out

if __name__ == "__main__":
    dbg = "--debug" in sys.argv
    outp = [x for x in sys.argv[1:] if not x.startswith("--")]
    kw = {}
    for x in sys.argv[1:]:
        if x.startswith("--") and "=" in x:
            k_, v_ = x[2:].split("="); kw[k_] = int(v_)
    g = Gen(debug=dbg, stamps="--stamps" in sys.argv, **kw)
    s = g.build()
    path = outp[0] if outp else "cdna_kernels/" + NAME + ".s"
    open(path, "w").write(s)
    print("wrote", path, "lines", s.count("\n"), "nops inserted", g.a.ninserted)
```

```python
import sys
from dsl import Asm, vr, sr

NAME = "parallel_sum__gqa_block_cached__swiglu_ffn__decode"
LOG2E = 0x3fb8aa3b
SCALE = 0x3db504f3

XN_STRIDE = 1184
LDS_XN = 0
LDS_XB = LDS_XN + 8 * XN_STRIDE
LDS_QPART = LDS_XB + 1152
LDS_Q = LDS_QPART + 12 * 512
LDS_SP = LDS_Q + 512
SP_STRIDE = 1040
LDS_O = LDS_SP + 8 * SP_STRIDE
O_STRIDE = 544
LDS_CNT = LDS_O + 8 * O_STRIDE
LDS_H = LDS_CNT + 64
H_STRIDE = 608
LDS_FP = LDS_H + 8 * H_STRIDE
LDS_W = LDS_FP
LDS_QFP = LDS_W + 9 * 8192
LDS_TOTAL = LDS_QFP + 6 * 4096

REC_STRIDE = 2048
WS_REC = 0
WS_P2 = 256 * REC_STRIDE
WS_F2 = WS_P2 + 16 * 5 * 4096
WS_H = WS_F2 + 16 * 5 * 4096
WS_GEN = WS_H + 8 * 9216
WS_QP = WS_GEN + 4096
WS_DBG = WS_QP + 16 * 3 * 16384
WS_STAMP = WS_DBG + (512 << 10)
WS_SIZE = WS_DBG + (1 << 20)

S_WAVE = 3
S_X, S_K, S_V, S_WQ, S_WO, S_BX, S_WG, S_WU = 4, 6, 8, 10, 12, 14, 16, 18
S_WD, S_OUT, S_DBG, S_WS = 20, 22, 24, 26
S_HKV, S_B, S_SPLIT, S_J = 28, 29, 30, 31
SRD_K, SRD_V, SRD_W, SRD_WS = 32, 36, 40, 44
S_SEL_LO, S_SEL_HI = 48, 49
S_OFF, S_OFF2, S_CNT = 50, 51, 52
S_STRIDE, S_UOFF, S_NT, S_FIRST, S_T0 = 53, 54, 55, 56, 57
S_HW, S_ROLE, S_RIDX, S_T1, S_T2, S_T3 = 58, 59, 60, 61, 62, 63
S_LOG2E, S_SCALE, S_MASKHI, S_SENTM1 = 64, 65, 66, 67
S_EX = 68
SRD_W2 = 72
SRD_X = 76
S_SPIN = 80
S_R = 81
S_CB = 82
S_NXT = 83
S_TA, S_TB = 70, 71
S_TS = 84
S_ST0 = 86
ROLE_NONE, ROLE_A, ROLE_B, ROLE_C = 0, 1, 2, 3

class Gen:
    def __init__(self, debug=False, stamps=False, NS=8, KT=32, LA=1, comp=1, map4=1, earlyV=1, earlyK=1, qsleep=8, kvtouch=1, pace=4, kpol=1, vpol=1, noq=0, nowt=0, hsleep=1, only=0, stop=0, qfix=0, qsc=1, qst=1, dC=6, dA=4, dB=4, pj0=10, emask=0xff, vearly=3, ofl=0, warm=0, nors=0, rearly=0, diag=0):
        self.diag = diag
        self.rearly = rearly
        self.nors = nors
        self.ofl = {0: '', 1: 'sc1', 2: 'sc0 sc1', 3: 'nt'}[ofl]; self.warm = warm
        self.vearly = vearly
        self.emask = emask
        assert NS <= 6
        self.dC = dC; self.dA = dA; self.dB = dB; self.pj0 = pj0
        self.qst = qst
        self.qfix = qfix; self.qfl = 'sc1' if qsc else ''
        self.stop = stop
        self.only = only
        self.hsleep = hsleep
        self.nowt = nowt
        self.noq = noq
        POL = {0: '', 1: 'nt', 2: 'sc1', 3: 'sc0 sc1', 4: 'sc1 nt', 5: 'sc0'}
        self.kfl = POL[kpol]; self.vfl = POL[vpol]
        self.pace = pace
        self.kvtouch = kvtouch
        self.earlyK = earlyK
        self.qsleep = qsleep
        self.earlyV = earlyV
        self.map4 = map4
        self.a = Asm()
        self.debug = debug; self.stamps = stamps
        self.NS = NS; self.KT = KT; self.LA = LA; self.comp = comp

    def srd(self, dst, base, size, off_sgpr=None):
        a = self.a
        if off_sgpr is not None:
            a(f"s_add_u32 s{dst}, s{base}, s{off_sgpr}")
            a(f"s_addc_u32 s{dst+1}, s{base+1}, 0")
        else:
            a(f"s_mov_b32 s{dst}, s{base}")
            a(f"s_mov_b32 s{dst+1}, s{base+1}")
        a(f"s_mov_b32 s{dst+2}, {size}")
        a(f"s_mov_b32 s{dst+3}, 0x20000")

    def stamp(self, k):
        if not self.stamps: return
        a = self.a
        a(f"s_memrealtime {sr(S_TS,2)}")
        a("s_waitcnt lgkmcnt(0)")
        a(f"s_mov_b32 s{S_ST0+k}, s{S_TS}")

    def stamp_flush(self):
        if not self.stamps: return
        a = self.a
        a("s_mov_b64 exec, -1")
        a("v_mbcnt_lo_u32_b32 v0, -1, 0")
        a("v_mbcnt_hi_u32_b32 v0, -1, v0")
        a("v_mov_b32 v1, 0")
        for k in range(12):
            a(f"v_writelane_b32 v1, s{S_ST0+k}, {k}")
        a(f"s_lshl_b32 s{S_T0}, s2, 4")
        a(f"s_add_u32 s{S_T0}, s{S_T0}, s{S_WAVE}")
        a(f"s_lshl_b32 s{S_T0}, s{S_T0}, 6")
        a(f"s_add_u32 s{S_T0}, s{S_T0}, {WS_STAMP}")
        a("v_lshlrev_b32 v2, 2, v0")
        a("v_cmp_gt_u32 vcc, 16, v0")
        a(f"s_and_saveexec_b64 {sr(S_EX,2)}, vcc")
        a(f"buffer_store_dword v1, v2, {sr(SRD_WS,4)}, s{S_T0} offen")

    def wave_sum(self, x, t):
        a = self.a
        for pat in ("quad_perm:[1,0,3,2]", "quad_perm:[2,3,0,1]", "row_half_mirror", "row_mirror"):
            a(f"v_add_f32_dpp v{x}, v{x}, v{x} {pat} row_mask:0xf bank_mask:0xf")
        a(f"v_mov_b32 v{t}, v{x}")
        a(f"v_permlane16_swap_b32 v{x}, v{t}")
        a(f"v_add_f32 v{x}, v{x}, v{t}")
        a(f"v_mov_b32 v{t}, v{x}")
        a(f"v_permlane32_swap_b32 v{x}, v{t}")
        a(f"v_add_f32 v{x}, v{x}, v{t}")

    def rne(self, x):
        a = self.a
        a(f"v_cvt_pk_bf16_f32 v{x}, v{x}, v{x}")
        a(f"v_and_b32 v{x}, 0xffff0000, v{x}")

    def lane_mask_lt(self, n, lane="v0"):
        a = self.a
        a(f"v_cmp_gt_u32 vcc, {n}, {lane}")
        a(f"s_and_saveexec_b64 {sr(S_EX,2)}, vcc")
    def restore_exec(self):
        self.a(f"s_mov_b64 exec, {sr(S_EX,2)}")

    def spin(self, lab, sleep, bound):
        a = self.a
        a(f"s_sleep {sleep}")
        a(f"s_add_u32 s{S_SPIN}, s{S_SPIN}, 1")
        a(f"s_cmp_lt_u32 s{S_SPIN}, {bound}")
        a(f"s_cbranch_scc1 {lab}")

    def layernorm(self, R, X, T, vL, lds_imm, s_row=None):
        a = self.a
        t0, t1, t2, t3, t4, t5 = range(T, T + 6)
        for k in range(5):
            a(f"v_lshlrev_b32 v{X+2*k}, 16, v{R+k}")
            a(f"v_and_b32 v{X+2*k+1}, s{S_MASKHI}, v{R+k}")
        a(f"v_add_f32 v{t0}, v{X}, v{X+1}")
        for k in range(2, 10):
            a(f"v_add_f32 v{t0}, v{t0}, v{X+k}")
        self.wave_sum(t0, t1)
        a(f"s_mov_b32 s{S_T1}, 0x44100000")
        a(f"s_mov_b32 s{S_T2}, 0x3ae38e39")
        a(f"v_mul_f32 v{t1}, s{S_T2}, v{t0}")
        a(f"v_fma_f32 v{t2}, -v{t1}, s{S_T1}, v{t0}")
        a(f"v_fma_f32 v{t1}, v{t2}, s{S_T2}, v{t1}")
        a(f"v_cmp_gt_u32 vcc, 32, v{vL}")
        a(f"v_sub_f32 v{t2}, v{X+8}, v{t1}")
        a(f"v_mul_f32 v{t3}, v{t2}, v{t2}")
        a(f"v_sub_f32 v{t2}, v{X+9}, v{t1}")
        a(f"v_fmac_f32 v{t3}, v{t2}, v{t2}")
        a(f"v_cndmask_b32 v{t3}, 0, v{t3}, vcc")
        for k in range(8):
            a(f"v_sub_f32 v{t2}, v{X+k}, v{t1}")
            a(f"v_fmac_f32 v{t3}, v{t2}, v{t2}")
        self.wave_sum(t3, t2)
        a(f"v_mul_f32 v{t2}, s{S_T2}, v{t3}")
        a(f"v_fma_f32 v{t0}, -v{t2}, s{S_T1}, v{t3}")
        a(f"v_fma_f32 v{t2}, v{t0}, s{S_T2}, v{t2}")
        self.rne(t1); self.rne(t2)
        a(f"v_add_f32 v{t2}, 0x3727c5ac, v{t2}")
        self.rne(t2)
        a(f"v_sqrt_f32 v{t3}, v{t2}")
        a(f"v_rcp_f32 v{t0}, v{t3}")
        a(f"v_fma_f32 v{t4}, -v{t3}, v{t3}, v{t2}")
        a(f"v_mul_f32 v{t0}, 0.5, v{t0}")
        a(f"v_fma_f32 v{t3}, v{t4}, v{t0}, v{t3}")
        self.rne(t3)
        a(f"v_rcp_f32 v{t0}, v{t3}")
        for k in range(10):
            a(f"v_sub_f32 v{X+k}, v{X+k}, v{t1}")
        for k in range(5):
            a(f"v_cvt_pk_bf16_f32 v{R+k}, v{X+2*k}, v{X+2*k+1}")
        for k in range(5):
            a(f"v_lshlrev_b32 v{X+2*k}, 16, v{R+k}")
            a(f"v_and_b32 v{X+2*k+1}, s{S_MASKHI}, v{R+k}")
        for k in range(10):
            a(f"v_mul_f32 v{t4}, v{X+k}, v{t0}")
            a(f"v_fma_f32 v{t5}, -v{t4}, v{t3}, v{X+k}")
            a(f"v_fma_f32 v{X+k}, v{t5}, v{t0}, v{t4}")
        for k in range(5):
            a(f"v_cvt_pk_bf16_f32 v{R+k}, v{X+2*k}, v{X+2*k+1}")
        a(f"v_lshlrev_b32 v{t4}, 4, v{vL}")
        a(f"v_lshlrev_b32 v{t5}, 2, v{vL}")
        if s_row is not None:
            a(f"v_add_u32 v{t4}, s{s_row}, v{t4}")
            a(f"v_add_u32 v{t5}, s{s_row}, v{t5}")
        a(f"ds_write_b128 v{t4}, {vr(R,4)} offset:{lds_imm}")
        a(f"s_and_saveexec_b64 {sr(S_EX,2)}, vcc")
        a(f"ds_write_b32 v{t5}, v{R+4} offset:{lds_imm+1024}")
        self.restore_exec()

    def xload(self, R, vL, tmp, s_rowbytes):
        a = self.a
        self.srd(SRD_X, S_X, 1152, off_sgpr=s_rowbytes)
        a(f"v_lshlrev_b32 v{tmp}, 4, v{vL}")
        a(f"buffer_load_dwordx4 {vr(R,4)}, v{tmp}, {sr(SRD_X,4)}, 0 offen")
        a(f"v_lshlrev_b32 v{tmp}, 2, v{vL}")
        a(f"buffer_load_dword v{R+4}, v{tmp}, {sr(SRD_X,4)}, 0 offen offset:1024")

    def prologue(self):
        a = self.a
        a("s_cmp_ge_u32 s2, 256")
        a("s_cbranch_scc1 L_exit")
        a("s_load_dwordx16 s[4:19], s[0:1], 0")
        a("s_load_dwordx8 s[20:27], s[0:1], 64")
        a("v_lshrrev_b32 v1, 6, v0")
        a("v_and_b32 v0, 63, v0")
        a(f"v_readfirstlane_b32 s{S_WAVE}, v1")
        for k in range(2, 8): a(f"v_mov_b32 v{k}, 0")
        if self.map4:
            a(f"s_and_b32 s{S_HKV}, s2, 3")
            a(f"s_lshl_b32 s{S_HKV}, s{S_HKV}, 2")
            a(f"s_bfe_u32 s{S_T1}, s2, 0x20003")
            a(f"s_add_u32 s{S_HKV}, s{S_HKV}, s{S_T1}")
            a(f"s_lshr_b32 s{S_B}, s2, 5")
            a(f"s_bfe_u32 s{S_SPLIT}, s2, 0x10002")
        else:
            a(f"s_and_b32 s{S_HKV}, s2, 7")
            a(f"s_lshr_b32 s{S_T0}, s2, 3")
            a(f"s_and_b32 s{S_T1}, s{S_T0}, 1")
            a(f"s_lshl_b32 s{S_HKV}, s{S_HKV}, 1")
            a(f"s_add_u32 s{S_HKV}, s{S_HKV}, s{S_T1}")
            a(f"s_lshr_b32 s{S_T0}, s{S_T0}, 1")
            a(f"s_and_b32 s{S_B}, s{S_T0}, 7")
            a(f"s_lshr_b32 s{S_SPLIT}, s{S_T0}, 3")
        a(f"s_lshl_b32 s{S_J}, s{S_B}, 1")
        a(f"s_add_u32 s{S_J}, s{S_J}, s{S_SPLIT}")
        a(f"s_mov_b32 s{S_SEL_LO}, 0x05040100")
        a(f"s_mov_b32 s{S_SEL_HI}, 0x07060302")
        a(f"s_mov_b32 s{S_LOG2E}, {LOG2E:#x}")
        a(f"s_mov_b32 s{S_SCALE}, {SCALE:#x}")
        a(f"s_mov_b32 s{S_MASKHI}, 0xffff0000")
        a(f"s_mov_b32 s{S_SENTM1}, 0xfffffffe")
        a(f"s_mov_b32 s{S_R}, -1")
        if self.stamps:
            for k in range(12): a(f"s_mov_b32 s{S_ST0+k}, 0")
        a("s_waitcnt lgkmcnt(0)")
        self.srd(SRD_WS, S_WS, WS_SIZE)
        a(f"s_add_u32 s{S_T0}, s{S_WS}, {WS_GEN}")
        a(f"s_addc_u32 s{S_T1}, s{S_WS+1}, 0")
        a(f"s_mov_b32 s{S_T2}, s{S_T0}")
        a(f"s_mov_b32 s{S_T3}, s{S_T1}")
        a(f"s_load_dword s{S_TA}, {sr(S_T2,2)}, 0")
        self.stamp(0)
        if self.diag:
            a(f"s_cmp_lg_u32 s{S_WAVE}, 0")
            a("s_cbranch_scc1 L_dg0")
            a(f"s_memrealtime {sr(S_TS,2)}")
            a("s_waitcnt lgkmcnt(0)")
            a(f"s_not_b32 s{S_TS}, s{S_TS}")
            a(f"v_mov_b32 v8, s{S_TS}")
            a("v_mov_b32 v9, 8")
            a("s_mov_b64 exec, 1")
            a(f"global_atomic_umax v9, v8, {sr(S_DBG,2)}")
            a("s_mov_b64 exec, -1")
            a.label("L_dg0")
        a(f"s_cmp_ge_u32 s{S_WAVE}, 8")
        a("s_cbranch_scc1 L_aux")

    def touch(self, base, size, n, dst):
        a = self.a
        self.srd(SRD_W, base, size)
        a("v_lshlrev_b32 v4, 20, v0")
        self.lane_mask_lt(n)
        a(f"buffer_load_dword v{dst}, v4, {sr(SRD_W,4)}, 0 offen")
        self.restore_exec()

    def stream_setup(self):
        a = self.a
        KT = self.KT; TB = KT * 256; NTP = 8192 // KT
        half = NTP // 2
        u = 32 // KT if KT <= 32 else 1
        dC = self.dC * (32 // KT) * self.comp // 2
        dA = -self.dA * (32 // KT) * self.comp // 2
        dB = self.dB * (32 // KT) * self.comp // 2
        a(f"s_mov_b32 s{S_T1}, {half}")
        a(f"s_cmp_lt_u32 s{S_B}, 4")
        a(f"s_cselect_b32 s{S_T1}, {half - dC}, s{S_T1}")
        a(f"s_cmp_eq_u32 s{S_B}, 4")
        a("s_cbranch_scc0 L_sp1")
        a(f"s_cmp_lt_u32 s{S_HKV}, 8")
        a(f"s_mov_b32 s{S_T2}, {half - dA}")
        a(f"s_cselect_b32 s{S_T1}, {half - dC}, s{S_T2}")
        a.label("L_sp1")
        a(f"s_cmp_eq_u32 s{S_B}, 7")
        a(f"s_cselect_b32 s{S_T1}, {half - dB}, s{S_T1}")
        a(f"s_sub_u32 s{S_T2}, {NTP}, s{S_T1}")
        a(f"s_cmp_eq_u32 s{S_SPLIT}, 0")
        a(f"s_cselect_b32 s{S_NT}, s{S_T1}, s{S_T2}")
        a(f"s_cselect_b32 s{S_T1}, 0, s{S_T1}")
        a(f"s_lshl_b32 s{S_T0}, s{S_B}, 4")
        a(f"s_add_u32 s{S_T0}, s{S_T0}, s{S_HKV}")
        a(f"s_lshl_b32 s{S_T0}, s{S_T0}, 21")
        a(f"s_mul_i32 s{S_T1}, s{S_T1}, {TB}")
        a(f"s_add_u32 s{S_T0}, s{S_T0}, s{S_T1}")
        a(f"s_mul_i32 s{S_T2}, s{S_NT}, {TB}")
        self.srd(SRD_K, S_K, f"s{S_T2}", off_sgpr=S_T0)
        self.srd(SRD_V, S_V, f"s{S_T2}", off_sgpr=S_T0)
        a("v_and_b32 v4, 15, v0")
        a("v_lshrrev_b32 v5, 4, v0")
        a("v_lshlrev_b32 v6, 10, v5")
        a("v_lshl_add_u32 v1, v4, 4, v6")
        a("v_lshlrev_b32 v6, 4, v5")
        a("v_and_b32 v7, 1, v0")
        a("v_lshl_add_u32 v7, v7, 8, v6")
        a("v_lshl_add_u32 v0, v4, 8, v6")

    def issueK(self, o1=S_OFF, o2=S_OFF2):
        for u in range(self.KT // 16):
            for s_ in range(4):
                r = 64 + (u * 4 + s_) * 4
                self.a(f"buffer_load_dwordx4 {vr(r,4)}, v0, {sr(SRD_K,4)}, s{o1 if u == 0 else o2} offen offset:{s_*64} {self.kfl}")
    def issueV(self, o1=S_OFF, o2=S_OFF2):
        for u in range(self.KT // 16):
            for r_ in range(4):
                r = 96 + (u * 4 + r_) * 4
                self.a(f"buffer_load_dwordx4 {vr(r,4)}, v1, {sr(SRD_V,4)}, s{o1 if u == 0 else o2} offen offset:{r_*256} {self.vfl}")

    def stream(self):
        a = self.a
        NS, KT, LA = self.NS, self.KT, self.LA
        NU = KT // 16; NL = 4 * NU; TB = KT * 256
        VK, VV, M, L, P, S, Q, O, KB, VB = 0, 1, 2, 3, 4, 8, 16, 32, 64, 96
        a(f"s_cmp_ge_u32 s{S_WAVE}, {NS}")
        a("s_cbranch_scc1 L_idle")
        tl = {1: [(S_WS, WS_SIZE, 4), (S_WO, 4096*1152, 5), (S_OUT, 8*1152, 1)],
              2: [(S_WG, 576*9216, 6), (S_WU, 576*9216, 6), (S_DBG, 256, 1)],
              3: [(S_WD, 4608*1152, 6)]}
        for w in (1, 2, 3):
            lab = f"L_s_t{w}"
            a(f"s_cmp_lg_u32 s{S_WAVE}, {w}")
            a(f"s_cbranch_scc1 {lab}")
            for k, t in enumerate(tl[w]):
                self.touch(*t, 8 + k)
            a.label(lab)
        self.stream_setup()
        if self.kvtouch:
            a(f"s_cmp_lg_u32 s{S_WAVE}, 0")
            a("s_cbranch_scc1 L_s_nkt")
            a("v_mbcnt_lo_u32_b32 v12, -1, 0")
            a("v_mbcnt_hi_u32_b32 v12, -1, v12")
            a("v_lshlrev_b32 v12, 18, v12")
            a("s_mov_b64 exec, 0x1f")
            a(f"buffer_load_dword v13, v12, {sr(SRD_K,4)}, 0 offen nt")
            a(f"buffer_load_dword v14, v12, {sr(SRD_V,4)}, 0 offen nt")
            a("s_mov_b64 exec, -1")
            a.label("L_s_nkt")
        a(f"s_mul_i32 s{S_OFF}, s{S_WAVE}, {TB}")
        a(f"s_add_u32 s{S_OFF2}, s{S_OFF}, 4096")
        seq = []
        for u in range(NU):
            for s_ in range(4):
                seq.append(f"buffer_load_dwordx4 {vr(KB+(u*4+s_)*4,4)}, v0, {sr(SRD_K,4)}, s{S_OFF if u == 0 else S_OFF2} offen offset:{s_*64} {self.kfl}")
        for u in range(NU):
            for r_ in range(4):
                seq.append(f"buffer_load_dwordx4 {vr(VB+(u*4+r_)*4,4)}, v1, {sr(SRD_V,4)}, s{S_OFF if u == 0 else S_OFF2} offen offset:{r_*256} {self.vfl}")
        PS = self.pace
        for k0 in range(0, len(seq), PS):
            if k0 > 0: a("s_waitcnt vmcnt(0)")
            for ins in seq[k0:k0+PS]: a(ins)
            if k0 == 0:
                a("s_barrier")
                for k in range(32):
                    a(f"v_mov_b32 v{O+k}, 0")
                a(f"v_mov_b32 v{M}, 0xff800000")
                a(f"v_mov_b32 v{L}, 0")
        self.stamp(4)
        if self.only or self.noq: a("s_branch L_s_qok")
        a(f"v_mov_b32 v{P}, {LDS_CNT + 20}")
        a(f"s_mov_b32 s{S_SPIN}, 0")
        a.label("L_s_qw")
        a(f"ds_read_b32 v{P+1}, v{P}")
        a("s_waitcnt lgkmcnt(0)")
        a(f"v_readfirstlane_b32 s{S_T0}, v{P+1}")
        a(f"s_cmp_ge_u32 s{S_T0}, 2")
        a("s_cbranch_scc1 L_s_qok")
        self.spin("L_s_qw", 2, 0x100000)
        a.label("L_s_qok")
        self.stamp(1)
        for s_ in range(4):
            a(f"ds_read_b128 {vr(Q+4*s_,4)}, v7 offset:{LDS_Q + s_*64}")
        a(f"s_mov_b32 s{S_CNT}, s{S_WAVE}")
        a(f"s_mov_b32 s{S_FIRST}, 0")
        a(f"s_mov_b32 s{S_STRIDE}, 0")
        a(f"v_mov_b32 v{P}, {LDS_CNT + 32}")
        a(f"v_mov_b32 v{P+1}, 1")
        a("s_mov_b64 exec, 1")
        a(f"ds_add_rtn_u32 v{P+2}, v{P}, v{P+1}")
        a("s_mov_b64 exec, -1")
        a("s_waitcnt lgkmcnt(0)")
        a(f"v_readfirstlane_b32 s{S_NXT}, v{P+2}")
        a.label("L_sloop")
        a(f"s_mul_i32 s{S_OFF}, s{S_NXT}, {TB}")
        a(f"s_add_u32 s{S_OFF2}, s{S_OFF}, 4096")
        if LA == 2:
            a(f"s_waitcnt vmcnt({NL})")
        else:
            a("s_waitcnt vmcnt(0)")
            a(f"s_cmp_eq_u32 s{S_FIRST}, 0")
            a(f"s_mov_b32 s{S_FIRST}, 1")
            a("s_cbranch_scc1 L_skipV")
            a(f"s_mul_i32 s{S_T2}, s{S_CNT}, {TB}")
            a(f"s_add_u32 s{S_T3}, s{S_T2}, 4096")
            self.issueV(S_T2, S_T3)
            a.label("L_skipV")
        for s_ in range(4):
            for u in range(NU):
                c = "0" if s_ == 0 else vr(S + 4 * u, 4)
                a(f"v_mfma_f32_16x16x32_bf16 {vr(S+4*u,4)}, {vr(KB+(u*4+s_)*4,4)}, {vr(Q+4*s_,4)}, {c}")
        if LA == 2:
            self.issueK()
        NP = 2 * NU; NSV = 4 * NU
        for p in range(NP):
            a(f"v_cvt_pk_bf16_f32 v{P+p}, v{S+2*p}, v{S+2*p+1}")
        for p in range(NP):
            a(f"v_lshlrev_b32 v{S+2*p}, 16, v{P+p}")
            a(f"v_and_b32 v{S+2*p+1}, s{S_MASKHI}, v{P+p}")
        for k in range(NSV):
            a(f"v_mul_f32 v{S+k}, s{S_SCALE}, v{S+k}")
        for p in range(NP):
            a(f"v_cvt_pk_bf16_f32 v{P+p}, v{S+2*p}, v{S+2*p+1}")
        for p in range(NP):
            a(f"v_lshlrev_b32 v{S+2*p}, 16, v{P+p}")
            a(f"v_and_b32 v{S+2*p+1}, s{S_MASKHI}, v{P+p}")
        if NU == 2:
            a(f"v_max3_f32 v{P}, v{S}, v{S+1}, v{S+2}")
            a(f"v_max3_f32 v{P+1}, v{S+3}, v{S+4}, v{S+5}")
            a(f"v_max3_f32 v{P}, v{P}, v{S+6}, v{S+7}")
            a(f"v_max_f32 v{P}, v{P}, v{P+1}")
        else:
            a(f"v_max3_f32 v{P}, v{S}, v{S+1}, v{S+2}")
            a(f"v_max_f32 v{P}, v{P}, v{S+3}")
        a(f"v_cmp_gt_f32 vcc, v{P}, v{M}")
        a("s_cbranch_vccz L_nores")
        a(f"v_mov_b32 v{P+1}, v{P}")
        a(f"v_permlane16_swap_b32 v{P}, v{P+1}")
        a(f"v_max_f32 v{P}, v{P}, v{P+1}")
        a(f"v_mov_b32 v{P+1}, v{P}")
        a(f"v_permlane32_swap_b32 v{P}, v{P+1}")
        a(f"v_max3_f32 v{P}, v{P}, v{P+1}, v{M}")
        a(f"v_sub_f32 v{P+2}, v{M}, v{P}")
        a(f"v_mul_f32 v{P+2}, s{S_LOG2E}, v{P+2}")
        a(f"v_exp_f32 v{P+2}, v{P+2}")
        a(f"v_mov_b32 v{M}, v{P}")
        a(f"v_mov_b32 v{P+3}, v{P+2}")
        a(f"v_mul_f32 v{L}, v{L}, v{P+2}")
        for k in range(16):
            a(f"v_pk_mul_f32 {vr(O+2*k,2)}, {vr(O+2*k,2)}, {vr(P+2,2)}")
        a.label("L_nores")
        a(f"v_mul_f32 v{P}, s{S_LOG2E}, v{M}")
        for k in range(NSV):
            a(f"v_fma_f32 v{S+k}, v{S+k}, s{S_LOG2E}, -v{P}")
        for k in range(NSV):
            a(f"v_exp_f32 v{S+k}, v{S+k}")
        if NU == 2:
            a(f"v_add_f32 v{P+1}, v{S}, v{S+1}")
            a(f"v_add_f32 v{P+2}, v{S+2}, v{S+3}")
            a(f"v_add_f32 v{P+3}, v{S+4}, v{S+5}")
            a(f"v_add_f32 v{P}, v{S+6}, v{S+7}")
            a(f"v_add_f32 v{P+1}, v{P+1}, v{P+2}")
            a(f"v_add_f32 v{P+3}, v{P+3}, v{P}")
            a(f"v_add_f32 v{L}, v{L}, v{P+1}")
            a(f"v_add_f32 v{L}, v{L}, v{P+3}")
        else:
            a(f"v_add_f32 v{P+1}, v{S}, v{S+1}")
            a(f"v_add_f32 v{P+2}, v{S+2}, v{S+3}")
            a(f"v_add_f32 v{L}, v{L}, v{P+1}")
            a(f"v_add_f32 v{L}, v{L}, v{P+2}")
        for p in range(NP):
            a(f"v_cvt_pk_bf16_f32 v{P+p}, v{S+2*p}, v{S+2*p+1}")
        if LA == 2:
            a(f"s_waitcnt vmcnt({NL})")
        else:
            a("s_waitcnt vmcnt(0)")
            self.issueK()
        npp = 4 if NU == 2 else 2
        def perms(c, e):
            for p in range(npp):
                a(f"v_perm_b32 v{S+4*e+p}, v{VB+(2*p+1)*4+c}, v{VB+(2*p)*4+c}, s{S_SEL_LO if e == 0 else S_SEL_HI}")
        def pv(c, e):
            j = 2 * c + e
            if NU == 2:
                a(f"v_mfma_f32_16x16x32_bf16 {vr(O+4*j,4)}, {vr(S+4*e,4)}, {vr(P,4)}, {vr(O+4*j,4)}")
            else:
                a(f"v_mfma_f32_16x16x16_bf16 {vr(O+4*j,4)}, {vr(S+4*e,2)}, {vr(P,2)}, {vr(O+4*j,4)}")
        perms(0, 0); perms(0, 1)
        for c in range(4):
            pv(c, 0)
            if c < 3: perms(c + 1, 0)
            pv(c, 1)
            if c < 3: perms(c + 1, 1)
        a(f"v_mov_b32 v{S}, {LDS_CNT + 32}")
        a(f"v_mov_b32 v{S+1}, 1")
        a("s_mov_b64 exec, 1")
        a(f"ds_add_rtn_u32 v{S+2}, v{S}, v{S+1}")
        a("s_mov_b64 exec, -1")
        if LA == 2:
            self.issueV()
        a(f"s_mov_b32 s{S_CNT}, s{S_NXT}")
        a("s_waitcnt lgkmcnt(0)")
        a(f"v_readfirstlane_b32 s{S_NXT}, v{S+2}")
        if self.stamps:
            a(f"s_add_u32 s{S_STRIDE}, s{S_STRIDE}, 1")
            for slot, it in ((6, 1), (7, 2), (8, 4), (10, 8), (11, 16)):
                lab = a.newlabel("L_its")
                a(f"s_cmp_lg_u32 s{S_STRIDE}, {it}")
                a(f"s_cbranch_scc1 {lab}")
                self.stamp(slot)
                a.label(lab)
        a(f"s_cmp_lt_u32 s{S_CNT}, s{S_NT}")
        a("s_cbranch_scc1 L_sloop")
        self.stamp(2)
        if self.only or self.stop in (1, 2, 11, 12, 13): a("s_branch L_exit")
        a(f"v_mov_b32 v{P}, v{L}")
        a(f"v_permlane16_swap_b32 v{L}, v{P}")
        a(f"v_add_f32 v{L}, v{L}, v{P}")
        a(f"v_mov_b32 v{P}, v{L}")
        a(f"v_permlane32_swap_b32 v{L}, v{P}")
        a(f"v_add_f32 v{L}, v{L}, v{P}")
        a("v_mbcnt_lo_u32_b32 v8, -1, 0")
        a("v_mbcnt_hi_u32_b32 v8, -1, v8")
        a("v_and_b32 v9, 15, v8")
        a("v_lshrrev_b32 v10, 4, v8")
        a(f"s_mul_i32 s{S_T0}, s{S_WAVE}, {SP_STRIDE}")
        a(f"s_add_u32 s{S_T0}, s{S_T0}, {LDS_SP}")
        a("v_lshlrev_b32 v11, 9, v9")
        a("v_lshl_add_u32 v11, v10, 4, v11")
        a(f"v_add_u32 v11, s{S_T0}, v11")
        a("v_cmp_gt_u32 vcc, 2, v9")
        a(f"s_and_saveexec_b64 {sr(S_EX,2)}, vcc")
        for j in range(8):
            a(f"ds_write_b128 v11, {vr(O+4*j,4)} offset:{j*64}")
        a("v_cmp_gt_u32 vcc, 2, v8")
        a("s_and_b64 exec, exec, vcc")
        a("v_lshlrev_b32 v12, 3, v9")
        a(f"v_add_u32 v12, s{S_T0}, v12")
        a(f"ds_write_b64 v12, {vr(M,2)} offset:1024")
        self.restore_exec()
        a("s_waitcnt vmcnt(0) lgkmcnt(0)")
        a("s_branch L_B4")
        a.label("L_idle")
        if self.only:
            a("s_barrier")
            a("s_branch L_exit")
        if self.rearly:
            a(f"s_cmp_lg_u32 s{S_WAVE}, 4")
            a("s_cbranch_scc1 L_id_nr")
            self.role_decode("i")
            self.resets("i")
            a("s_barrier")
            self.reset_signal()
            a("s_branch L_id_r")
            a.label("L_id_nr")
        a("s_barrier")
        if self.rearly: a.label("L_id_r")
        if self.stop in (1, 2, 11, 12, 13): a("s_branch L_exit")
        if self.warm:
            a(f"s_cmp_lg_u32 s{S_WAVE}, 5")
            a("s_cbranch_scc1 L_nowarm")
            a("v_mbcnt_lo_u32_b32 v0, -1, 0")
            a("v_mbcnt_hi_u32_b32 v0, -1, v0")
            self.wait_tiles(105 * (32 // self.KT))
            a(f"s_getpc_b64 {sr(S_T2,2)}")
            a.label("L_pc0")
            a(f"s_add_u32 s{S_T2}, s{S_T2}, L_B4-L_pc0")
            a(f"s_addc_u32 s{S_T3}, s{S_T3}, 0")
            a("v_lshlrev_b32 v3, 6, v0")
            a(f"global_load_dword v4, v3, {sr(S_T2,2)}")
            a("s_waitcnt vmcnt(0)")
            a.label("L_nowarm")
        a(f"s_cmp_lt_u32 s{S_WAVE}, 6")
        a("s_cbranch_scc1 L_B4")
        a(f"s_cmp_lt_u32 s{S_J}, 10")
        a("s_cbranch_scc0 L_rw_hi")
        a(f"s_cmp_eq_u32 s{S_SPLIT}, 0")
        a("s_cbranch_scc0 L_B4")
        a(f"s_mov_b32 s{S_T0}, s{S_B}")
        a("s_branch L_rw_go")
        a.label("L_rw_hi")
        a(f"s_sub_u32 s{S_T0}, s{S_J}, 5")
        a.label("L_rw_go")
        a(f"s_cmp_lt_u32 s{S_T0}, 9")
        a("s_cbranch_scc0 L_B4")
        a(f"s_mul_i32 s{S_R}, s{S_HKV}, 9")
        a(f"s_add_u32 s{S_R}, s{S_R}, s{S_T0}")
        a(f"s_lshl_b32 s{S_R}, s{S_R}, 1")
        a(f"s_add_u32 s{S_R}, s{S_R}, s{S_WAVE}")
        a(f"s_sub_u32 s{S_R}, s{S_R}, 6")
        self.reducer_pre()
        a("s_branch L_B4")

    def perm_block(self, buf, c, e, T):
        for p in range(4):
            self.a(f"v_perm_b32 v{T+p}, v{buf+(2*p+1)*4+c}, v{buf+(2*p)*4+c}, s{S_SEL_LO if e == 0 else S_SEL_HI}")

    def aux(self):
        a = self.a
        a.label("L_aux")
        if self.only:
            a("v_mov_b32 v8, 0")
            a("v_cmp_eq_u32 vcc, 8, v0")
            a(f"v_mov_b32 v9, {self.NS}")
            a("v_cndmask_b32 v8, v8, v9, vcc")
            a("v_lshlrev_b32 v9, 2, v0")
            self.lane_mask_lt(16)
            a(f"ds_write_b32 v9, v8 offset:{LDS_CNT}")
            self.restore_exec()
            a("s_waitcnt lgkmcnt(0)")
            a("s_barrier")
            a("s_branch L_exit")
        a("s_setprio 3")
        a(f"s_sub_u32 s{S_HW}, s{S_WAVE}, 8")
        a(f"s_mul_i32 s{S_T0}, s{S_HW}, 1152")
        self.xload(16, 0, 4, S_T0)
        a(f"s_cmp_lg_u32 s{S_HW}, 0")
        a("s_cbranch_scc1 L_a_nc")
        a("v_mov_b32 v8, 0")
        a("v_cmp_eq_u32 vcc, 8, v0")
        a(f"v_mov_b32 v9, {self.NS}")
        a("v_cndmask_b32 v8, v8, v9, vcc")
        a("v_lshlrev_b32 v9, 2, v0")
        self.lane_mask_lt(16)
        a(f"ds_write_b32 v9, v8 offset:{LDS_CNT}")
        self.restore_exec()
        a("s_waitcnt lgkmcnt(0)")
        a.label("L_a_nc")
        self.role_decode()
        a(f"s_mov_b32 s{S_FIRST}, 0")
        a(f"s_sub_u32 s{S_CB}, s{S_J}, {self.pj0}")
        a(f"s_cmp_lt_u32 s{S_CB}, 6")
        a("s_cbranch_scc0 L_a_np")
        a(f"s_mov_b32 s{S_FIRST}, 1")
        a(f"s_cmp_lt_u32 s{S_HW}, 6")
        a("s_cbranch_scc0 L_a_w0")
        self.srd(SRD_W, S_WQ, 576 * 8192)
        a("v_lshrrev_b32 v3, 4, v0")
        a("v_lshlrev_b32 v3, 16, v3")
        a("v_and_b32 v1, 15, v0")
        a("v_lshl_add_u32 v1, v1, 4, v3")
        a(f"s_lshr_b32 s{S_T1}, s{S_CB}, 1")
        a(f"s_mul_i32 s{S_T1}, s{S_T1}, 6")
        a(f"s_add_u32 s{S_T1}, s{S_T1}, s{S_HW}")
        a(f"s_mov_b32 s{S_NT}, s{S_T1}")
        a(f"s_lshl_b32 s{S_UOFF}, s{S_T1}, 18")
        a(f"s_and_b32 s{S_T2}, s{S_CB}, 1")
        a(f"s_lshl_b32 s{S_T2}, s{S_T2}, 8")
        a(f"s_lshl_b32 s{S_T3}, s{S_HKV}, 9")
        a(f"s_add_u32 s{S_UOFF}, s{S_UOFF}, s{S_T2}")
        a(f"s_add_u32 s{S_UOFF}, s{S_UOFF}, s{S_T3}")
        for t in range(8):
            a(f"buffer_load_dwordx4 {vr(64+4*t,4)}, v1, {sr(SRD_W,4)}, s{S_UOFF} offen nt")
            if t < 7: a(f"s_add_u32 s{S_UOFF}, s{S_UOFF}, 8192")
        a.label("L_a_w8")
        a("s_barrier")
        a("s_waitcnt vmcnt(8)")
        a("s_branch L_a_ln")
        a.label("L_a_np")
        if self.vearly & 1:
            a(f"s_cmp_eq_u32 s{S_ROLE}, {ROLE_A}")
            a("s_cbranch_scc0 L_a_na")
            self.w_setup_a()
            self.w_issue()
            a("s_branch L_a_w8")
            a.label("L_a_na")
        if self.vearly & 2:
            a(f"s_cmp_eq_u32 s{S_ROLE}, {ROLE_C}")
            a("s_cbranch_scc0 L_a_w0")
            self.c_setup()
            self.c_issue(64)
            a("s_barrier")
            a("s_waitcnt vmcnt(16)")
            a("s_branch L_a_ln")
        a.label("L_a_w0")
        a("s_barrier")
        a("s_waitcnt vmcnt(0)")
        a.label("L_a_ln")
        self.stamp(4)
        a(f"s_mul_i32 s{S_T3}, s{S_HW}, {XN_STRIDE}")
        self.layernorm(16, 32, 8, 0, LDS_XN, s_row=S_T3)
        self.stamp(2)
        self.helper_sync(3)
        if self.stop == 12: a("s_branch L_exit")
        a(f"s_xor_b32 s{S_TB}, s{S_TA}, 0x5bd1e995")
        a(f"s_add_u32 s{S_TB}, s{S_TB}, 0x7f4a7c15")
        a(f"s_add_u32 s{S_TA}, s{S_TA}, 0x9e3779b9")
        a(f"s_cmp_eq_u32 s{S_FIRST}, 0")
        a("s_cbranch_scc1 L_a_cons")
        a(f"s_cmp_lt_u32 s{S_HW}, 6")
        a("s_cbranch_scc0 L_a_pr")
        a("v_and_b32 v2, 7, v0")
        a(f"s_movk_i32 s{S_T0}, {XN_STRIDE}")
        a(f"v_mul_lo_u32 v2, v2, s{S_T0}")
        a("v_lshrrev_b32 v3, 4, v0")
        a("v_lshl_add_u32 v2, v3, 4, v2")
        a(f"s_lshl_b32 s{S_T1}, s{S_NT}, 6")
        a(f"v_add_u32 v2, s{S_T1}, v2")
        a(f"ds_read_b128 v[16:19], v2 offset:{LDS_XN}")
        a("s_waitcnt vmcnt(0)")
        self.stamp(7)
        self.perm_block(64, 0, 0, 8); self.perm_block(64, 0, 1, 12)
        a("s_waitcnt lgkmcnt(0)")
        for c in range(4):
            for e in range(2):
                j = 2 * c + e
                a(f"v_mfma_f32_16x16x32_bf16 {vr(32+4*j,4)}, {vr(8+4*e,4)}, v[16:19], 0")
                if c < 3: self.perm_block(64, c + 1, e, 8 + 4 * e)
        a("v_and_b32 v2, 15, v0")
        a("v_lshlrev_b32 v3, 9, v2")
        a("v_lshrrev_b32 v4, 4, v0")
        a("v_lshl_add_u32 v3, v4, 4, v3")
        a(f"s_lshl_b32 s{S_T1}, s{S_HW}, 12")
        a(f"s_add_u32 s{S_T1}, s{S_T1}, {LDS_QFP}")
        a(f"v_add_u32 v3, s{S_T1}, v3")
        a("v_cmp_gt_u32 vcc, 8, v2")
        a(f"s_and_saveexec_b64 {sr(S_EX,2)}, vcc")
        for j in range(8):
            a(f"ds_write_b128 v3, {vr(32+4*j,4)} offset:{j*64}")
        self.restore_exec()
        a.label("L_a_pr")
        self.helper_sync(4)
        a(f"s_lshl_b32 s{S_T1}, s{S_HW}, 9")
        a(f"s_add_u32 s{S_T1}, s{S_T1}, {LDS_QFP}")
        a("v_lshlrev_b32 v3, 3, v0")
        a(f"v_add_u32 v3, s{S_T1}, v3")
        for w in range(6):
            a(f"ds_read_b64 {vr(64+2*w,2)}, v3 offset:{w*4096}")
        a(f"s_lshr_b32 s{S_T0}, s{S_CB}, 1")
        a(f"s_mul_i32 s{S_T1}, s{S_HKV}, 3")
        a(f"s_add_u32 s{S_T0}, s{S_T0}, s{S_T1}")
        a(f"s_lshl_b32 s{S_T0}, s{S_T0}, 3")
        a(f"s_add_u32 s{S_T0}, s{S_T0}, s{S_HW}")
        a(f"s_lshl_b32 s{S_T0}, s{S_T0}, 11")
        a(f"s_and_b32 s{S_T1}, s{S_CB}, 1")
        a(f"s_lshl_b32 s{S_T1}, s{S_T1}, 10")
        a(f"s_add_u32 s{S_T0}, s{S_T0}, s{S_T1}")
        a(f"s_add_u32 s{S_T0}, s{S_T0}, {WS_QP}")
        a(f"v_mov_b32 v10, s{S_TA}")
        a(f"v_mov_b32 v11, s{S_TB}")
        a("v_lshlrev_b32 v3, 4, v0")
        a("s_waitcnt lgkmcnt(0)")
        for r in range(2):
            a(f"v_add_f32 v{64+r}, v{64+r}, v{66+r}")
            a(f"v_add_f32 v{68+r}, v{68+r}, v{70+r}")
            a(f"v_add_f32 v{72+r}, v{72+r}, v{74+r}")
            a(f"v_add_f32 v{64+r}, v{64+r}, v{68+r}")
            a(f"v_add_f32 v{8+r}, v{64+r}, v{72+r}")
        if self.qst == 1: a(f"buffer_store_dwordx4 v[8:11], v3, {sr(SRD_WS,4)}, s{S_T0} offen sc1")
        if self.qst == 5:
            a("s_mov_b64 exec, 0xffff")
            a(f"buffer_store_dwordx4 v[8:11], v3, {sr(SRD_WS,4)}, s{S_T0} offen sc1")
            a("s_mov_b64 exec, -1")
        if self.qst == 6:
            a(f"s_cmp_lt_u32 s{S_HW}, 2")
            a("s_cbranch_scc0 L_qst6")
            a(f"buffer_store_dwordx4 v[8:11], v3, {sr(SRD_WS,4)}, s{S_T0} offen sc1")
            a.label("L_qst6")
        if self.qst == 2: a(f"buffer_store_dwordx4 v[8:11], v3, {sr(SRD_WS,4)}, s{S_T0} offen")
        if self.qst == 3: a(f"buffer_store_dwordx4 v[8:11], v3, {sr(SRD_WS,4)}, s{S_T0} offen sc1 nt")
        if self.qst == 4: a(f"buffer_store_dwordx4 v[8:11], v3, {sr(SRD_WS,4)}, s{S_T0} offen sc0 sc1")
        self.stamp(6)
        a.label("L_a_cons")
        a(f"s_sub_u32 s{S_T3}, s{S_HW}, 2")
        a(f"s_cmp_lt_u32 s{S_T3}, 2")
        a("s_cbranch_scc0 L_a_B2")
        if self.stop == 13: a("s_branch L_exit")
        a(f"s_mul_i32 s{S_T1}, s{S_HKV}, {3*16384}")
        a(f"s_lshl_b32 s{S_T2}, s{S_B}, 11")
        a(f"s_add_u32 s{S_T1}, s{S_T1}, s{S_T2}")
        a(f"s_lshl_b32 s{S_T2}, s{S_T3}, 10")
        a(f"s_add_u32 s{S_T1}, s{S_T1}, s{S_T2}")
        a(f"s_add_u32 s{S_T1}, s{S_T1}, {WS_QP}")
        a("v_lshlrev_b32 v3, 4, v0")
        a(f"s_mov_b32 s{S_SPIN}, 0")
        a.label("L_q_poll")
        a(f"s_mov_b32 s{S_T0}, s{S_T1}")
        for p in range(3):
            a(f"buffer_load_dwordx4 {vr(96+4*p,4)}, v3, {sr(SRD_WS,4)}, s{S_T0} offen {self.qfl}")
            if p < 2: a(f"s_add_u32 s{S_T0}, s{S_T0}, 16384")
        a("s_waitcnt vmcnt(0)")
        a(f"v_xor_b32 v4, s{S_TA}, v98")
        a(f"v_xor_b32 v5, s{S_TB}, v99")
        a("v_or_b32 v4, v4, v5")
        for p in range(1, 3):
            a(f"v_xor_b32 v5, s{S_TA}, v{96+4*p+2}")
            a(f"v_xor_b32 v6, s{S_TB}, v{96+4*p+3}")
            a("v_or3_b32 v4, v4, v5, v6")
        a("v_cmp_ne_u32 vcc, 0, v4")
        if self.qfix == 0: a("s_cbranch_vccz L_q_ok")
        self.spin("L_q_poll", self.qsleep, 0x40000 if self.qfix == 0 else self.qfix)
        a.label("L_q_ok")
        self.stamp(8)
        for r in range(2):
            a(f"v_add_f32 v{96+r}, v{96+r}, v{100+r}")
            a(f"v_add_f32 v{96+r}, v{96+r}, v{104+r}")
        a("v_cvt_pk_bf16_f32 v96, v96, v97")
        a("v_lshrrev_b32 v5, 3, v0")
        a("v_and_b32 v6, 7, v0")
        a("v_lshlrev_b32 v4, 5, v6")
        a("v_lshl_add_u32 v4, v5, 1, v4")
        a(f"s_lshl_b32 s{S_T2}, s{S_T3}, 8")
        a(f"v_add_u32 v4, s{S_T2}, v4")
        a(f"ds_write_b16 v4, v96 offset:{LDS_Q}")
        a(f"ds_write_b16_d16_hi v4, v96 offset:{LDS_Q+16}")
        if self.debug:
            a("v_lshlrev_b32 v12, 16, v96")
            a("v_and_b32 v13, 0xffff0000, v96")
            a(f"s_lshl_b32 s{S_T0}, s2, 10")
            a(f"s_add_u32 s{S_T0}, s{S_T0}, {WS_DBG}")
            a("v_lshlrev_b32 v10, 1, v4")
            a(f"buffer_store_dword v12, v10, {sr(SRD_WS,4)}, s{S_T0} offen")
            a(f"buffer_store_dword v13, v10, {sr(SRD_WS,4)}, s{S_T0} offen offset:32")
        a("s_waitcnt lgkmcnt(0)")
        a(f"v_mov_b32 v3, {LDS_CNT + 20}")
        a("v_mov_b32 v4, 1")
        a("s_mov_b64 exec, 1")
        a("ds_add_u32 v3, v4")
        a("s_mov_b64 exec, -1")
        a.label("L_a_B2")
        if self.emask != 0xff:
            a(f"s_lshl_b32 s{S_T0}, 1, s{S_HW}")
            a(f"s_and_b32 s{S_T0}, s{S_T0}, {self.emask}")
            a("s_cbranch_scc1 L_a_go")
            a(f"v_mov_b32 v3, {LDS_CNT + 20}")
            a(f"s_mov_b32 s{S_SPIN}, 0")
            a.label("L_a_qw")
            a("ds_read_b32 v4, v3")
            a("s_waitcnt lgkmcnt(0)")
            a(f"v_readfirstlane_b32 s{S_T0}, v4")
            a(f"s_cmp_ge_u32 s{S_T0}, 2")
            a("s_cbranch_scc1 L_a_go")
            self.spin("L_a_qw", 4, 0x100000)
            a.label("L_a_go")
        if self.stop in (1, 13): a("s_branch L_exit")
        self.stamp(3)
        self.helper_mid()
        self.stamp(1)
        if self.stop == 2: a("s_branch L_exit")
        a("s_branch L_B4")

    def role_decode(self, tag=''):
        a = self.a
        a(f"s_mov_b32 s{S_ROLE}, {ROLE_NONE}")
        a(f"s_mov_b32 s{S_RIDX}, 0")
        a(f"s_cmp_lt_u32 s{S_J}, 10")
        a(f"s_cbranch_scc0 L_rd_hi{tag}")
        a(f"s_cmp_eq_u32 s{S_SPLIT}, 0")
        a(f"s_cbranch_scc1 L_rd_even{tag}")
        a(f"s_mov_b32 s{S_ROLE}, {ROLE_A}")
        a(f"s_mov_b32 s{S_RIDX}, s{S_B}")
        a(f"s_branch L_rd_done{tag}")
        a.label(f"L_rd_even{tag}")
        a(f"s_lshl_b32 s{S_T0}, s{S_B}, 4")
        a(f"s_add_u32 s{S_T0}, s{S_T0}, s{S_HKV}")
        a(f"s_cmp_lt_u32 s{S_T0}, 72")
        a(f"s_cbranch_scc0 L_rd_red2{tag}")
        a(f"s_mov_b32 s{S_ROLE}, {ROLE_C}")
        a(f"s_mov_b32 s{S_RIDX}, s{S_T0}")
        a(f"s_branch L_rd_done{tag}")
        a.label(f"L_rd_red2{tag}")
        a(f"s_branch L_rd_done{tag}")
        a.label(f"L_rd_hi{tag}")
        a(f"s_cmp_eq_u32 s{S_J}, 15")
        a(f"s_cbranch_scc1 L_rd_red{tag}")
        a(f"s_mov_b32 s{S_ROLE}, {ROLE_B}")
        a(f"s_sub_u32 s{S_RIDX}, s{S_J}, 10")
        a(f"s_branch L_rd_done{tag}")
        a.label(f"L_rd_red{tag}")
        a.label(f"L_rd_done{tag}")

    def helper_sync(self, idx):
        a = self.a
        lab = a.newlabel("L_hs")
        a("s_waitcnt lgkmcnt(0)")
        a(f"v_mov_b32 v3, {LDS_CNT + 4*idx}")
        a("v_mov_b32 v4, 1")
        a("s_mov_b64 exec, 1")
        a("ds_add_u32 v3, v4")
        a("s_mov_b64 exec, -1")
        a(f"s_mov_b32 s{S_SPIN}, 0")
        a.label(lab)
        a("ds_read_b32 v4, v3")
        a("s_waitcnt lgkmcnt(0)")
        a(f"v_readfirstlane_b32 s{S_T0}, v4")
        a(f"s_cmp_ge_u32 s{S_T0}, 8")
        a(f"s_cbranch_scc1 {lab}_done")
        self.spin(lab, self.hsleep, 0x100000)
        a.label(lab + "_done")

    def wait_tiles(self, thr):
        a = self.a
        lab = a.newlabel("L_wt")
        a(f"s_mov_b32 s{S_SPIN}, 0")
        a(f"v_mov_b32 v3, {LDS_CNT + 32}")
        a.label(lab)
        a("ds_read_b32 v4, v3")
        a("s_waitcnt lgkmcnt(0)")
        a(f"v_readfirstlane_b32 s{S_T0}, v4")
        a(f"s_cmp_ge_u32 s{S_T0}, {thr}")
        a(f"s_cbranch_scc1 {lab}_done")
        self.spin(lab, 32, 0x10000)
        a.label(lab + "_done")

    def poll_counter(self, target):
        a = self.a
        lab = a.newlabel("L_pc")
        a(f"s_mov_b32 s{S_SPIN}, 0")
        a("v_mov_b32 v3, 0")
        a.label(lab)
        a(f"global_load_dword v4, v3, {sr(S_DBG,2)} sc1")
        a("s_waitcnt vmcnt(0)")
        a(f"v_readfirstlane_b32 s{S_T0}, v4")
        a(f"s_cmp_ge_u32 s{S_T0}, {target}")
        a(f"s_cbranch_scc1 {lab}_done")
        self.spin(lab, 32, 0x10000)
        a.label(lab + "_done")

    def helper_mid(self):
        a = self.a
        KT = self.KT; TS = 32 // KT
        if not self.rearly:
            a(f"s_cmp_lg_u32 s{S_HW}, 7")
            a("s_cbranch_scc1 L_reset_done")
            self.resets("m")
            self.reset_signal()
        a.label("L_reset_done")
        if self.nors & 2: a("s_branch L_mid_done")
        self.stamp(11)
        a(f"s_cmp_eq_u32 s{S_ROLE}, {ROLE_C}")
        a("s_cbranch_scc1 L_role_c")
        a(f"s_cmp_eq_u32 s{S_ROLE}, {ROLE_NONE}")
        a("s_cbranch_scc1 L_role_none")
        self.w_prefetch()
        a(f"s_cmp_eq_u32 s{S_ROLE}, {ROLE_B}")
        a("s_cbranch_scc1 L_role_b")
        a(f"s_cmp_lg_u32 s{S_HW}, 0")
        a("s_cbranch_scc1 L_mid_done")
        self.wait_tiles(80 * TS)
        self.poll_counter(256)
        a("s_branch L_mid_done")
        a.label("L_role_b")
        self.role_b()
        a("s_branch L_mid_done")
        a.label("L_role_c")
        self.role_c()
        a("s_branch L_mid_done")
        a.label("L_role_none")
        a.label("L_mid_done")

    def resets(self, tag):
        a = self.a
        if self.nors & 1: return
        for k in range(4, 8): a(f"v_mov_b32 v{k}, -1")
        a("v_lshlrev_b32 v3, 4, v0")
        a(f"s_lshl_b32 s{S_T0}, s{S_HKV}, 4")
        a(f"s_add_u32 s{S_T0}, s{S_T0}, s{S_J}")
        a(f"s_lshl_b32 s{S_T0}, s{S_T0}, 11")
        a(f"buffer_store_dwordx4 v[4:7], v3, {sr(SRD_WS,4)}, s{S_T0} offen sc1")
        a("s_mov_b64 exec, 1")
        a(f"buffer_store_dwordx4 v[4:7], v3, {sr(SRD_WS,4)}, s{S_T0} offen offset:1024 sc1")
        a("s_mov_b64 exec, -1")
        a(f"s_cmp_eq_u32 s{S_ROLE}, {ROLE_NONE}")
        a(f"s_cbranch_scc1 L_rs_end{tag}")
        a(f"s_cmp_eq_u32 s{S_ROLE}, {ROLE_C}")
        a(f"s_cbranch_scc1 L_rs_c{tag}")
        a(f"s_mul_i32 s{S_T0}, s{S_HKV}, 5")
        a(f"s_add_u32 s{S_T0}, s{S_T0}, s{S_RIDX}")
        a(f"s_lshl_b32 s{S_T0}, s{S_T0}, 12")
        a(f"s_cmp_eq_u32 s{S_ROLE}, {ROLE_A}")
        a(f"s_mov_b32 s{S_T2}, {WS_F2}")
        a(f"s_cselect_b32 s{S_T1}, {WS_P2}, s{S_T2}")
        a(f"s_add_u32 s{S_T0}, s{S_T0}, s{S_T1}")
        for k in range(4):
            a(f"buffer_store_dwordx4 v[4:7], v3, {sr(SRD_WS,4)}, s{S_T0} offen offset:{k*1024} sc1")
        a(f"s_branch L_rs_end{tag}")
        a.label(f"L_rs_c{tag}")
        self.h_addr()
        a(f"buffer_store_dwordx4 v[4:7], v8, {sr(SRD_WS,4)}, s{S_T0} offen sc1")
        a.label(f"L_rs_end{tag}")

    def reset_signal(self):
        a = self.a
        a("s_waitcnt vmcnt(0)")
        a("v_mov_b32 v3, 0")
        a("v_mov_b32 v4, 1")
        a(f"v_mov_b32 v5, {LDS_CNT + 24}")
        a("s_mov_b64 exec, 1")
        a(f"global_atomic_add v3, v4, {sr(S_DBG,2)} sc1")
        a("ds_add_u32 v5, v4")
        a("s_mov_b64 exec, -1")

    def h_addr(self):
        a = self.a
        a("v_lshrrev_b32 v8, 3, v0")
        a(f"s_movk_i32 s{S_T1}, 9216")
        a(f"v_mul_lo_u32 v8, v8, s{S_T1}")
        a("v_and_b32 v9, 7, v0")
        a("v_lshl_add_u32 v8, v9, 4, v8")
        a(f"s_lshl_b32 s{S_T0}, s{S_RIDX}, 7")
        a(f"s_add_u32 s{S_T0}, s{S_T0}, {WS_H}")

    def w_unit_to_lds(self, kb_sgpr):
        a = self.a
        a(f"s_lshl_b32 s{S_T0}, s{kb_sgpr}, 13")
        a("v_lshlrev_b32 v3, 4, v0")
        a(f"v_add_u32 v3, s{S_T0}, v3")
        a(f"v_add_u32 v3, {LDS_W}, v3")
        for c in range(4):
            for e in range(2):
                j = 2 * c + e
                T = 8 + 4 * (j & 3)
                self.perm_block(64, c, e, T)
                a(f"ds_write_b128 v3, {vr(T,4)} offset:{j*1024}")

    def w_common(self):
        a = self.a
        a(f"s_movk_i32 s{S_T1}, 1152")
        a(f"v_mul_lo_u32 v3, v3, s{S_T1}")
        a("v_and_b32 v1, 15, v0")
        a("v_lshl_add_u32 v1, v1, 4, v3")
        a(f"s_mul_i32 s{S_UOFF}, s{S_T0}, 1152")
        a(f"s_lshl_b32 s{S_T1}, s{S_RIDX}, 8")
        a(f"s_add_u32 s{S_UOFF}, s{S_UOFF}, s{S_T1}")

    def w_setup_a(self):
        a = self.a
        self.srd(SRD_W, S_WO, 0 if (self.nowt & 1) else 4096 * 1152)
        a("v_lshrrev_b32 v3, 4, v0")
        a("v_and_b32 v4, 1, v3")
        a("v_lshlrev_b32 v4, 6, v4")
        a("v_lshrrev_b32 v3, 1, v3")
        a("v_add_u32 v3, v3, v4")
        a(f"s_lshl_b32 s{S_T0}, s{S_HKV}, 8")
        a(f"s_lshr_b32 s{S_T1}, s{S_HW}, 2")
        a(f"s_lshl_b32 s{S_T1}, s{S_T1}, 7")
        a(f"s_add_u32 s{S_T0}, s{S_T0}, s{S_T1}")
        a(f"s_and_b32 s{S_T1}, s{S_HW}, 3")
        a(f"s_lshl_b32 s{S_T1}, s{S_T1}, 1")
        a(f"s_add_u32 s{S_T0}, s{S_T0}, s{S_T1}")
        a(f"s_movk_i32 s{S_STRIDE}, {8*1152}")
        self.w_common()

    def w_setup_b(self):
        a = self.a
        self.srd(SRD_W, S_WD, 0 if (self.nowt & 1) else 4608 * 1152)
        a("v_lshrrev_b32 v3, 4, v0")
        a("v_lshlrev_b32 v3, 3, v3")
        a(f"s_mul_i32 s{S_T0}, s{S_HKV}, 288")
        a(f"s_lshl_b32 s{S_T1}, s{S_HW}, 5")
        a(f"s_add_u32 s{S_T0}, s{S_T0}, s{S_T1}")
        a(f"s_movk_i32 s{S_STRIDE}, 1152")
        self.w_common()

    def w_issue(self):
        a = self.a
        a(f"s_mov_b32 s{S_T2}, s{S_UOFF}")
        for t in range(8):
            a(f"buffer_load_dwordx4 {vr(64+4*t,4)}, v1, {sr(SRD_W,4)}, s{S_T2} offen nt")
            if t < 7: a(f"s_add_u32 s{S_T2}, s{S_T2}, s{S_STRIDE}")

    def w_prefetch(self):
        a = self.a
        a(f"s_mov_b32 s{S_CNT}, s{S_HW}")
        a(f"s_cmp_eq_u32 s{S_ROLE}, {ROLE_B}")
        a("s_cbranch_scc1 L_wp_b")
        if self.vearly & 1:
            a("s_branch L_wp_fin")
        else:
            self.w_setup_a()
            a("s_branch L_wp_loop")
        a.label("L_wp_b")
        self.w_setup_b()
        a.label("L_wp_loop")
        self.w_issue()
        a.label("L_wp_fin")
        a("s_waitcnt vmcnt(0)")
        self.w_unit_to_lds(S_CNT)
        a(f"s_cmp_eq_u32 s{S_ROLE}, {ROLE_B}")
        a("s_cbranch_scc0 L_wp_done")
        a(f"s_cmp_eq_u32 s{S_CNT}, 0")
        a("s_cbranch_scc0 L_wp_done")
        a(f"s_mov_b32 s{S_CNT}, 8")
        a(f"s_add_u32 s{S_UOFF}, s{S_UOFF}, {256*1152}")
        a("s_branch L_wp_loop")
        a.label("L_wp_done")
        a("s_waitcnt lgkmcnt(0)")

    def c_setup(self):
        a = self.a
        self.srd(SRD_W, S_WG, 0 if (self.nowt & 2) else 576 * 9216)
        self.srd(SRD_W2, S_WU, 0 if (self.nowt & 2) else 576 * 9216)
        a("v_lshrrev_b32 v3, 4, v0")
        a(f"s_mov_b32 s{S_T1}, {8*9216}")
        a(f"v_mul_lo_u32 v3, v3, s{S_T1}")
        a("v_and_b32 v1, 7, v0")
        a("v_lshl_add_u32 v1, v1, 4, v3")
        a(f"s_mul_i32 s{S_UOFF}, s{S_HW}, {32*9216}")
        a(f"s_lshl_b32 s{S_T1}, s{S_RIDX}, 7")
        a(f"s_add_u32 s{S_UOFF}, s{S_UOFF}, s{S_T1}")

    def c_issue(self, buf):
        a = self.a
        a(f"s_mov_b32 s{S_T2}, s{S_UOFF}")
        a("s_mov_b32 exec_lo, 0x00ff00ff"); a("s_mov_b32 exec_hi, 0x00ff00ff")
        for t in range(8):
            a(f"buffer_load_dwordx4 {vr(buf+4*t,4)}, v1, {sr(SRD_W,4)}, s{S_T2} offen nt")
            a(f"s_add_u32 s{S_T2}, s{S_T2}, 9216")
        a(f"s_mov_b32 s{S_T2}, s{S_UOFF}")
        a("s_mov_b32 exec_lo, 0xff00ff00"); a("s_mov_b32 exec_hi, 0xff00ff00")
        for t in range(8):
            a(f"buffer_load_dwordx4 {vr(buf+4*t,4)}, v1, {sr(SRD_W2,4)}, s{S_T2} offen nt")
            a(f"s_add_u32 s{S_T2}, s{S_T2}, 9216")
        a("s_mov_b64 exec, -1")
        a(f"s_add_u32 s{S_UOFF}, s{S_UOFF}, {8*32*9216}")

    def proj(self, nkb, a_imm, a_stride, wave_sgpr, tag, preloaded=False):
        a = self.a
        if not preloaded:
            self.proj_preload(nkb, wave_sgpr)
        a("v_and_b32 v2, 7, v0")
        a(f"s_movk_i32 s{S_T0}, {a_stride}")
        a(f"v_mul_lo_u32 v2, v2, s{S_T0}")
        a("v_lshrrev_b32 v3, 4, v0")
        a("v_lshl_add_u32 v2, v3, 4, v2")
        AR = [4 + 4 * k for k in range(7)] + [100, 104]
        for kb in range(nkb):
            a(f"ds_read_b128 {vr(AR[kb],4)}, v2 offset:{a_imm + kb*64}")
        for kb in range(nkb):
            a(f"s_waitcnt lgkmcnt({nkb-1-kb})")
            c = "0" if kb == 0 else "v[32:35]"
            a(f"v_mfma_f32_16x16x32_bf16 v[32:35], {vr(AR[kb],4)}, {vr(64+4*kb,4)}, {c}")

    def proj_preload(self, nkb, wave_sgpr):
        a = self.a
        a(f"s_lshl_b32 s{S_T0}, s{wave_sgpr}, 10")
        a("v_lshlrev_b32 v3, 4, v0")
        a(f"v_add_u32 v3, s{S_T0}, v3")
        a(f"v_add_u32 v3, {LDS_W}, v3")
        for kb in range(nkb):
            if kb < 8:
                a(f"ds_read_b128 {vr(64+4*kb,4)}, v3 offset:{kb*8192}")
            else:
                a("v_add_u32 v2, 0x10000, v3")
                a(f"ds_read_b128 {vr(64+4*kb,4)}, v2 offset:{(kb-8)*8192}")

    def publish4(self, acc):
        a = self.a
        for k in range(4):
            a(f"v_min_u32 v{acc+k}, s{S_SENTM1}, v{acc+k}")
        a("v_and_b32 v3, 15, v0")
        a("v_lshlrev_b32 v3, 5, v3")
        a("v_lshrrev_b32 v2, 4, v0")
        a("v_lshl_add_u32 v3, v2, 4, v3")
        self.lane_mask_lt(32)
        a(f"buffer_store_dwordx4 {vr(acc,4)}, v3, {sr(SRD_WS,4)}, s{S_T0} offen sc1")
        self.restore_exec()

    def role_b(self):
        a = self.a
        TS = 32 // self.KT
        self.wait_tiles(48 * TS)
        self.poll_counter(256)
        a(f"s_mul_i32 s{S_T1}, s{S_HW}, 9216")
        a(f"s_mul_i32 s{S_T2}, s{S_HKV}, 576")
        a(f"s_add_u32 s{S_T1}, s{S_T1}, s{S_T2}")
        a(f"s_add_u32 s{S_T1}, s{S_T1}, {WS_H}")
        a("v_lshlrev_b32 v5, 4, v0")
        self.lane_mask_lt(36)
        a(f"s_mov_b32 s{S_SPIN}, 0")
        a.label("L_b_poll")
        a(f"buffer_load_dwordx4 v[8:11], v5, {sr(SRD_WS,4)}, s{S_T1} offen sc1")
        a("s_waitcnt vmcnt(0)")
        a("v_max3_u32 v6, v8, v9, v10")
        a("v_max_u32 v6, v6, v11")
        a("v_cmp_eq_u32 vcc, -1, v6")
        a("s_cbranch_vccz L_b_ok")
        self.spin("L_b_poll", 64, 0x8000)
        a.label("L_b_ok")
        a(f"s_mul_i32 s{S_T1}, s{S_HW}, {H_STRIDE}")
        a(f"v_add_u32 v5, s{S_T1}, v5")
        a(f"ds_write_b128 v5, v[8:11] offset:{LDS_H}")
        self.restore_exec()
        self.helper_sync(0)
        self.proj(9, LDS_H, H_STRIDE, S_HW, "b")
        a(f"s_mul_i32 s{S_T0}, s{S_HKV}, 5")
        a(f"s_add_u32 s{S_T0}, s{S_T0}, s{S_RIDX}")
        a(f"s_lshl_b32 s{S_T0}, s{S_T0}, 12")
        a(f"s_lshl_b32 s{S_T1}, s{S_HW}, 9")
        a(f"s_add_u32 s{S_T0}, s{S_T0}, s{S_T1}")
        a(f"s_add_u32 s{S_T0}, s{S_T0}, {WS_F2}")
        self.publish4(32)

    def role_c(self):
        a = self.a
        issue = self.c_issue
        if not (self.vearly & 2):
            self.c_setup()
            issue(64)
        issue(96)
        a("v_and_b32 v2, 7, v0")
        a(f"s_movk_i32 s{S_T0}, {XN_STRIDE}")
        a(f"v_mul_lo_u32 v2, v2, s{S_T0}")
        a("v_lshrrev_b32 v3, 4, v0")
        a("v_lshl_add_u32 v2, v3, 4, v2")
        a(f"s_lshl_b32 s{S_T1}, s{S_HW}, 6")
        a(f"v_add_u32 v2, s{S_T1}, v2")
        for k in range(32): a(f"v_mov_b32 v{32+k}, 0")
        def process(buf, u, vm):
            a(f"ds_read_b128 v[16:19], v2 offset:{LDS_XN + u*512}")
            a(f"s_waitcnt vmcnt({vm})")
            self.perm_block(buf, 0, 0, 8); self.perm_block(buf, 0, 1, 12)
            a("s_waitcnt lgkmcnt(0)")
            for c in range(4):
                for e in range(2):
                    j = 2 * c + e
                    a(f"v_mfma_f32_16x16x32_bf16 {vr(32+4*j,4)}, v[16:19], {vr(8+4*e,4)}, {vr(32+4*j,4)}")
                    if c < 3: self.perm_block(buf, c + 1, e, 8 + 4 * e)
        process(64, 0, 16)
        a(f"s_cmp_ge_u32 s{S_HW}, 2")
        a("s_cbranch_scc1 L_c_u1")
        issue(64)
        process(96, 1, 16)
        process(64, 2, 0)
        a("s_branch L_c_ud")
        a.label("L_c_u1")
        process(96, 1, 0)
        a.label("L_c_ud")
        a(f"s_lshl_b32 s{S_T0}, s{S_HW}, 12")
        a("v_and_b32 v3, 15, v0")
        a("v_lshlrev_b32 v3, 8, v3")
        a("v_lshrrev_b32 v4, 4, v0")
        a("v_lshl_add_u32 v3, v4, 4, v3")
        a(f"v_add_u32 v3, s{S_T0}, v3")
        self.lane_mask_lt(32)
        for j in range(8):
            a(f"ds_write_b128 v3, {vr(32+4*j,4)} offset:{LDS_FP + j*32}")
        self.restore_exec()
        self.helper_sync(1)
        a(f"s_lshl_b32 s{S_T0}, s{S_HW}, 6")
        a(f"v_add_u32 v3, s{S_T0}, v0")
        a("v_lshlrev_b32 v4, 2, v3")
        a(f"v_add_u32 v4, {LDS_FP}, v4")
        for k in range(8):
            a(f"ds_read_b32 v{8+k}, v4 offset:{k*4096}")
        for k in range(8):
            a(f"ds_read_b32 v{16+k}, v4 offset:{k*4096 + 2048}")
        a("s_waitcnt lgkmcnt(0)")
        for base in (8, 16):
            for k in range(4):
                a(f"v_add_f32 v{base+k}, v{base+k}, v{base+4+k}")
            a(f"v_add_f32 v{base}, v{base}, v{base+2}")
            a(f"v_add_f32 v{base+1}, v{base+1}, v{base+3}")
            a(f"v_add_f32 v{base}, v{base}, v{base+1}")
            self.rne(base)
        a(f"v_mul_f32 v10, s{S_LOG2E}, v8")
        a("v_exp_f32 v10, -v10")
        a("v_add_f32 v10, 1.0, v10")
        a("v_rcp_f32 v12, v10")
        a("v_mul_f32 v14, v8, v12")
        a("v_fma_f32 v18, -v14, v10, v8")
        a("v_fma_f32 v14, v18, v12, v14")
        self.rne(14)
        a("v_mul_f32 v14, v14, v16")
        a("v_cvt_pk_bf16_f32 v14, v14, v14")
        a("v_lshrrev_b32 v5, 3, v3")
        a("v_and_b32 v6, 7, v3")
        a("v_lshlrev_b32 v6, 7, v6")
        a("v_lshl_add_u32 v6, v5, 1, v6")
        a(f"ds_write_b16 v6, v14 offset:{LDS_H}")
        self.helper_sync(2)
        a(f"s_cmp_lg_u32 s{S_HW}, 0")
        a("s_cbranch_scc1 L_c_done")
        a(f"v_mov_b32 v3, {LDS_CNT + 24}")
        a(f"s_mov_b32 s{S_SPIN}, 0")
        a.label("L_c_rw")
        a("ds_read_b32 v4, v3")
        a("s_waitcnt lgkmcnt(0)")
        a(f"v_readfirstlane_b32 s{S_T0}, v4")
        a(f"s_cmp_ge_u32 s{S_T0}, 1")
        a("s_cbranch_scc1 L_c_rok")
        self.spin("L_c_rw", 4, 0x100000)
        a.label("L_c_rok")
        a("v_lshlrev_b32 v3, 4, v0")
        a(f"ds_read_b128 v[4:7], v3 offset:{LDS_H}")
        self.h_addr()
        a("s_waitcnt lgkmcnt(0)")
        for k in range(4, 8):
            a(f"v_min_u32 v{k}, s{S_SENTM1}, v{k}")
        a(f"buffer_store_dwordx4 v[4:7], v8, {sr(SRD_WS,4)}, s{S_T0} offen sc1")
        a.label("L_c_done")

    def rowsum4(self, base):
        for pat in ("quad_perm:[1,0,3,2]", "quad_perm:[2,3,0,1]", "row_half_mirror", "row_mirror"):
            for r in range(4):
                self.a(f"v_add_f32_dpp v{base+r}, v{base+r}, v{base+r} {pat} row_mask:0xf bank_mask:0xf")

    def select4(self, dst, base):
        a = self.a
        a(f"v_mov_b32 v{dst}, v{base}")
        for k in range(1, 4):
            a(f"v_cmp_eq_u32 vcc, {k}, v6")
            a(f"v_cndmask_b32 v{dst}, v{dst}, v{base+k}, vcc")

    def poll1(self, base_imm, tag, sleep):
        a = self.a
        a(f"s_mov_b32 s{S_SPIN}, 0")
        a(f"s_mov_b32 s{S_T0}, {base_imm}")
        a.label(f"L_p1_{tag}")
        a(f"buffer_load_dwordx4 v[16:19], v1, {sr(SRD_WS,4)}, s{S_T0} offen sc1")
        a("s_waitcnt vmcnt(0)")
        a("v_max3_u32 v5, v16, v17, v18")
        a("v_max_u32 v5, v5, v19")
        a("v_cmp_eq_u32 vcc, -1, v5")
        a(f"s_cbranch_vccz L_p1_{tag}_done")
        self.spin(f"L_p1_{tag}", sleep, 0x40000)
        a.label(f"L_p1_{tag}_done")

    def reducer_pre(self):
        a = self.a
        TS = 32 // self.KT
        a("v_mbcnt_lo_u32_b32 v0, -1, 0")
        a("v_mbcnt_hi_u32_b32 v0, -1, v0")
        self.wait_tiles(100 * TS)
        self.poll_counter(256)
        a(f"s_lshr_b32 s{S_CB}, s{S_R}, 6")
        a(f"s_bfe_u32 s{S_T1}, s{S_R}, 0x30003")
        a(f"s_and_b32 s{S_T2}, s{S_R}, 7")
        a(f"s_cmp_lt_u32 s{S_R}, 256")
        a("s_cbranch_scc1 L_rp_dec")
        a(f"s_sub_u32 s{S_T3}, s{S_R}, 256")
        a(f"s_lshr_b32 s{S_T1}, s{S_T3}, 2")
        a(f"s_and_b32 s{S_T2}, s{S_T3}, 3")
        a.label("L_rp_dec")
        a(f"s_lshl_b32 s{S_T0}, s{S_CB}, 12")
        a(f"s_lshl_b32 s{S_T3}, s{S_T1}, 9")
        a(f"s_add_u32 s{S_T0}, s{S_T0}, s{S_T3}")
        a(f"s_lshl_b32 s{S_T3}, s{S_T2}, 6")
        a(f"s_add_u32 s{S_T0}, s{S_T0}, s{S_T3}")
        a("v_and_b32 v2, 15, v0")
        a(f"s_movk_i32 s{S_T3}, 20480")
        a(f"v_mul_lo_u32 v1, v2, s{S_T3}")
        a("v_lshrrev_b32 v3, 5, v0")
        a("v_bfe_u32 v4, v0, 4, 1")
        a("v_lshl_add_u32 v1, v3, 5, v1")
        a("v_lshl_add_u32 v1, v4, 4, v1")
        a(f"v_add_u32 v1, s{S_T0}, v1")
        a("v_and_b32 v6, 3, v0")
        a(f"s_lshl_b32 s{S_T0}, s{S_CB}, 7")
        a(f"s_lshl_b32 s{S_T3}, s{S_T2}, 4")
        a(f"s_add_u32 s{S_T0}, s{S_T0}, s{S_T3}")
        a(f"s_add_u32 s{S_T0}, s{S_T0}, s{S_T1}")
        a("v_lshlrev_b32 v3, 3, v3")
        a(f"v_add_u32 v3, s{S_T0}, v3")
        a("v_lshl_add_u32 v4, v4, 2, v6")
        a(f"s_movk_i32 s{S_T3}, 1152")
        a(f"v_mul_lo_u32 v4, v4, s{S_T3}")
        a("v_lshl_add_u32 v7, v3, 1, v4")
        self.srd(SRD_X, S_X, 8 * 1152)
        a(f"buffer_load_ushort v9, v7, {sr(SRD_X,4)}, 0 offen")
        self.poll1(WS_F2, "f2", 32)
        self.rowsum4(16)
        self.select4(8, 16)
        self.rne(8)
        a("v_lshlrev_b32 v9, 16, v9")

    def tail(self):
        a = self.a
        NS = self.NS
        a.label("L_B4")
        a("s_barrier")
        self.stamp(5)
        a("s_setprio 0")
        a("v_mbcnt_lo_u32_b32 v0, -1, 0")
        a("v_mbcnt_hi_u32_b32 v0, -1, v0")
        a(f"s_cmp_lg_u32 s{S_WAVE}, 0")
        a("s_cbranch_scc1 L_nomerge")
        a("v_lshlrev_b32 v2, 4, v0")
        a("v_lshrrev_b32 v3, 5, v0")
        a("v_lshlrev_b32 v3, 3, v3")
        for w in range(NS):
            a(f"ds_read_b64 {vr(16+2*w,2)}, v3 offset:{LDS_SP + w*SP_STRIDE + 1024}")
        for w in range(NS):
            a(f"ds_read_b128 {vr(32+4*w,4)}, v2 offset:{LDS_SP + w*SP_STRIDE}")
        a(f"s_waitcnt lgkmcnt({NS})")
        a("v_max_f32 v4, v16, v18")
        for w in range(2, NS):
            a(f"v_max_f32 v4, v4, v{16+2*w}")
        for w in range(NS):
            a(f"v_sub_f32 v{16+2*w}, v{16+2*w}, v4")
            a(f"v_mul_f32 v{16+2*w}, s{S_LOG2E}, v{16+2*w}")
            a(f"v_exp_f32 v{16+2*w}, v{16+2*w}")
        a("v_mul_f32 v5, v16, v17")
        for w in range(1, NS):
            a(f"v_fmac_f32 v5, v{16+2*w}, v{17+2*w}")
        a("s_waitcnt lgkmcnt(0)")
        for r in range(4):
            a(f"v_mul_f32 v{8+r}, v16, v{32+r}")
        for w in range(1, NS):
            for r in range(4):
                a(f"v_fmac_f32 v{8+r}, v{16+2*w}, v{32+4*w+r}")
        for r in range(4):
            a(f"v_min_u32 v{8+r}, s{S_SENTM1}, v{8+r}")
        a(f"v_min_u32 v4, s{S_SENTM1}, v4")
        a(f"v_min_u32 v5, s{S_SENTM1}, v5")
        a(f"s_lshl_b32 s{S_T0}, s{S_HKV}, 4")
        a(f"s_add_u32 s{S_T0}, s{S_T0}, s{S_J}")
        a(f"s_lshl_b32 s{S_T0}, s{S_T0}, 11")
        a(f"buffer_store_dwordx4 v[8:11], v2, {sr(SRD_WS,4)}, s{S_T0} offen sc1")
        a(f"v_readlane_b32 s{S_T1}, v4, 32")
        a(f"v_readlane_b32 s{S_T2}, v5, 32")
        a("v_mov_b32 v12, v4")
        a("v_mov_b32 v13, v5")
        a(f"v_mov_b32 v14, s{S_T1}")
        a(f"v_mov_b32 v15, s{S_T2}")
        a("v_mov_b32 v3, 0")
        a("s_mov_b64 exec, 1")
        a(f"buffer_store_dwordx4 v[12:15], v3, {sr(SRD_WS,4)}, s{S_T0} offen offset:1024 sc1")
        a("s_mov_b64 exec, -1")
        self.stamp(6)
        a.label("L_nomerge")
        a(f"s_cmp_lt_u32 s{S_J}, 10")
        a("s_cbranch_scc0 L_notcons")
        a(f"s_cmp_eq_u32 s{S_SPLIT}, 1")
        a("s_cbranch_scc1 L_consumer")
        a.label("L_notcons")
        a(f"s_cmp_lt_i32 s{S_R}, 0")
        a("s_cbranch_scc1 L_end")
        a("s_setprio 3")
        self.poll1(WS_P2, "p2", 1)
        self.stamp(7)
        self.rowsum4(16)
        self.select4(10, 16)
        self.rne(10)
        a("v_add_f32 v10, v9, v10")
        self.rne(10)
        a("v_add_f32 v10, v10, v8")
        a("v_cvt_pk_bf16_f32 v10, v10, v10")
        self.srd(SRD_X, S_OUT, 8 * 1152)
        a("v_and_b32 v2, 15, v0")
        a("v_cmp_gt_u32 vcc, 4, v2")
        a(f"s_and_saveexec_b64 {sr(S_EX,2)}, vcc")
        a(f"buffer_store_short v10, v7, {sr(SRD_X,4)}, 0 offen {self.ofl}")
        self.restore_exec()
        a(f"s_cmp_lg_u32 s{S_R}, 0")
        a("s_cbranch_scc1 L_end")
        a(f"s_add_u32 s{S_TA}, s{S_TA}, 0x9e3779b9")
        a(f"v_mov_b32 v3, s{S_TA}")
        a("v_mov_b32 v2, 0")
        a(f"s_mov_b32 s{S_T0}, {WS_GEN}")
        a("s_mov_b64 exec, 1")
        a(f"buffer_store_dword v3, v2, {sr(SRD_WS,4)}, s{S_T0} offen sc1")
        a("s_mov_b64 exec, -1")
        a("s_branch L_end")
        a.label("L_consumer")
        a(f"s_cmp_ge_u32 s{S_WAVE}, 8")
        a("s_cbranch_scc1 L_c_nopre")
        self.proj_preload(8, S_WAVE)
        a.label("L_c_nopre")
        a(f"s_lshr_b32 s{S_T1}, s{S_WAVE}, 1")
        a(f"s_and_b32 s{S_T2}, s{S_WAVE}, 1")
        a(f"s_lshl_b32 s{S_T0}, s{S_HKV}, 4")
        a(f"s_lshl_b32 s{S_T3}, s{S_T1}, 1")
        a(f"s_add_u32 s{S_T0}, s{S_T0}, s{S_T3}")
        a(f"s_lshl_b32 s{S_T0}, s{S_T0}, 11")
        a("v_lshrrev_b32 v2, 5, v0")
        a("v_lshlrev_b32 v2, 11, v2")
        a("v_and_b32 v3, 31, v0")
        a("v_lshl_add_u32 v3, v3, 4, v2")
        a(f"s_lshl_b32 s{S_T3}, s{S_T2}, 9")
        a(f"v_add_u32 v3, s{S_T3}, v3")
        a(f"s_mov_b32 s{S_SPIN}, 0")
        a.label("L_c_poll")
        a(f"buffer_load_dwordx4 v[8:11], v3, {sr(SRD_WS,4)}, s{S_T0} offen sc1")
        a(f"buffer_load_dwordx4 v[12:15], v2, {sr(SRD_WS,4)}, s{S_T0} offen offset:1024 sc1")
        a("s_waitcnt vmcnt(0)")
        a("v_max3_u32 v6, v8, v9, v10")
        a("v_max3_u32 v6, v6, v11, v12")
        a("v_max3_u32 v6, v6, v13, v14")
        a("v_max_u32 v6, v6, v15")
        a("v_cmp_eq_u32 vcc, -1, v6")
        a("s_cbranch_vccz L_c_ok")
        self.spin("L_c_poll", 1, 0x40000)
        a.label("L_c_ok")
        self.stamp(7)
        a(f"s_cmp_eq_u32 s{S_T2}, 0")
        a("s_cselect_b64 vcc, -1, 0")
        a("v_cndmask_b32 v4, v14, v12, vcc")
        a("v_cndmask_b32 v5, v15, v13, vcc")
        a("v_mov_b32 v6, v4")
        a("v_permlane32_swap_b32 v4, v6")
        a("v_mov_b32 v7, v5")
        a("v_permlane32_swap_b32 v5, v7")
        a("v_max_f32 v16, v4, v6")
        a("v_sub_f32 v4, v4, v16")
        a("v_sub_f32 v6, v6, v16")
        a(f"v_mul_f32 v4, s{S_LOG2E}, v4")
        a(f"v_mul_f32 v6, s{S_LOG2E}, v6")
        a("v_exp_f32 v4, v4")
        a("v_exp_f32 v6, v6")
        a("v_mul_f32 v5, v4, v5")
        a("v_fmac_f32 v5, v6, v7")
        a("v_rcp_f32 v7, v5")
        a("v_cmp_gt_u32 vcc, 32, v0")
        a("v_cndmask_b32 v4, v6, v4, vcc")
        a("v_fma_f32 v6, -v5, v7, 1.0")
        a("v_fma_f32 v7, v6, v7, v7")
        a("v_mul_f32 v4, v4, v7")
        for r in range(4):
            a(f"v_mul_f32 v{8+r}, v{8+r}, v4")
        for r in range(4):
            a(f"v_mov_b32 v{12+r}, v{8+r}")
        for r in range(4):
            a(f"v_permlane32_swap_b32 v{8+r}, v{12+r}")
        for r in range(4):
            a(f"v_add_f32 v{8+r}, v{8+r}, v{12+r}")
        a("v_cvt_pk_bf16_f32 v8, v8, v9")
        a("v_cvt_pk_bf16_f32 v9, v10, v11")
        a(f"s_mul_i32 s{S_T0}, s{S_T1}, {O_STRIDE}")
        a(f"s_lshl_b32 s{S_T3}, s{S_T2}, 8")
        a(f"s_add_u32 s{S_T0}, s{S_T0}, s{S_T3}")
        a("v_lshlrev_b32 v3, 3, v0")
        a(f"v_add_u32 v3, s{S_T0}, v3")
        self.lane_mask_lt(32)
        a(f"ds_write_b64 v3, v[8:9] offset:{LDS_O}")
        self.restore_exec()
        a("s_waitcnt lgkmcnt(0)")
        a("s_barrier")
        self.stamp(8)
        a(f"s_cmp_ge_u32 s{S_WAVE}, 8")
        a("s_cbranch_scc1 L_end")
        self.proj(8, LDS_O, O_STRIDE, S_WAVE, "a", preloaded=True)
        a(f"s_mul_i32 s{S_T0}, s{S_HKV}, 5")
        a(f"s_add_u32 s{S_T0}, s{S_T0}, s{S_B}")
        a(f"s_lshl_b32 s{S_T0}, s{S_T0}, 12")
        a(f"s_lshl_b32 s{S_T1}, s{S_WAVE}, 9")
        a(f"s_add_u32 s{S_T0}, s{S_T0}, s{S_T1}")
        a(f"s_add_u32 s{S_T0}, s{S_T0}, {WS_P2}")
        self.publish4(32)
        a.label("L_end")
        if self.diag:
            a(f"s_memrealtime {sr(S_TS,2)}")
            a("s_waitcnt lgkmcnt(0)")
            a(f"v_mov_b32 v8, s{S_TS}")
            a("v_mov_b32 v9, 12")
            a("s_mov_b64 exec, 1")
            a(f"global_atomic_umax v9, v8, {sr(S_DBG,2)}")
            a("s_mov_b64 exec, -1")
        self.stamp(9)
        self.stamp_flush()
        a.label("L_exit")
        a("s_endpgm")

    def build(self):
        self.prologue()
        self.stream()
        self.aux()
        self.tail()
        body = self.a.finish()
        hdr = open("cdna_kernels/" + NAME + ".s.ref").read().split("; Override launch geometry")[0]
        out = hdr
        out += "; Override launch geometry by editing the next line (default: block=256,\n"
        out += f"; @launch grid=(256,1,1) block=(1024,1,1) lds={LDS_TOTAL}\n"
        out += '.amdgcn_target "amdgcn-amd-amdhsa--gfx950"\n.text\n'
        out += f".globl {NAME}_kernel\n.p2align 8\n.type {NAME}_kernel,@function\n{NAME}_kernel:\n"
        out += body
        out += '.section .rodata,"a"\n.p2align 6\n'
        out += f".amdhsa_kernel {NAME}_kernel\n"
        out += "  .amdhsa_next_free_vgpr 128\n  .amdhsa_next_free_sgpr 100\n  .amdhsa_accum_offset 128\n"
        out += "  .amdhsa_group_segment_fixed_size 0\n  .amdhsa_kernarg_size 96\n  .amdhsa_user_sgpr_count 2\n"
        out += "  .amdhsa_user_sgpr_kernarg_segment_ptr 1\n  .amdhsa_system_sgpr_workgroup_id_x 1\n.end_amdhsa_kernel\n"
        return out

if __name__ == "__main__":
    dbg = "--debug" in sys.argv
    outp = [x for x in sys.argv[1:] if not x.startswith("--")]
    kw = {}
    for x in sys.argv[1:]:
        if x.startswith("--") and "=" in x:
            k_, v_ = x[2:].split("="); kw[k_] = int(v_)
    g = Gen(debug=dbg, stamps="--stamps" in sys.argv, **kw)
    s = g.build()
    path = outp[0] if outp else "cdna_kernels/" + NAME + ".s"
    open(path, "w").write(s)
    print("wrote", path, "lines", s.count("\n"), "nops inserted", g.a.ninserted)
```

```python
import sys
from dsl import Asm, vr, sr

NAME = "parallel_sum__gqa_block_cached__swiglu_ffn__decode"
LOG2E = 0x3fb8aa3b
SCALE = 0x3db504f3

XN_STRIDE = 1184
LDS_XN = 0
LDS_XB = LDS_XN + 8 * XN_STRIDE
LDS_QPART = LDS_XB + 1152
LDS_Q = LDS_QPART + 12 * 512
LDS_SP = LDS_Q + 512
SP_STRIDE = 1040
LDS_O = LDS_SP + 8 * SP_STRIDE
O_STRIDE = 544
LDS_CNT = LDS_O + 8 * O_STRIDE
LDS_H = LDS_CNT + 64
H_STRIDE = 608
LDS_FP = LDS_H + 8 * H_STRIDE
LDS_W = LDS_FP
LDS_QFP = LDS_W + 9 * 8192
LDS_TOTAL = LDS_QFP + 6 * 4096

REC_STRIDE = 2048
WS_REC = 0
WS_P2 = 256 * REC_STRIDE
WS_F2 = WS_P2 + 16 * 5 * 4096
WS_H = WS_F2 + 16 * 5 * 4096
WS_GEN = WS_H + 8 * 9216
WS_QP = WS_GEN + 4096
WS_DBG = WS_QP + 16 * 3 * 16384
WS_STAMP = WS_DBG + (512 << 10)
WS_SIZE = WS_DBG + (1 << 20)

S_WAVE = 3
S_X, S_K, S_V, S_WQ, S_WO, S_BX, S_WG, S_WU = 4, 6, 8, 10, 12, 14, 16, 18
S_WD, S_OUT, S_DBG, S_WS = 20, 22, 24, 26
S_HKV, S_B, S_SPLIT, S_J = 28, 29, 30, 31
SRD_K, SRD_V, SRD_W, SRD_WS = 32, 36, 40, 44
S_SEL_LO, S_SEL_HI = 48, 49
S_OFF, S_OFF2, S_CNT = 50, 51, 52
S_STRIDE, S_UOFF, S_NT, S_FIRST, S_T0 = 53, 54, 55, 56, 57
S_HW, S_ROLE, S_RIDX, S_T1, S_T2, S_T3 = 58, 59, 60, 61, 62, 63
S_LOG2E, S_SCALE, S_MASKHI, S_SENTM1 = 64, 65, 66, 67
S_EX = 68
SRD_W2 = 72
SRD_X = 76
S_SPIN = 80
S_R = 81
S_CB = 82
S_NXT = 83
S_TA, S_TB = 70, 71
S_TS = 84
S_ST0 = 86
ROLE_NONE, ROLE_A, ROLE_B, ROLE_C = 0, 1, 2, 3

class Gen:
    def __init__(self, debug=False, stamps=False, NS=8, KT=32, LA=1, comp=1, map4=1, earlyV=1, earlyK=1, qsleep=8, kvtouch=1, pace=4, kpol=1, vpol=1, noq=0, nowt=0, hsleep=1, only=0, stop=0, qfix=0, qsc=1, qst=1, dC=6, dA=4, dB=4, pj0=10, emask=0xff, vearly=3, ofl=0, warm=0, nors=0, rearly=0, diag=0):
        self.diag = diag
        self.rearly = rearly
        self.nors = nors
        self.ofl = {0: '', 1: 'sc1', 2: 'sc0 sc1', 3: 'nt'}[ofl]; self.warm = warm
        self.vearly = vearly
        self.emask = emask
        assert NS <= 6
        self.dC = dC; self.dA = dA; self.dB = dB; self.pj0 = pj0
        self.qst = qst
        self.qfix = qfix; self.qfl = 'sc1' if qsc else ''
        self.stop = stop
        self.only = only
        self.hsleep = hsleep
        self.nowt = nowt
        self.noq = noq
        POL = {0: '', 1: 'nt', 2: 'sc1', 3: 'sc0 sc1', 4: 'sc1 nt', 5: 'sc0'}
        self.kfl = POL[kpol]; self.vfl = POL[vpol]
        self.pace = pace
        self.kvtouch = kvtouch
        self.earlyK = earlyK
        self.qsleep = qsleep
        self.earlyV = earlyV
        self.map4 = map4
        self.a = Asm()
        self.debug = debug; self.stamps = stamps
        self.NS = NS; self.KT = KT; self.LA = LA; self.comp = comp

    def srd(self, dst, base, size, off_sgpr=None):
        a = self.a
        if off_sgpr is not None:
            a(f"s_add_u32 s{dst}, s{base}, s{off_sgpr}")
            a(f"s_addc_u32 s{dst+1}, s{base+1}, 0")
        else:
            a(f"s_mov_b32 s{dst}, s{base}")
            a(f"s_mov_b32 s{dst+1}, s{base+1}")
        a(f"s_mov_b32 s{dst+2}, {size}")
        a(f"s_mov_b32 s{dst+3}, 0x20000")

    def stamp(self, k):
        if not self.stamps: return
        a = self.a
        a(f"s_memrealtime {sr(S_TS,2)}")
        a("s_waitcnt lgkmcnt(0)")
        a(f"s_mov_b32 s{S_ST0+k}, s{S_TS}")

    def stamp_flush(self):
        if not self.stamps: return
        a = self.a
        a("s_mov_b64 exec, -1")
        a("v_mbcnt_lo_u32_b32 v0, -1, 0")
        a("v_mbcnt_hi_u32_b32 v0, -1, v0")
        a("v_mov_b32 v1, 0")
        for k in range(12):
            a(f"v_writelane_b32 v1, s{S_ST0+k}, {k}")
        a(f"s_lshl_b32 s{S_T0}, s2, 4")
        a(f"s_add_u32 s{S_T0}, s{S_T0}, s{S_WAVE}")
        a(f"s_lshl_b32 s{S_T0}, s{S_T0}, 6")
        a(f"s_add_u32 s{S_T0}, s{S_T0}, {WS_STAMP}")
        a("v_lshlrev_b32 v2, 2, v0")
        a("v_cmp_gt_u32 vcc, 16, v0")
        a(f"s_and_saveexec_b64 {sr(S_EX,2)}, vcc")
        a(f"buffer_store_dword v1, v2, {sr(SRD_WS,4)}, s{S_T0} offen")

    def wave_sum(self, x, t):
        a = self.a
        for pat in ("quad_perm:[1,0,3,2]", "quad_perm:[2,3,0,1]", "row_half_mirror", "row_mirror"):
            a(f"v_add_f32_dpp v{x}, v{x}, v{x} {pat} row_mask:0xf bank_mask:0xf")
        a(f"v_mov_b32 v{t}, v{x}")
        a(f"v_permlane16_swap_b32 v{x}, v{t}")
        a(f"v_add_f32 v{x}, v{x}, v{t}")
        a(f"v_mov_b32 v{t}, v{x}")
        a(f"v_permlane32_swap_b32 v{x}, v{t}")
        a(f"v_add_f32 v{x}, v{x}, v{t}")

    def rne(self, x):
        a = self.a
        a(f"v_cvt_pk_bf16_f32 v{x}, v{x}, v{x}")
        a(f"v_and_b32 v{x}, 0xffff0000, v{x}")

    def lane_mask_lt(self, n, lane="v0"):
        a = self.a
        a(f"v_cmp_gt_u32 vcc, {n}, {lane}")
        a(f"s_and_saveexec_b64 {sr(S_EX,2)}, vcc")
    def restore_exec(self):
        self.a(f"s_mov_b64 exec, {sr(S_EX,2)}")

    def spin(self, lab, sleep, bound):
        a = self.a
        a(f"s_sleep {sleep}")
        a(f"s_add_u32 s{S_SPIN}, s{S_SPIN}, 1")
        a(f"s_cmp_lt_u32 s{S_SPIN}, {bound}")
        a(f"s_cbranch_scc1 {lab}")

    def layernorm(self, R, X, T, vL, lds_imm, s_row=None):
        a = self.a
        t0, t1, t2, t3, t4, t5 = range(T, T + 6)
        for k in range(5):
            a(f"v_lshlrev_b32 v{X+2*k}, 16, v{R+k}")
            a(f"v_and_b32 v{X+2*k+1}, s{S_MASKHI}, v{R+k}")
        a(f"v_add_f32 v{t0}, v{X}, v{X+1}")
        for k in range(2, 10):
            a(f"v_add_f32 v{t0}, v{t0}, v{X+k}")
        self.wave_sum(t0, t1)
        a(f"s_mov_b32 s{S_T1}, 0x44100000")
        a(f"s_mov_b32 s{S_T2}, 0x3ae38e39")
        a(f"v_mul_f32 v{t1}, s{S_T2}, v{t0}")
        a(f"v_fma_f32 v{t2}, -v{t1}, s{S_T1}, v{t0}")
        a(f"v_fma_f32 v{t1}, v{t2}, s{S_T2}, v{t1}")
        a(f"v_cmp_gt_u32 vcc, 32, v{vL}")
        a(f"v_sub_f32 v{t2}, v{X+8}, v{t1}")
        a(f"v_mul_f32 v{t3}, v{t2}, v{t2}")
        a(f"v_sub_f32 v{t2}, v{X+9}, v{t1}")
        a(f"v_fmac_f32 v{t3}, v{t2}, v{t2}")
        a(f"v_cndmask_b32 v{t3}, 0, v{t3}, vcc")
        for k in range(8):
            a(f"v_sub_f32 v{t2}, v{X+k}, v{t1}")
            a(f"v_fmac_f32 v{t3}, v{t2}, v{t2}")
        self.wave_sum(t3, t2)
        a(f"v_mul_f32 v{t2}, s{S_T2}, v{t3}")
        a(f"v_fma_f32 v{t0}, -v{t2}, s{S_T1}, v{t3}")
        a(f"v_fma_f32 v{t2}, v{t0}, s{S_T2}, v{t2}")
        self.rne(t1); self.rne(t2)
        a(f"v_add_f32 v{t2}, 0x3727c5ac, v{t2}")
        self.rne(t2)
        a(f"v_sqrt_f32 v{t3}, v{t2}")
        a(f"v_rcp_f32 v{t0}, v{t3}")
        a(f"v_fma_f32 v{t4}, -v{t3}, v{t3}, v{t2}")
        a(f"v_mul_f32 v{t0}, 0.5, v{t0}")
        a(f"v_fma_f32 v{t3}, v{t4}, v{t0}, v{t3}")
        self.rne(t3)
        a(f"v_rcp_f32 v{t0}, v{t3}")
        for k in range(10):
            a(f"v_sub_f32 v{X+k}, v{X+k}, v{t1}")
        for k in range(5):
            a(f"v_cvt_pk_bf16_f32 v{R+k}, v{X+2*k}, v{X+2*k+1}")
        for k in range(5):
            a(f"v_lshlrev_b32 v{X+2*k}, 16, v{R+k}")
            a(f"v_and_b32 v{X+2*k+1}, s{S_MASKHI}, v{R+k}")
        for k in range(10):
            a(f"v_mul_f32 v{t4}, v{X+k}, v{t0}")
            a(f"v_fma_f32 v{t5}, -v{t4}, v{t3}, v{X+k}")
            a(f"v_fma_f32 v{X+k}, v{t5}, v{t0}, v{t4}")
        for k in range(5):
            a(f"v_cvt_pk_bf16_f32 v{R+k}, v{X+2*k}, v{X+2*k+1}")
        a(f"v_lshlrev_b32 v{t4}, 4, v{vL}")
        a(f"v_lshlrev_b32 v{t5}, 2, v{vL}")
        if s_row is not None:
            a(f"v_add_u32 v{t4}, s{s_row}, v{t4}")
            a(f"v_add_u32 v{t5}, s{s_row}, v{t5}")
        a(f"ds_write_b128 v{t4}, {vr(R,4)} offset:{lds_imm}")
        a(f"s_and_saveexec_b64 {sr(S_EX,2)}, vcc")
        a(f"ds_write_b32 v{t5}, v{R+4} offset:{lds_imm+1024}")
        self.restore_exec()

    def xload(self, R, vL, tmp, s_rowbytes):
        a = self.a
        self.srd(SRD_X, S_X, 1152, off_sgpr=s_rowbytes)
        a(f"v_lshlrev_b32 v{tmp}, 4, v{vL}")
        a(f"buffer_load_dwordx4 {vr(R,4)}, v{tmp}, {sr(SRD_X,4)}, 0 offen")
        a(f"v_lshlrev_b32 v{tmp}, 2, v{vL}")
        a(f"buffer_load_dword v{R+4}, v{tmp}, {sr(SRD_X,4)}, 0 offen offset:1024")

    def prologue(self):
        a = self.a
        a("s_cmp_ge_u32 s2, 256")
        a("s_cbranch_scc1 L_exit")
        a("s_load_dwordx16 s[4:19], s[0:1], 0")
        a("s_load_dwordx8 s[20:27], s[0:1], 64")
        a("v_lshrrev_b32 v1, 6, v0")
        a("v_and_b32 v0, 63, v0")
        a(f"v_readfirstlane_b32 s{S_WAVE}, v1")
        for k in range(2, 8): a(f"v_mov_b32 v{k}, 0")
        if self.map4:
            a(f"s_and_b32 s{S_HKV}, s2, 3")
            a(f"s_lshl_b32 s{S_HKV}, s{S_HKV}, 2")
            a(f"s_bfe_u32 s{S_T1}, s2, 0x20003")
            a(f"s_add_u32 s{S_HKV}, s{S_HKV}, s{S_T1}")
            a(f"s_lshr_b32 s{S_B}, s2, 5")
            a(f"s_bfe_u32 s{S_SPLIT}, s2, 0x10002")
        else:
            a(f"s_and_b32 s{S_HKV}, s2, 7")
            a(f"s_lshr_b32 s{S_T0}, s2, 3")
            a(f"s_and_b32 s{S_T1}, s{S_T0}, 1")
            a(f"s_lshl_b32 s{S_HKV}, s{S_HKV}, 1")
            a(f"s_add_u32 s{S_HKV}, s{S_HKV}, s{S_T1}")
            a(f"s_lshr_b32 s{S_T0}, s{S_T0}, 1")
            a(f"s_and_b32 s{S_B}, s{S_T0}, 7")
            a(f"s_lshr_b32 s{S_SPLIT}, s{S_T0}, 3")
        a(f"s_lshl_b32 s{S_J}, s{S_B}, 1")
        a(f"s_add_u32 s{S_J}, s{S_J}, s{S_SPLIT}")
        a(f"s_mov_b32 s{S_SEL_LO}, 0x05040100")
        a(f"s_mov_b32 s{S_SEL_HI}, 0x07060302")
        a(f"s_mov_b32 s{S_LOG2E}, {LOG2E:#x}")
        a(f"s_mov_b32 s{S_SCALE}, {SCALE:#x}")
        a(f"s_mov_b32 s{S_MASKHI}, 0xffff0000")
        a(f"s_mov_b32 s{S_SENTM1}, 0xfffffffe")
        a(f"s_mov_b32 s{S_R}, -1")
        if self.stamps:
            for k in range(12): a(f"s_mov_b32 s{S_ST0+k}, 0")
        a("s_waitcnt lgkmcnt(0)")
        self.srd(SRD_WS, S_WS, WS_SIZE)
        a(f"s_add_u32 s{S_T0}, s{S_WS}, {WS_GEN}")
        a(f"s_addc_u32 s{S_T1}, s{S_WS+1}, 0")
        a(f"s_mov_b32 s{S_T2}, s{S_T0}")
        a(f"s_mov_b32 s{S_T3}, s{S_T1}")
        a(f"s_load_dword s{S_TA}, {sr(S_T2,2)}, 0")
        self.stamp(0)
        if self.diag:
            a(f"s_cmp_lg_u32 s{S_WAVE}, 0")
            a("s_cbranch_scc1 L_dg0")
            a(f"s_and_b32 s{S_T0}, s2, 31")
            a(f"s_cmp_lg_u32 s{S_T0}, 0")
            a("s_cbranch_scc1 L_dg0")
            a(f"s_memrealtime {sr(S_TS,2)}")
            a("s_waitcnt lgkmcnt(0)")
            a(f"s_not_b32 s{S_TS}, s{S_TS}")
            a(f"v_mov_b32 v8, s{S_TS}")
            a("v_mov_b32 v9, 8")
            a("s_mov_b64 exec, 1")
            a(f"global_atomic_umax v9, v8, {sr(S_DBG,2)}")
            a("s_mov_b64 exec, -1")
            a.label("L_dg0")
        a(f"s_cmp_ge_u32 s{S_WAVE}, 8")
        a("s_cbranch_scc1 L_aux")

    def touch(self, base, size, n, dst):
        a = self.a
        self.srd(SRD_W, base, size)
        a("v_lshlrev_b32 v4, 20, v0")
        self.lane_mask_lt(n)
        a(f"buffer_load_dword v{dst}, v4, {sr(SRD_W,4)}, 0 offen")
        self.restore_exec()

    def stream_setup(self):
        a = self.a
        KT = self.KT; TB = KT * 256; NTP = 8192 // KT
        half = NTP // 2
        u = 32 // KT if KT <= 32 else 1
        dC = self.dC * (32 // KT) * self.comp // 2
        dA = -self.dA * (32 // KT) * self.comp // 2
        dB = self.dB * (32 // KT) * self.comp // 2
        a(f"s_mov_b32 s{S_T1}, {half}")
        a(f"s_cmp_lt_u32 s{S_B}, 4")
        a(f"s_cselect_b32 s{S_T1}, {half - dC}, s{S_T1}")
        a(f"s_cmp_eq_u32 s{S_B}, 4")
        a("s_cbranch_scc0 L_sp1")
        a(f"s_cmp_lt_u32 s{S_HKV}, 8")
        a(f"s_mov_b32 s{S_T2}, {half - dA}")
        a(f"s_cselect_b32 s{S_T1}, {half - dC}, s{S_T2}")
        a.label("L_sp1")
        a(f"s_cmp_eq_u32 s{S_B}, 7")
        a(f"s_cselect_b32 s{S_T1}, {half - dB}, s{S_T1}")
        a(f"s_sub_u32 s{S_T2}, {NTP}, s{S_T1}")
        a(f"s_cmp_eq_u32 s{S_SPLIT}, 0")
        a(f"s_cselect_b32 s{S_NT}, s{S_T1}, s{S_T2}")
        a(f"s_cselect_b32 s{S_T1}, 0, s{S_T1}")
        a(f"s_lshl_b32 s{S_T0}, s{S_B}, 4")
        a(f"s_add_u32 s{S_T0}, s{S_T0}, s{S_HKV}")
        a(f"s_lshl_b32 s{S_T0}, s{S_T0}, 21")
        a(f"s_mul_i32 s{S_T1}, s{S_T1}, {TB}")
        a(f"s_add_u32 s{S_T0}, s{S_T0}, s{S_T1}")
        a(f"s_mul_i32 s{S_T2}, s{S_NT}, {TB}")
        self.srd(SRD_K, S_K, f"s{S_T2}", off_sgpr=S_T0)
        self.srd(SRD_V, S_V, f"s{S_T2}", off_sgpr=S_T0)
        a("v_and_b32 v4, 15, v0")
        a("v_lshrrev_b32 v5, 4, v0")
        a("v_lshlrev_b32 v6, 10, v5")
        a("v_lshl_add_u32 v1, v4, 4, v6")
        a("v_lshlrev_b32 v6, 4, v5")
        a("v_and_b32 v7, 1, v0")
        a("v_lshl_add_u32 v7, v7, 8, v6")
        a("v_lshl_add_u32 v0, v4, 8, v6")

    def issueK(self, o1=S_OFF, o2=S_OFF2):
        for u in range(self.KT // 16):
            for s_ in range(4):
                r = 64 + (u * 4 + s_) * 4
                self.a(f"buffer_load_dwordx4 {vr(r,4)}, v0, {sr(SRD_K,4)}, s{o1 if u == 0 else o2} offen offset:{s_*64} {self.kfl}")
    def issueV(self, o1=S_OFF, o2=S_OFF2):
        for u in range(self.KT // 16):
            for r_ in range(4):
                r = 96 + (u * 4 + r_) * 4
                self.a(f"buffer_load_dwordx4 {vr(r,4)}, v1, {sr(SRD_V,4)}, s{o1 if u == 0 else o2} offen offset:{r_*256} {self.vfl}")

    def stream(self):
        a = self.a
        NS, KT, LA = self.NS, self.KT, self.LA
        NU = KT // 16; NL = 4 * NU; TB = KT * 256
        VK, VV, M, L, P, S, Q, O, KB, VB = 0, 1, 2, 3, 4, 8, 16, 32, 64, 96
        a(f"s_cmp_ge_u32 s{S_WAVE}, {NS}")
        a("s_cbranch_scc1 L_idle")
        tl = {1: [(S_WS, WS_SIZE, 4), (S_WO, 4096*1152, 5), (S_OUT, 8*1152, 1)],
              2: [(S_WG, 576*9216, 6), (S_WU, 576*9216, 6), (S_DBG, 256, 1)],
              3: [(S_WD, 4608*1152, 6)]}
        for w in (1, 2, 3):
            lab = f"L_s_t{w}"
            a(f"s_cmp_lg_u32 s{S_WAVE}, {w}")
            a(f"s_cbranch_scc1 {lab}")
            for k, t in enumerate(tl[w]):
                self.touch(*t, 8 + k)
            a.label(lab)
        self.stream_setup()
        if self.kvtouch:
            a(f"s_cmp_lg_u32 s{S_WAVE}, 0")
            a("s_cbranch_scc1 L_s_nkt")
            a("v_mbcnt_lo_u32_b32 v12, -1, 0")
            a("v_mbcnt_hi_u32_b32 v12, -1, v12")
            a("v_lshlrev_b32 v12, 18, v12")
            a("s_mov_b64 exec, 0x1f")
            a(f"buffer_load_dword v13, v12, {sr(SRD_K,4)}, 0 offen nt")
            a(f"buffer_load_dword v14, v12, {sr(SRD_V,4)}, 0 offen nt")
            a("s_mov_b64 exec, -1")
            a.label("L_s_nkt")
        a(f"s_mul_i32 s{S_OFF}, s{S_WAVE}, {TB}")
        a(f"s_add_u32 s{S_OFF2}, s{S_OFF}, 4096")
        seq = []
        for u in range(NU):
            for s_ in range(4):
                seq.append(f"buffer_load_dwordx4 {vr(KB+(u*4+s_)*4,4)}, v0, {sr(SRD_K,4)}, s{S_OFF if u == 0 else S_OFF2} offen offset:{s_*64} {self.kfl}")
        for u in range(NU):
            for r_ in range(4):
                seq.append(f"buffer_load_dwordx4 {vr(VB+(u*4+r_)*4,4)}, v1, {sr(SRD_V,4)}, s{S_OFF if u == 0 else S_OFF2} offen offset:{r_*256} {self.vfl}")
        PS = self.pace
        for k0 in range(0, len(seq), PS):
            if k0 > 0: a("s_waitcnt vmcnt(0)")
            for ins in seq[k0:k0+PS]: a(ins)
            if k0 == 0:
                a("s_barrier")
                for k in range(32):
                    a(f"v_mov_b32 v{O+k}, 0")
                a(f"v_mov_b32 v{M}, 0xff800000")
                a(f"v_mov_b32 v{L}, 0")
        self.stamp(4)
        if self.only or self.noq: a("s_branch L_s_qok")
        a(f"v_mov_b32 v{P}, {LDS_CNT + 20}")
        a(f"s_mov_b32 s{S_SPIN}, 0")
        a.label("L_s_qw")
        a(f"ds_read_b32 v{P+1}, v{P}")
        a("s_waitcnt lgkmcnt(0)")
        a(f"v_readfirstlane_b32 s{S_T0}, v{P+1}")
        a(f"s_cmp_ge_u32 s{S_T0}, 2")
        a("s_cbranch_scc1 L_s_qok")
        self.spin("L_s_qw", 2, 0x100000)
        a.label("L_s_qok")
        self.stamp(1)
        for s_ in range(4):
            a(f"ds_read_b128 {vr(Q+4*s_,4)}, v7 offset:{LDS_Q + s_*64}")
        a(f"s_mov_b32 s{S_CNT}, s{S_WAVE}")
        a(f"s_mov_b32 s{S_FIRST}, 0")
        a(f"s_mov_b32 s{S_STRIDE}, 0")
        a(f"v_mov_b32 v{P}, {LDS_CNT + 32}")
        a(f"v_mov_b32 v{P+1}, 1")
        a("s_mov_b64 exec, 1")
        a(f"ds_add_rtn_u32 v{P+2}, v{P}, v{P+1}")
        a("s_mov_b64 exec, -1")
        a("s_waitcnt lgkmcnt(0)")
        a(f"v_readfirstlane_b32 s{S_NXT}, v{P+2}")
        a.label("L_sloop")
        a(f"s_mul_i32 s{S_OFF}, s{S_NXT}, {TB}")
        a(f"s_add_u32 s{S_OFF2}, s{S_OFF}, 4096")
        if LA == 2:
            a(f"s_waitcnt vmcnt({NL})")
        else:
            a("s_waitcnt vmcnt(0)")
            a(f"s_cmp_eq_u32 s{S_FIRST}, 0")
            a(f"s_mov_b32 s{S_FIRST}, 1")
            a("s_cbranch_scc1 L_skipV")
            a(f"s_mul_i32 s{S_T2}, s{S_CNT}, {TB}")
            a(f"s_add_u32 s{S_T3}, s{S_T2}, 4096")
            self.issueV(S_T2, S_T3)
            a.label("L_skipV")
        for s_ in range(4):
            for u in range(NU):
                c = "0" if s_ == 0 else vr(S + 4 * u, 4)
                a(f"v_mfma_f32_16x16x32_bf16 {vr(S+4*u,4)}, {vr(KB+(u*4+s_)*4,4)}, {vr(Q+4*s_,4)}, {c}")
        if LA == 2:
            self.issueK()
        NP = 2 * NU; NSV = 4 * NU
        for p in range(NP):
            a(f"v_cvt_pk_bf16_f32 v{P+p}, v{S+2*p}, v{S+2*p+1}")
        for p in range(NP):
            a(f"v_lshlrev_b32 v{S+2*p}, 16, v{P+p}")
            a(f"v_and_b32 v{S+2*p+1}, s{S_MASKHI}, v{P+p}")
        for k in range(NSV):
            a(f"v_mul_f32 v{S+k}, s{S_SCALE}, v{S+k}")
        for p in range(NP):
            a(f"v_cvt_pk_bf16_f32 v{P+p}, v{S+2*p}, v{S+2*p+1}")
        for p in range(NP):
            a(f"v_lshlrev_b32 v{S+2*p}, 16, v{P+p}")
            a(f"v_and_b32 v{S+2*p+1}, s{S_MASKHI}, v{P+p}")
        if NU == 2:
            a(f"v_max3_f32 v{P}, v{S}, v{S+1}, v{S+2}")
            a(f"v_max3_f32 v{P+1}, v{S+3}, v{S+4}, v{S+5}")
            a(f"v_max3_f32 v{P}, v{P}, v{S+6}, v{S+7}")
            a(f"v_max_f32 v{P}, v{P}, v{P+1}")
        else:
            a(f"v_max3_f32 v{P}, v{S}, v{S+1}, v{S+2}")
            a(f"v_max_f32 v{P}, v{P}, v{S+3}")
        a(f"v_cmp_gt_f32 vcc, v{P}, v{M}")
        a("s_cbranch_vccz L_nores")
        a(f"v_mov_b32 v{P+1}, v{P}")
        a(f"v_permlane16_swap_b32 v{P}, v{P+1}")
        a(f"v_max_f32 v{P}, v{P}, v{P+1}")
        a(f"v_mov_b32 v{P+1}, v{P}")
        a(f"v_permlane32_swap_b32 v{P}, v{P+1}")
        a(f"v_max3_f32 v{P}, v{P}, v{P+1}, v{M}")
        a(f"v_sub_f32 v{P+2}, v{M}, v{P}")
        a(f"v_mul_f32 v{P+2}, s{S_LOG2E}, v{P+2}")
        a(f"v_exp_f32 v{P+2}, v{P+2}")
        a(f"v_mov_b32 v{M}, v{P}")
        a(f"v_mov_b32 v{P+3}, v{P+2}")
        a(f"v_mul_f32 v{L}, v{L}, v{P+2}")
        for k in range(16):
            a(f"v_pk_mul_f32 {vr(O+2*k,2)}, {vr(O+2*k,2)}, {vr(P+2,2)}")
        a.label("L_nores")
        a(f"v_mul_f32 v{P}, s{S_LOG2E}, v{M}")
        for k in range(NSV):
            a(f"v_fma_f32 v{S+k}, v{S+k}, s{S_LOG2E}, -v{P}")
        for k in range(NSV):
            a(f"v_exp_f32 v{S+k}, v{S+k}")
        if NU == 2:
            a(f"v_add_f32 v{P+1}, v{S}, v{S+1}")
            a(f"v_add_f32 v{P+2}, v{S+2}, v{S+3}")
            a(f"v_add_f32 v{P+3}, v{S+4}, v{S+5}")
            a(f"v_add_f32 v{P}, v{S+6}, v{S+7}")
            a(f"v_add_f32 v{P+1}, v{P+1}, v{P+2}")
            a(f"v_add_f32 v{P+3}, v{P+3}, v{P}")
            a(f"v_add_f32 v{L}, v{L}, v{P+1}")
            a(f"v_add_f32 v{L}, v{L}, v{P+3}")
        else:
            a(f"v_add_f32 v{P+1}, v{S}, v{S+1}")
            a(f"v_add_f32 v{P+2}, v{S+2}, v{S+3}")
            a(f"v_add_f32 v{L}, v{L}, v{P+1}")
            a(f"v_add_f32 v{L}, v{L}, v{P+2}")
        for p in range(NP):
            a(f"v_cvt_pk_bf16_f32 v{P+p}, v{S+2*p}, v{S+2*p+1}")
        if LA == 2:
            a(f"s_waitcnt vmcnt({NL})")
        else:
            a("s_waitcnt vmcnt(0)")
            self.issueK()
        npp = 4 if NU == 2 else 2
        def perms(c, e):
            for p in range(npp):
                a(f"v_perm_b32 v{S+4*e+p}, v{VB+(2*p+1)*4+c}, v{VB+(2*p)*4+c}, s{S_SEL_LO if e == 0 else S_SEL_HI}")
        def pv(c, e):
            j = 2 * c + e
            if NU == 2:
                a(f"v_mfma_f32_16x16x32_bf16 {vr(O+4*j,4)}, {vr(S+4*e,4)}, {vr(P,4)}, {vr(O+4*j,4)}")
            else:
                a(f"v_mfma_f32_16x16x16_bf16 {vr(O+4*j,4)}, {vr(S+4*e,2)}, {vr(P,2)}, {vr(O+4*j,4)}")
        perms(0, 0); perms(0, 1)
        for c in range(4):
            pv(c, 0)
            if c < 3: perms(c + 1, 0)
            pv(c, 1)
            if c < 3: perms(c + 1, 1)
        a(f"v_mov_b32 v{S}, {LDS_CNT + 32}")
        a(f"v_mov_b32 v{S+1}, 1")
        a("s_mov_b64 exec, 1")
        a(f"ds_add_rtn_u32 v{S+2}, v{S}, v{S+1}")
        a("s_mov_b64 exec, -1")
        if LA == 2:
            self.issueV()
        a(f"s_mov_b32 s{S_CNT}, s{S_NXT}")
        a("s_waitcnt lgkmcnt(0)")
        a(f"v_readfirstlane_b32 s{S_NXT}, v{S+2}")
        if self.stamps:
            a(f"s_add_u32 s{S_STRIDE}, s{S_STRIDE}, 1")
            for slot, it in ((6, 1), (7, 2), (8, 4), (10, 8), (11, 16)):
                lab = a.newlabel("L_its")
                a(f"s_cmp_lg_u32 s{S_STRIDE}, {it}")
                a(f"s_cbranch_scc1 {lab}")
                self.stamp(slot)
                a.label(lab)
        a(f"s_cmp_lt_u32 s{S_CNT}, s{S_NT}")
        a("s_cbranch_scc1 L_sloop")
        self.stamp(2)
        if self.only or self.stop in (1, 2, 11, 12, 13): a("s_branch L_exit")
        a(f"v_mov_b32 v{P}, v{L}")
        a(f"v_permlane16_swap_b32 v{L}, v{P}")
        a(f"v_add_f32 v{L}, v{L}, v{P}")
        a(f"v_mov_b32 v{P}, v{L}")
        a(f"v_permlane32_swap_b32 v{L}, v{P}")
        a(f"v_add_f32 v{L}, v{L}, v{P}")
        a("v_mbcnt_lo_u32_b32 v8, -1, 0")
        a("v_mbcnt_hi_u32_b32 v8, -1, v8")
        a("v_and_b32 v9, 15, v8")
        a("v_lshrrev_b32 v10, 4, v8")
        a(f"s_mul_i32 s{S_T0}, s{S_WAVE}, {SP_STRIDE}")
        a(f"s_add_u32 s{S_T0}, s{S_T0}, {LDS_SP}")
        a("v_lshlrev_b32 v11, 9, v9")
        a("v_lshl_add_u32 v11, v10, 4, v11")
        a(f"v_add_u32 v11, s{S_T0}, v11")
        a("v_cmp_gt_u32 vcc, 2, v9")
        a(f"s_and_saveexec_b64 {sr(S_EX,2)}, vcc")
        for j in range(8):
            a(f"ds_write_b128 v11, {vr(O+4*j,4)} offset:{j*64}")
        a("v_cmp_gt_u32 vcc, 2, v8")
        a("s_and_b64 exec, exec, vcc")
        a("v_lshlrev_b32 v12, 3, v9")
        a(f"v_add_u32 v12, s{S_T0}, v12")
        a(f"ds_write_b64 v12, {vr(M,2)} offset:1024")
        self.restore_exec()
        a("s_waitcnt vmcnt(0) lgkmcnt(0)")
        a("s_branch L_B4")
        a.label("L_idle")
        if self.only:
            a("s_barrier")
            a("s_branch L_exit")
        if self.rearly:
            a(f"s_cmp_lg_u32 s{S_WAVE}, 4")
            a("s_cbranch_scc1 L_id_nr")
            self.role_decode("i")
            self.resets("i")
            a("s_barrier")
            self.reset_signal()
            a("s_branch L_id_r")
            a.label("L_id_nr")
        a("s_barrier")
        if self.rearly: a.label("L_id_r")
        if self.stop in (1, 2, 11, 12, 13): a("s_branch L_exit")
        if self.warm:
            a(f"s_cmp_lg_u32 s{S_WAVE}, 5")
            a("s_cbranch_scc1 L_nowarm")
            a("v_mbcnt_lo_u32_b32 v0, -1, 0")
            a("v_mbcnt_hi_u32_b32 v0, -1, v0")
            self.wait_tiles(105 * (32 // self.KT))
            a(f"s_getpc_b64 {sr(S_T2,2)}")
            a.label("L_pc0")
            a(f"s_add_u32 s{S_T2}, s{S_T2}, L_B4-L_pc0")
            a(f"s_addc_u32 s{S_T3}, s{S_T3}, 0")
            a("v_lshlrev_b32 v3, 6, v0")
            a(f"global_load_dword v4, v3, {sr(S_T2,2)}")
            a("s_waitcnt vmcnt(0)")
            a.label("L_nowarm")
        a(f"s_cmp_lt_u32 s{S_WAVE}, 6")
        a("s_cbranch_scc1 L_B4")
        a(f"s_cmp_lt_u32 s{S_J}, 10")
        a("s_cbranch_scc0 L_rw_hi")
        a(f"s_cmp_eq_u32 s{S_SPLIT}, 0")
        a("s_cbranch_scc0 L_B4")
        a(f"s_mov_b32 s{S_T0}, s{S_B}")
        a("s_branch L_rw_go")
        a.label("L_rw_hi")
        a(f"s_sub_u32 s{S_T0}, s{S_J}, 5")
        a.label("L_rw_go")
        a(f"s_cmp_lt_u32 s{S_T0}, 9")
        a("s_cbranch_scc0 L_B4")
        a(f"s_mul_i32 s{S_R}, s{S_HKV}, 9")
        a(f"s_add_u32 s{S_R}, s{S_R}, s{S_T0}")
        a(f"s_lshl_b32 s{S_R}, s{S_R}, 1")
        a(f"s_add_u32 s{S_R}, s{S_R}, s{S_WAVE}")
        a(f"s_sub_u32 s{S_R}, s{S_R}, 6")
        self.reducer_pre()
        a("s_branch L_B4")

    def perm_block(self, buf, c, e, T):
        for p in range(4):
            self.a(f"v_perm_b32 v{T+p}, v{buf+(2*p+1)*4+c}, v{buf+(2*p)*4+c}, s{S_SEL_LO if e == 0 else S_SEL_HI}")

    def aux(self):
        a = self.a
        a.label("L_aux")
        if self.only:
            a("v_mov_b32 v8, 0")
            a("v_cmp_eq_u32 vcc, 8, v0")
            a(f"v_mov_b32 v9, {self.NS}")
            a("v_cndmask_b32 v8, v8, v9, vcc")
            a("v_lshlrev_b32 v9, 2, v0")
            self.lane_mask_lt(16)
            a(f"ds_write_b32 v9, v8 offset:{LDS_CNT}")
            self.restore_exec()
            a("s_waitcnt lgkmcnt(0)")
            a("s_barrier")
            a("s_branch L_exit")
        a("s_setprio 3")
        a(f"s_sub_u32 s{S_HW}, s{S_WAVE}, 8")
        a(f"s_mul_i32 s{S_T0}, s{S_HW}, 1152")
        self.xload(16, 0, 4, S_T0)
        a(f"s_cmp_lg_u32 s{S_HW}, 0")
        a("s_cbranch_scc1 L_a_nc")
        a("v_mov_b32 v8, 0")
        a("v_cmp_eq_u32 vcc, 8, v0")
        a(f"v_mov_b32 v9, {self.NS}")
        a("v_cndmask_b32 v8, v8, v9, vcc")
        a("v_lshlrev_b32 v9, 2, v0")
        self.lane_mask_lt(16)
        a(f"ds_write_b32 v9, v8 offset:{LDS_CNT}")
        self.restore_exec()
        a("s_waitcnt lgkmcnt(0)")
        a.label("L_a_nc")
        self.role_decode()
        a(f"s_mov_b32 s{S_FIRST}, 0")
        a(f"s_sub_u32 s{S_CB}, s{S_J}, {self.pj0}")
        a(f"s_cmp_lt_u32 s{S_CB}, 6")
        a("s_cbranch_scc0 L_a_np")
        a(f"s_mov_b32 s{S_FIRST}, 1")
        a(f"s_cmp_lt_u32 s{S_HW}, 6")
        a("s_cbranch_scc0 L_a_w0")
        self.srd(SRD_W, S_WQ, 576 * 8192)
        a("v_lshrrev_b32 v3, 4, v0")
        a("v_lshlrev_b32 v3, 16, v3")
        a("v_and_b32 v1, 15, v0")
        a("v_lshl_add_u32 v1, v1, 4, v3")
        a(f"s_lshr_b32 s{S_T1}, s{S_CB}, 1")
        a(f"s_mul_i32 s{S_T1}, s{S_T1}, 6")
        a(f"s_add_u32 s{S_T1}, s{S_T1}, s{S_HW}")
        a(f"s_mov_b32 s{S_NT}, s{S_T1}")
        a(f"s_lshl_b32 s{S_UOFF}, s{S_T1}, 18")
        a(f"s_and_b32 s{S_T2}, s{S_CB}, 1")
        a(f"s_lshl_b32 s{S_T2}, s{S_T2}, 8")
        a(f"s_lshl_b32 s{S_T3}, s{S_HKV}, 9")
        a(f"s_add_u32 s{S_UOFF}, s{S_UOFF}, s{S_T2}")
        a(f"s_add_u32 s{S_UOFF}, s{S_UOFF}, s{S_T3}")
        for t in range(8):
            a(f"buffer_load_dwordx4 {vr(64+4*t,4)}, v1, {sr(SRD_W,4)}, s{S_UOFF} offen nt")
            if t < 7: a(f"s_add_u32 s{S_UOFF}, s{S_UOFF}, 8192")
        a.label("L_a_w8")
        a("s_barrier")
        a("s_waitcnt vmcnt(8)")
        a("s_branch L_a_ln")
        a.label("L_a_np")
        if self.vearly & 1:
            a(f"s_cmp_eq_u32 s{S_ROLE}, {ROLE_A}")
            a("s_cbranch_scc0 L_a_na")
            self.w_setup_a()
            self.w_issue()
            a("s_branch L_a_w8")
            a.label("L_a_na")
        if self.vearly & 2:
            a(f"s_cmp_eq_u32 s{S_ROLE}, {ROLE_C}")
            a("s_cbranch_scc0 L_a_w0")
            self.c_setup()
            self.c_issue(64)
            a("s_barrier")
            a("s_waitcnt vmcnt(16)")
            a("s_branch L_a_ln")
        a.label("L_a_w0")
        a("s_barrier")
        a("s_waitcnt vmcnt(0)")
        a.label("L_a_ln")
        self.stamp(4)
        a(f"s_mul_i32 s{S_T3}, s{S_HW}, {XN_STRIDE}")
        self.layernorm(16, 32, 8, 0, LDS_XN, s_row=S_T3)
        self.stamp(2)
        self.helper_sync(3)
        if self.stop == 12: a("s_branch L_exit")
        a(f"s_xor_b32 s{S_TB}, s{S_TA}, 0x5bd1e995")
        a(f"s_add_u32 s{S_TB}, s{S_TB}, 0x7f4a7c15")
        a(f"s_add_u32 s{S_TA}, s{S_TA}, 0x9e3779b9")
        a(f"s_cmp_eq_u32 s{S_FIRST}, 0")
        a("s_cbranch_scc1 L_a_cons")
        a(f"s_cmp_lt_u32 s{S_HW}, 6")
        a("s_cbranch_scc0 L_a_pr")
        a("v_and_b32 v2, 7, v0")
        a(f"s_movk_i32 s{S_T0}, {XN_STRIDE}")
        a(f"v_mul_lo_u32 v2, v2, s{S_T0}")
        a("v_lshrrev_b32 v3, 4, v0")
        a("v_lshl_add_u32 v2, v3, 4, v2")
        a(f"s_lshl_b32 s{S_T1}, s{S_NT}, 6")
        a(f"v_add_u32 v2, s{S_T1}, v2")
        a(f"ds_read_b128 v[16:19], v2 offset:{LDS_XN}")
        a("s_waitcnt vmcnt(0)")
        self.stamp(7)
        self.perm_block(64, 0, 0, 8); self.perm_block(64, 0, 1, 12)
        a("s_waitcnt lgkmcnt(0)")
        for c in range(4):
            for e in range(2):
                j = 2 * c + e
                a(f"v_mfma_f32_16x16x32_bf16 {vr(32+4*j,4)}, {vr(8+4*e,4)}, v[16:19], 0")
                if c < 3: self.perm_block(64, c + 1, e, 8 + 4 * e)
        a("v_and_b32 v2, 15, v0")
        a("v_lshlrev_b32 v3, 9, v2")
        a("v_lshrrev_b32 v4, 4, v0")
        a("v_lshl_add_u32 v3, v4, 4, v3")
        a(f"s_lshl_b32 s{S_T1}, s{S_HW}, 12")
        a(f"s_add_u32 s{S_T1}, s{S_T1}, {LDS_QFP}")
        a(f"v_add_u32 v3, s{S_T1}, v3")
        a("v_cmp_gt_u32 vcc, 8, v2")
        a(f"s_and_saveexec_b64 {sr(S_EX,2)}, vcc")
        for j in range(8):
            a(f"ds_write_b128 v3, {vr(32+4*j,4)} offset:{j*64}")
        self.restore_exec()
        a.label("L_a_pr")
        self.helper_sync(4)
        a(f"s_lshl_b32 s{S_T1}, s{S_HW}, 9")
        a(f"s_add_u32 s{S_T1}, s{S_T1}, {LDS_QFP}")
        a("v_lshlrev_b32 v3, 3, v0")
        a(f"v_add_u32 v3, s{S_T1}, v3")
        for w in range(6):
            a(f"ds_read_b64 {vr(64+2*w,2)}, v3 offset:{w*4096}")
        a(f"s_lshr_b32 s{S_T0}, s{S_CB}, 1")
        a(f"s_mul_i32 s{S_T1}, s{S_HKV}, 3")
        a(f"s_add_u32 s{S_T0}, s{S_T0}, s{S_T1}")
        a(f"s_lshl_b32 s{S_T0}, s{S_T0}, 3")
        a(f"s_add_u32 s{S_T0}, s{S_T0}, s{S_HW}")
        a(f"s_lshl_b32 s{S_T0}, s{S_T0}, 11")
        a(f"s_and_b32 s{S_T1}, s{S_CB}, 1")
        a(f"s_lshl_b32 s{S_T1}, s{S_T1}, 10")
        a(f"s_add_u32 s{S_T0}, s{S_T0}, s{S_T1}")
        a(f"s_add_u32 s{S_T0}, s{S_T0}, {WS_QP}")
        a(f"v_mov_b32 v10, s{S_TA}")
        a(f"v_mov_b32 v11, s{S_TB}")
        a("v_lshlrev_b32 v3, 4, v0")
        a("s_waitcnt lgkmcnt(0)")
        for r in range(2):
            a(f"v_add_f32 v{64+r}, v{64+r}, v{66+r}")
            a(f"v_add_f32 v{68+r}, v{68+r}, v{70+r}")
            a(f"v_add_f32 v{72+r}, v{72+r}, v{74+r}")
            a(f"v_add_f32 v{64+r}, v{64+r}, v{68+r}")
            a(f"v_add_f32 v{8+r}, v{64+r}, v{72+r}")
        if self.qst == 1: a(f"buffer_store_dwordx4 v[8:11], v3, {sr(SRD_WS,4)}, s{S_T0} offen sc1")
        if self.qst == 5:
            a("s_mov_b64 exec, 0xffff")
            a(f"buffer_store_dwordx4 v[8:11], v3, {sr(SRD_WS,4)}, s{S_T0} offen sc1")
            a("s_mov_b64 exec, -1")
        if self.qst == 6:
            a(f"s_cmp_lt_u32 s{S_HW}, 2")
            a("s_cbranch_scc0 L_qst6")
            a(f"buffer_store_dwordx4 v[8:11], v3, {sr(SRD_WS,4)}, s{S_T0} offen sc1")
            a.label("L_qst6")
        if self.qst == 2: a(f"buffer_store_dwordx4 v[8:11], v3, {sr(SRD_WS,4)}, s{S_T0} offen")
        if self.qst == 3: a(f"buffer_store_dwordx4 v[8:11], v3, {sr(SRD_WS,4)}, s{S_T0} offen sc1 nt")
        if self.qst == 4: a(f"buffer_store_dwordx4 v[8:11], v3, {sr(SRD_WS,4)}, s{S_T0} offen sc0 sc1")
        self.stamp(6)
        a.label("L_a_cons")
        a(f"s_sub_u32 s{S_T3}, s{S_HW}, 2")
        a(f"s_cmp_lt_u32 s{S_T3}, 2")
        a("s_cbranch_scc0 L_a_B2")
        if self.stop == 13: a("s_branch L_exit")
        a(f"s_mul_i32 s{S_T1}, s{S_HKV}, {3*16384}")
        a(f"s_lshl_b32 s{S_T2}, s{S_B}, 11")
        a(f"s_add_u32 s{S_T1}, s{S_T1}, s{S_T2}")
        a(f"s_lshl_b32 s{S_T2}, s{S_T3}, 10")
        a(f"s_add_u32 s{S_T1}, s{S_T1}, s{S_T2}")
        a(f"s_add_u32 s{S_T1}, s{S_T1}, {WS_QP}")
        a("v_lshlrev_b32 v3, 4, v0")
        a(f"s_mov_b32 s{S_SPIN}, 0")
        a.label("L_q_poll")
        a(f"s_mov_b32 s{S_T0}, s{S_T1}")
        for p in range(3):
            a(f"buffer_load_dwordx4 {vr(96+4*p,4)}, v3, {sr(SRD_WS,4)}, s{S_T0} offen {self.qfl}")
            if p < 2: a(f"s_add_u32 s{S_T0}, s{S_T0}, 16384")
        a("s_waitcnt vmcnt(0)")
        a(f"v_xor_b32 v4, s{S_TA}, v98")
        a(f"v_xor_b32 v5, s{S_TB}, v99")
        a("v_or_b32 v4, v4, v5")
        for p in range(1, 3):
            a(f"v_xor_b32 v5, s{S_TA}, v{96+4*p+2}")
            a(f"v_xor_b32 v6, s{S_TB}, v{96+4*p+3}")
            a("v_or3_b32 v4, v4, v5, v6")
        a("v_cmp_ne_u32 vcc, 0, v4")
        if self.qfix == 0: a("s_cbranch_vccz L_q_ok")
        self.spin("L_q_poll", self.qsleep, 0x40000 if self.qfix == 0 else self.qfix)
        a.label("L_q_ok")
        self.stamp(8)
        for r in range(2):
            a(f"v_add_f32 v{96+r}, v{96+r}, v{100+r}")
            a(f"v_add_f32 v{96+r}, v{96+r}, v{104+r}")
        a("v_cvt_pk_bf16_f32 v96, v96, v97")
        a("v_lshrrev_b32 v5, 3, v0")
        a("v_and_b32 v6, 7, v0")
        a("v_lshlrev_b32 v4, 5, v6")
        a("v_lshl_add_u32 v4, v5, 1, v4")
        a(f"s_lshl_b32 s{S_T2}, s{S_T3}, 8")
        a(f"v_add_u32 v4, s{S_T2}, v4")
        a(f"ds_write_b16 v4, v96 offset:{LDS_Q}")
        a(f"ds_write_b16_d16_hi v4, v96 offset:{LDS_Q+16}")
        if self.debug:
            a("v_lshlrev_b32 v12, 16, v96")
            a("v_and_b32 v13, 0xffff0000, v96")
            a(f"s_lshl_b32 s{S_T0}, s2, 10")
            a(f"s_add_u32 s{S_T0}, s{S_T0}, {WS_DBG}")
            a("v_lshlrev_b32 v10, 1, v4")
            a(f"buffer_store_dword v12, v10, {sr(SRD_WS,4)}, s{S_T0} offen")
            a(f"buffer_store_dword v13, v10, {sr(SRD_WS,4)}, s{S_T0} offen offset:32")
        a("s_waitcnt lgkmcnt(0)")
        a(f"v_mov_b32 v3, {LDS_CNT + 20}")
        a("v_mov_b32 v4, 1")
        a("s_mov_b64 exec, 1")
        a("ds_add_u32 v3, v4")
        a("s_mov_b64 exec, -1")
        a.label("L_a_B2")
        if self.emask != 0xff:
            a(f"s_lshl_b32 s{S_T0}, 1, s{S_HW}")
            a(f"s_and_b32 s{S_T0}, s{S_T0}, {self.emask}")
            a("s_cbranch_scc1 L_a_go")
            a(f"v_mov_b32 v3, {LDS_CNT + 20}")
            a(f"s_mov_b32 s{S_SPIN}, 0")
            a.label("L_a_qw")
            a("ds_read_b32 v4, v3")
            a("s_waitcnt lgkmcnt(0)")
            a(f"v_readfirstlane_b32 s{S_T0}, v4")
            a(f"s_cmp_ge_u32 s{S_T0}, 2")
            a("s_cbranch_scc1 L_a_go")
            self.spin("L_a_qw", 4, 0x100000)
            a.label("L_a_go")
        if self.stop in (1, 13): a("s_branch L_exit")
        self.stamp(3)
        self.helper_mid()
        self.stamp(1)
        if self.stop == 2: a("s_branch L_exit")
        a("s_branch L_B4")

    def role_decode(self, tag=''):
        a = self.a
        a(f"s_mov_b32 s{S_ROLE}, {ROLE_NONE}")
        a(f"s_mov_b32 s{S_RIDX}, 0")
        a(f"s_cmp_lt_u32 s{S_J}, 10")
        a(f"s_cbranch_scc0 L_rd_hi{tag}")
        a(f"s_cmp_eq_u32 s{S_SPLIT}, 0")
        a(f"s_cbranch_scc1 L_rd_even{tag}")
        a(f"s_mov_b32 s{S_ROLE}, {ROLE_A}")
        a(f"s_mov_b32 s{S_RIDX}, s{S_B}")
        a(f"s_branch L_rd_done{tag}")
        a.label(f"L_rd_even{tag}")
        a(f"s_lshl_b32 s{S_T0}, s{S_B}, 4")
        a(f"s_add_u32 s{S_T0}, s{S_T0}, s{S_HKV}")
        a(f"s_cmp_lt_u32 s{S_T0}, 72")
        a(f"s_cbranch_scc0 L_rd_red2{tag}")
        a(f"s_mov_b32 s{S_ROLE}, {ROLE_C}")
        a(f"s_mov_b32 s{S_RIDX}, s{S_T0}")
        a(f"s_branch L_rd_done{tag}")
        a.label(f"L_rd_red2{tag}")
        a(f"s_branch L_rd_done{tag}")
        a.label(f"L_rd_hi{tag}")
        a(f"s_cmp_eq_u32 s{S_J}, 15")
        a(f"s_cbranch_scc1 L_rd_red{tag}")
        a(f"s_mov_b32 s{S_ROLE}, {ROLE_B}")
        a(f"s_sub_u32 s{S_RIDX}, s{S_J}, 10")
        a(f"s_branch L_rd_done{tag}")
        a.label(f"L_rd_red{tag}")
        a.label(f"L_rd_done{tag}")

    def helper_sync(self, idx):
        a = self.a
        lab = a.newlabel("L_hs")
        a("s_waitcnt lgkmcnt(0)")
        a(f"v_mov_b32 v3, {LDS_CNT + 4*idx}")
        a("v_mov_b32 v4, 1")
        a("s_mov_b64 exec, 1")
        a("ds_add_u32 v3, v4")
        a("s_mov_b64 exec, -1")
        a(f"s_mov_b32 s{S_SPIN}, 0")
        a.label(lab)
        a("ds_read_b32 v4, v3")
        a("s_waitcnt lgkmcnt(0)")
        a(f"v_readfirstlane_b32 s{S_T0}, v4")
        a(f"s_cmp_ge_u32 s{S_T0}, 8")
        a(f"s_cbranch_scc1 {lab}_done")
        self.spin(lab, self.hsleep, 0x100000)
        a.label(lab + "_done")

    def wait_tiles(self, thr):
        a = self.a
        lab = a.newlabel("L_wt")
        a(f"s_mov_b32 s{S_SPIN}, 0")
        a(f"v_mov_b32 v3, {LDS_CNT + 32}")
        a.label(lab)
        a("ds_read_b32 v4, v3")
        a("s_waitcnt lgkmcnt(0)")
        a(f"v_readfirstlane_b32 s{S_T0}, v4")
        a(f"s_cmp_ge_u32 s{S_T0}, {thr}")
        a(f"s_cbranch_scc1 {lab}_done")
        self.spin(lab, 32, 0x10000)
        a.label(lab + "_done")

    def poll_counter(self, target):
        a = self.a
        lab = a.newlabel("L_pc")
        a(f"s_mov_b32 s{S_SPIN}, 0")
        a("v_mov_b32 v3, 0")
        a.label(lab)
        a(f"global_load_dword v4, v3, {sr(S_DBG,2)} sc1")
        a("s_waitcnt vmcnt(0)")
        a(f"v_readfirstlane_b32 s{S_T0}, v4")
        a(f"s_cmp_ge_u32 s{S_T0}, {target}")
        a(f"s_cbranch_scc1 {lab}_done")
        self.spin(lab, 32, 0x10000)
        a.label(lab + "_done")

    def helper_mid(self):
        a = self.a
        KT = self.KT; TS = 32 // KT
        if not self.rearly:
            a(f"s_cmp_lg_u32 s{S_HW}, 7")
            a("s_cbranch_scc1 L_reset_done")
            self.resets("m")
            self.reset_signal()
        a.label("L_reset_done")
        if self.nors & 2: a("s_branch L_mid_done")
        self.stamp(11)
        a(f"s_cmp_eq_u32 s{S_ROLE}, {ROLE_C}")
        a("s_cbranch_scc1 L_role_c")
        a(f"s_cmp_eq_u32 s{S_ROLE}, {ROLE_NONE}")
        a("s_cbranch_scc1 L_role_none")
        self.w_prefetch()
        a(f"s_cmp_eq_u32 s{S_ROLE}, {ROLE_B}")
        a("s_cbranch_scc1 L_role_b")
        a(f"s_cmp_lg_u32 s{S_HW}, 0")
        a("s_cbranch_scc1 L_mid_done")
        self.wait_tiles(80 * TS)
        self.poll_counter(256)
        a("s_branch L_mid_done")
        a.label("L_role_b")
        self.role_b()
        a("s_branch L_mid_done")
        a.label("L_role_c")
        self.role_c()
        a("s_branch L_mid_done")
        a.label("L_role_none")
        a.label("L_mid_done")

    def resets(self, tag):
        a = self.a
        if self.nors & 1: return
        for k in range(4, 8): a(f"v_mov_b32 v{k}, -1")
        a("v_lshlrev_b32 v3, 4, v0")
        a(f"s_lshl_b32 s{S_T0}, s{S_HKV}, 4")
        a(f"s_add_u32 s{S_T0}, s{S_T0}, s{S_J}")
        a(f"s_lshl_b32 s{S_T0}, s{S_T0}, 11")
        a(f"buffer_store_dwordx4 v[4:7], v3, {sr(SRD_WS,4)}, s{S_T0} offen sc1")
        a("s_mov_b64 exec, 1")
        a(f"buffer_store_dwordx4 v[4:7], v3, {sr(SRD_WS,4)}, s{S_T0} offen offset:1024 sc1")
        a("s_mov_b64 exec, -1")
        a(f"s_cmp_eq_u32 s{S_ROLE}, {ROLE_NONE}")
        a(f"s_cbranch_scc1 L_rs_end{tag}")
        a(f"s_cmp_eq_u32 s{S_ROLE}, {ROLE_C}")
        a(f"s_cbranch_scc1 L_rs_c{tag}")
        a(f"s_mul_i32 s{S_T0}, s{S_HKV}, 5")
        a(f"s_add_u32 s{S_T0}, s{S_T0}, s{S_RIDX}")
        a(f"s_lshl_b32 s{S_T0}, s{S_T0}, 12")
        a(f"s_cmp_eq_u32 s{S_ROLE}, {ROLE_A}")
        a(f"s_mov_b32 s{S_T2}, {WS_F2}")
        a(f"s_cselect_b32 s{S_T1}, {WS_P2}, s{S_T2}")
        a(f"s_add_u32 s{S_T0}, s{S_T0}, s{S_T1}")
        for k in range(4):
            a(f"buffer_store_dwordx4 v[4:7], v3, {sr(SRD_WS,4)}, s{S_T0} offen offset:{k*1024} sc1")
        a(f"s_branch L_rs_end{tag}")
        a.label(f"L_rs_c{tag}")
        self.h_addr()
        a(f"buffer_store_dwordx4 v[4:7], v8, {sr(SRD_WS,4)}, s{S_T0} offen sc1")
        a.label(f"L_rs_end{tag}")

    def reset_signal(self):
        a = self.a
        a("s_waitcnt vmcnt(0)")
        a("v_mov_b32 v3, 0")
        a("v_mov_b32 v4, 1")
        a(f"v_mov_b32 v5, {LDS_CNT + 24}")
        a("s_mov_b64 exec, 1")
        a(f"global_atomic_add v3, v4, {sr(S_DBG,2)} sc1")
        a("ds_add_u32 v5, v4")
        a("s_mov_b64 exec, -1")

    def h_addr(self):
        a = self.a
        a("v_lshrrev_b32 v8, 3, v0")
        a(f"s_movk_i32 s{S_T1}, 9216")
        a(f"v_mul_lo_u32 v8, v8, s{S_T1}")
        a("v_and_b32 v9, 7, v0")
        a("v_lshl_add_u32 v8, v9, 4, v8")
        a(f"s_lshl_b32 s{S_T0}, s{S_RIDX}, 7")
        a(f"s_add_u32 s{S_T0}, s{S_T0}, {WS_H}")

    def w_unit_to_lds(self, kb_sgpr):
        a = self.a
        a(f"s_lshl_b32 s{S_T0}, s{kb_sgpr}, 13")
        a("v_lshlrev_b32 v3, 4, v0")
        a(f"v_add_u32 v3, s{S_T0}, v3")
        a(f"v_add_u32 v3, {LDS_W}, v3")
        for c in range(4):
            for e in range(2):
                j = 2 * c + e
                T = 8 + 4 * (j & 3)
                self.perm_block(64, c, e, T)
                a(f"ds_write_b128 v3, {vr(T,4)} offset:{j*1024}")

    def w_common(self):
        a = self.a
        a(f"s_movk_i32 s{S_T1}, 1152")
        a(f"v_mul_lo_u32 v3, v3, s{S_T1}")
        a("v_and_b32 v1, 15, v0")
        a("v_lshl_add_u32 v1, v1, 4, v3")
        a(f"s_mul_i32 s{S_UOFF}, s{S_T0}, 1152")
        a(f"s_lshl_b32 s{S_T1}, s{S_RIDX}, 8")
        a(f"s_add_u32 s{S_UOFF}, s{S_UOFF}, s{S_T1}")

    def w_setup_a(self):
        a = self.a
        self.srd(SRD_W, S_WO, 0 if (self.nowt & 1) else 4096 * 1152)
        a("v_lshrrev_b32 v3, 4, v0")
        a("v_and_b32 v4, 1, v3")
        a("v_lshlrev_b32 v4, 6, v4")
        a("v_lshrrev_b32 v3, 1, v3")
        a("v_add_u32 v3, v3, v4")
        a(f"s_lshl_b32 s{S_T0}, s{S_HKV}, 8")
        a(f"s_lshr_b32 s{S_T1}, s{S_HW}, 2")
        a(f"s_lshl_b32 s{S_T1}, s{S_T1}, 7")
        a(f"s_add_u32 s{S_T0}, s{S_T0}, s{S_T1}")
        a(f"s_and_b32 s{S_T1}, s{S_HW}, 3")
        a(f"s_lshl_b32 s{S_T1}, s{S_T1}, 1")
        a(f"s_add_u32 s{S_T0}, s{S_T0}, s{S_T1}")
        a(f"s_movk_i32 s{S_STRIDE}, {8*1152}")
        self.w_common()

    def w_setup_b(self):
        a = self.a
        self.srd(SRD_W, S_WD, 0 if (self.nowt & 1) else 4608 * 1152)
        a("v_lshrrev_b32 v3, 4, v0")
        a("v_lshlrev_b32 v3, 3, v3")
        a(f"s_mul_i32 s{S_T0}, s{S_HKV}, 288")
        a(f"s_lshl_b32 s{S_T1}, s{S_HW}, 5")
        a(f"s_add_u32 s{S_T0}, s{S_T0}, s{S_T1}")
        a(f"s_movk_i32 s{S_STRIDE}, 1152")
        self.w_common()

    def w_issue(self):
        a = self.a
        a(f"s_mov_b32 s{S_T2}, s{S_UOFF}")
        for t in range(8):
            a(f"buffer_load_dwordx4 {vr(64+4*t,4)}, v1, {sr(SRD_W,4)}, s{S_T2} offen nt")
            if t < 7: a(f"s_add_u32 s{S_T2}, s{S_T2}, s{S_STRIDE}")

    def w_prefetch(self):
        a = self.a
        a(f"s_mov_b32 s{S_CNT}, s{S_HW}")
        a(f"s_cmp_eq_u32 s{S_ROLE}, {ROLE_B}")
        a("s_cbranch_scc1 L_wp_b")
        if self.vearly & 1:
            a("s_branch L_wp_fin")
        else:
            self.w_setup_a()
            a("s_branch L_wp_loop")
        a.label("L_wp_b")
        self.w_setup_b()
        a.label("L_wp_loop")
        self.w_issue()
        a.label("L_wp_fin")
        a("s_waitcnt vmcnt(0)")
        self.w_unit_to_lds(S_CNT)
        a(f"s_cmp_eq_u32 s{S_ROLE}, {ROLE_B}")
        a("s_cbranch_scc0 L_wp_done")
        a(f"s_cmp_eq_u32 s{S_CNT}, 0")
        a("s_cbranch_scc0 L_wp_done")
        a(f"s_mov_b32 s{S_CNT}, 8")
        a(f"s_add_u32 s{S_UOFF}, s{S_UOFF}, {256*1152}")
        a("s_branch L_wp_loop")
        a.label("L_wp_done")
        a("s_waitcnt lgkmcnt(0)")

    def c_setup(self):
        a = self.a
        self.srd(SRD_W, S_WG, 0 if (self.nowt & 2) else 576 * 9216)
        self.srd(SRD_W2, S_WU, 0 if (self.nowt & 2) else 576 * 9216)
        a("v_lshrrev_b32 v3, 4, v0")
        a(f"s_mov_b32 s{S_T1}, {8*9216}")
        a(f"v_mul_lo_u32 v3, v3, s{S_T1}")
        a("v_and_b32 v1, 7, v0")
        a("v_lshl_add_u32 v1, v1, 4, v3")
        a(f"s_mul_i32 s{S_UOFF}, s{S_HW}, {32*9216}")
        a(f"s_lshl_b32 s{S_T1}, s{S_RIDX}, 7")
        a(f"s_add_u32 s{S_UOFF}, s{S_UOFF}, s{S_T1}")

    def c_issue(self, buf):
        a = self.a
        a(f"s_mov_b32 s{S_T2}, s{S_UOFF}")
        a("s_mov_b32 exec_lo, 0x00ff00ff"); a("s_mov_b32 exec_hi, 0x00ff00ff")
        for t in range(8):
            a(f"buffer_load_dwordx4 {vr(buf+4*t,4)}, v1, {sr(SRD_W,4)}, s{S_T2} offen nt")
            a(f"s_add_u32 s{S_T2}, s{S_T2}, 9216")
        a(f"s_mov_b32 s{S_T2}, s{S_UOFF}")
        a("s_mov_b32 exec_lo, 0xff00ff00"); a("s_mov_b32 exec_hi, 0xff00ff00")
        for t in range(8):
            a(f"buffer_load_dwordx4 {vr(buf+4*t,4)}, v1, {sr(SRD_W2,4)}, s{S_T2} offen nt")
            a(f"s_add_u32 s{S_T2}, s{S_T2}, 9216")
        a("s_mov_b64 exec, -1")
        a(f"s_add_u32 s{S_UOFF}, s{S_UOFF}, {8*32*9216}")

    def proj(self, nkb, a_imm, a_stride, wave_sgpr, tag, preloaded=False):
        a = self.a
        if not preloaded:
            self.proj_preload(nkb, wave_sgpr)
        a("v_and_b32 v2, 7, v0")
        a(f"s_movk_i32 s{S_T0}, {a_stride}")
        a(f"v_mul_lo_u32 v2, v2, s{S_T0}")
        a("v_lshrrev_b32 v3, 4, v0")
        a("v_lshl_add_u32 v2, v3, 4, v2")
        AR = [4 + 4 * k for k in range(7)] + [100, 104]
        for kb in range(nkb):
            a(f"ds_read_b128 {vr(AR[kb],4)}, v2 offset:{a_imm + kb*64}")
        for kb in range(nkb):
            a(f"s_waitcnt lgkmcnt({nkb-1-kb})")
            c = "0" if kb == 0 else "v[32:35]"
            a(f"v_mfma_f32_16x16x32_bf16 v[32:35], {vr(AR[kb],4)}, {vr(64+4*kb,4)}, {c}")

    def proj_preload(self, nkb, wave_sgpr):
        a = self.a
        a(f"s_lshl_b32 s{S_T0}, s{wave_sgpr}, 10")
        a("v_lshlrev_b32 v3, 4, v0")
        a(f"v_add_u32 v3, s{S_T0}, v3")
        a(f"v_add_u32 v3, {LDS_W}, v3")
        for kb in range(nkb):
            if kb < 8:
                a(f"ds_read_b128 {vr(64+4*kb,4)}, v3 offset:{kb*8192}")
            else:
                a("v_add_u32 v2, 0x10000, v3")
                a(f"ds_read_b128 {vr(64+4*kb,4)}, v2 offset:{(kb-8)*8192}")

    def publish4(self, acc):
        a = self.a
        for k in range(4):
            a(f"v_min_u32 v{acc+k}, s{S_SENTM1}, v{acc+k}")
        a("v_and_b32 v3, 15, v0")
        a("v_lshlrev_b32 v3, 5, v3")
        a("v_lshrrev_b32 v2, 4, v0")
        a("v_lshl_add_u32 v3, v2, 4, v3")
        self.lane_mask_lt(32)
        a(f"buffer_store_dwordx4 {vr(acc,4)}, v3, {sr(SRD_WS,4)}, s{S_T0} offen sc1")
        self.restore_exec()

    def role_b(self):
        a = self.a
        TS = 32 // self.KT
        self.wait_tiles(48 * TS)
        self.poll_counter(256)
        a(f"s_mul_i32 s{S_T1}, s{S_HW}, 9216")
        a(f"s_mul_i32 s{S_T2}, s{S_HKV}, 576")
        a(f"s_add_u32 s{S_T1}, s{S_T1}, s{S_T2}")
        a(f"s_add_u32 s{S_T1}, s{S_T1}, {WS_H}")
        a("v_lshlrev_b32 v5, 4, v0")
        self.lane_mask_lt(36)
        a(f"s_mov_b32 s{S_SPIN}, 0")
        a.label("L_b_poll")
        a(f"buffer_load_dwordx4 v[8:11], v5, {sr(SRD_WS,4)}, s{S_T1} offen sc1")
        a("s_waitcnt vmcnt(0)")
        a("v_max3_u32 v6, v8, v9, v10")
        a("v_max_u32 v6, v6, v11")
        a("v_cmp_eq_u32 vcc, -1, v6")
        a("s_cbranch_vccz L_b_ok")
        self.spin("L_b_poll", 64, 0x8000)
        a.label("L_b_ok")
        a(f"s_mul_i32 s{S_T1}, s{S_HW}, {H_STRIDE}")
        a(f"v_add_u32 v5, s{S_T1}, v5")
        a(f"ds_write_b128 v5, v[8:11] offset:{LDS_H}")
        self.restore_exec()
        self.helper_sync(0)
        self.proj(9, LDS_H, H_STRIDE, S_HW, "b")
        a(f"s_mul_i32 s{S_T0}, s{S_HKV}, 5")
        a(f"s_add_u32 s{S_T0}, s{S_T0}, s{S_RIDX}")
        a(f"s_lshl_b32 s{S_T0}, s{S_T0}, 12")
        a(f"s_lshl_b32 s{S_T1}, s{S_HW}, 9")
        a(f"s_add_u32 s{S_T0}, s{S_T0}, s{S_T1}")
        a(f"s_add_u32 s{S_T0}, s{S_T0}, {WS_F2}")
        self.publish4(32)

    def role_c(self):
        a = self.a
        issue = self.c_issue
        if not (self.vearly & 2):
            self.c_setup()
            issue(64)
        issue(96)
        a("v_and_b32 v2, 7, v0")
        a(f"s_movk_i32 s{S_T0}, {XN_STRIDE}")
        a(f"v_mul_lo_u32 v2, v2, s{S_T0}")
        a("v_lshrrev_b32 v3, 4, v0")
        a("v_lshl_add_u32 v2, v3, 4, v2")
        a(f"s_lshl_b32 s{S_T1}, s{S_HW}, 6")
        a(f"v_add_u32 v2, s{S_T1}, v2")
        for k in range(32): a(f"v_mov_b32 v{32+k}, 0")
        def process(buf, u, vm):
            a(f"ds_read_b128 v[16:19], v2 offset:{LDS_XN + u*512}")
            a(f"s_waitcnt vmcnt({vm})")
            self.perm_block(buf, 0, 0, 8); self.perm_block(buf, 0, 1, 12)
            a("s_waitcnt lgkmcnt(0)")
            for c in range(4):
                for e in range(2):
                    j = 2 * c + e
                    a(f"v_mfma_f32_16x16x32_bf16 {vr(32+4*j,4)}, v[16:19], {vr(8+4*e,4)}, {vr(32+4*j,4)}")
                    if c < 3: self.perm_block(buf, c + 1, e, 8 + 4 * e)
        process(64, 0, 16)
        a(f"s_cmp_ge_u32 s{S_HW}, 2")
        a("s_cbranch_scc1 L_c_u1")
        issue(64)
        process(96, 1, 16)
        process(64, 2, 0)
        a("s_branch L_c_ud")
        a.label("L_c_u1")
        process(96, 1, 0)
        a.label("L_c_ud")
        a(f"s_lshl_b32 s{S_T0}, s{S_HW}, 12")
        a("v_and_b32 v3, 15, v0")
        a("v_lshlrev_b32 v3, 8, v3")
        a("v_lshrrev_b32 v4, 4, v0")
        a("v_lshl_add_u32 v3, v4, 4, v3")
        a(f"v_add_u32 v3, s{S_T0}, v3")
        self.lane_mask_lt(32)
        for j in range(8):
            a(f"ds_write_b128 v3, {vr(32+4*j,4)} offset:{LDS_FP + j*32}")
        self.restore_exec()
        self.helper_sync(1)
        a(f"s_lshl_b32 s{S_T0}, s{S_HW}, 6")
        a(f"v_add_u32 v3, s{S_T0}, v0")
        a("v_lshlrev_b32 v4, 2, v3")
        a(f"v_add_u32 v4, {LDS_FP}, v4")
        for k in range(8):
            a(f"ds_read_b32 v{8+k}, v4 offset:{k*4096}")
        for k in range(8):
            a(f"ds_read_b32 v{16+k}, v4 offset:{k*4096 + 2048}")
        a("s_waitcnt lgkmcnt(0)")
        for base in (8, 16):
            for k in range(4):
                a(f"v_add_f32 v{base+k}, v{base+k}, v{base+4+k}")
            a(f"v_add_f32 v{base}, v{base}, v{base+2}")
            a(f"v_add_f32 v{base+1}, v{base+1}, v{base+3}")
            a(f"v_add_f32 v{base}, v{base}, v{base+1}")
            self.rne(base)
        a(f"v_mul_f32 v10, s{S_LOG2E}, v8")
        a("v_exp_f32 v10, -v10")
        a("v_add_f32 v10, 1.0, v10")
        a("v_rcp_f32 v12, v10")
        a("v_mul_f32 v14, v8, v12")
        a("v_fma_f32 v18, -v14, v10, v8")
        a("v_fma_f32 v14, v18, v12, v14")
        self.rne(14)
        a("v_mul_f32 v14, v14, v16")
        a("v_cvt_pk_bf16_f32 v14, v14, v14")
        a("v_lshrrev_b32 v5, 3, v3")
        a("v_and_b32 v6, 7, v3")
        a("v_lshlrev_b32 v6, 7, v6")
        a("v_lshl_add_u32 v6, v5, 1, v6")
        a(f"ds_write_b16 v6, v14 offset:{LDS_H}")
        self.helper_sync(2)
        a(f"s_cmp_lg_u32 s{S_HW}, 0")
        a("s_cbranch_scc1 L_c_done")
        a(f"v_mov_b32 v3, {LDS_CNT + 24}")
        a(f"s_mov_b32 s{S_SPIN}, 0")
        a.label("L_c_rw")
        a("ds_read_b32 v4, v3")
        a("s_waitcnt lgkmcnt(0)")
        a(f"v_readfirstlane_b32 s{S_T0}, v4")
        a(f"s_cmp_ge_u32 s{S_T0}, 1")
        a("s_cbranch_scc1 L_c_rok")
        self.spin("L_c_rw", 4, 0x100000)
        a.label("L_c_rok")
        a("v_lshlrev_b32 v3, 4, v0")
        a(f"ds_read_b128 v[4:7], v3 offset:{LDS_H}")
        self.h_addr()
        a("s_waitcnt lgkmcnt(0)")
        for k in range(4, 8):
            a(f"v_min_u32 v{k}, s{S_SENTM1}, v{k}")
        a(f"buffer_store_dwordx4 v[4:7], v8, {sr(SRD_WS,4)}, s{S_T0} offen sc1")
        a.label("L_c_done")

    def rowsum4(self, base):
        for pat in ("quad_perm:[1,0,3,2]", "quad_perm:[2,3,0,1]", "row_half_mirror", "row_mirror"):
            for r in range(4):
                self.a(f"v_add_f32_dpp v{base+r}, v{base+r}, v{base+r} {pat} row_mask:0xf bank_mask:0xf")

    def select4(self, dst, base):
        a = self.a
        a(f"v_mov_b32 v{dst}, v{base}")
        for k in range(1, 4):
            a(f"v_cmp_eq_u32 vcc, {k}, v6")
            a(f"v_cndmask_b32 v{dst}, v{dst}, v{base+k}, vcc")

    def poll1(self, base_imm, tag, sleep):
        a = self.a
        a(f"s_mov_b32 s{S_SPIN}, 0")
        a(f"s_mov_b32 s{S_T0}, {base_imm}")
        a.label(f"L_p1_{tag}")
        a(f"buffer_load_dwordx4 v[16:19], v1, {sr(SRD_WS,4)}, s{S_T0} offen sc1")
        a("s_waitcnt vmcnt(0)")
        a("v_max3_u32 v5, v16, v17, v18")
        a("v_max_u32 v5, v5, v19")
        a("v_cmp_eq_u32 vcc, -1, v5")
        a(f"s_cbranch_vccz L_p1_{tag}_done")
        self.spin(f"L_p1_{tag}", sleep, 0x40000)
        a.label(f"L_p1_{tag}_done")

    def reducer_pre(self):
        a = self.a
        TS = 32 // self.KT
        a("v_mbcnt_lo_u32_b32 v0, -1, 0")
        a("v_mbcnt_hi_u32_b32 v0, -1, v0")
        self.wait_tiles(100 * TS)
        self.poll_counter(256)
        a(f"s_lshr_b32 s{S_CB}, s{S_R}, 6")
        a(f"s_bfe_u32 s{S_T1}, s{S_R}, 0x30003")
        a(f"s_and_b32 s{S_T2}, s{S_R}, 7")
        a(f"s_cmp_lt_u32 s{S_R}, 256")
        a("s_cbranch_scc1 L_rp_dec")
        a(f"s_sub_u32 s{S_T3}, s{S_R}, 256")
        a(f"s_lshr_b32 s{S_T1}, s{S_T3}, 2")
        a(f"s_and_b32 s{S_T2}, s{S_T3}, 3")
        a.label("L_rp_dec")
        a(f"s_lshl_b32 s{S_T0}, s{S_CB}, 12")
        a(f"s_lshl_b32 s{S_T3}, s{S_T1}, 9")
        a(f"s_add_u32 s{S_T0}, s{S_T0}, s{S_T3}")
        a(f"s_lshl_b32 s{S_T3}, s{S_T2}, 6")
        a(f"s_add_u32 s{S_T0}, s{S_T0}, s{S_T3}")
        a("v_and_b32 v2, 15, v0")
        a(f"s_movk_i32 s{S_T3}, 20480")
        a(f"v_mul_lo_u32 v1, v2, s{S_T3}")
        a("v_lshrrev_b32 v3, 5, v0")
        a("v_bfe_u32 v4, v0, 4, 1")
        a("v_lshl_add_u32 v1, v3, 5, v1")
        a("v_lshl_add_u32 v1, v4, 4, v1")
        a(f"v_add_u32 v1, s{S_T0}, v1")
        a("v_and_b32 v6, 3, v0")
        a(f"s_lshl_b32 s{S_T0}, s{S_CB}, 7")
        a(f"s_lshl_b32 s{S_T3}, s{S_T2}, 4")
        a(f"s_add_u32 s{S_T0}, s{S_T0}, s{S_T3}")
        a(f"s_add_u32 s{S_T0}, s{S_T0}, s{S_T1}")
        a("v_lshlrev_b32 v3, 3, v3")
        a(f"v_add_u32 v3, s{S_T0}, v3")
        a("v_lshl_add_u32 v4, v4, 2, v6")
        a(f"s_movk_i32 s{S_T3}, 1152")
        a(f"v_mul_lo_u32 v4, v4, s{S_T3}")
        a("v_lshl_add_u32 v7, v3, 1, v4")
        self.srd(SRD_X, S_X, 8 * 1152)
        a(f"buffer_load_ushort v9, v7, {sr(SRD_X,4)}, 0 offen")
        self.poll1(WS_F2, "f2", 32)
        self.rowsum4(16)
        self.select4(8, 16)
        self.rne(8)
        a("v_lshlrev_b32 v9, 16, v9")

    def tail(self):
        a = self.a
        NS = self.NS
        a.label("L_B4")
        a("s_barrier")
        self.stamp(5)
        a("s_setprio 0")
        a("v_mbcnt_lo_u32_b32 v0, -1, 0")
        a("v_mbcnt_hi_u32_b32 v0, -1, v0")
        a(f"s_cmp_lg_u32 s{S_WAVE}, 0")
        a("s_cbranch_scc1 L_nomerge")
        a("v_lshlrev_b32 v2, 4, v0")
        a("v_lshrrev_b32 v3, 5, v0")
        a("v_lshlrev_b32 v3, 3, v3")
        for w in range(NS):
            a(f"ds_read_b64 {vr(16+2*w,2)}, v3 offset:{LDS_SP + w*SP_STRIDE + 1024}")
        for w in range(NS):
            a(f"ds_read_b128 {vr(32+4*w,4)}, v2 offset:{LDS_SP + w*SP_STRIDE}")
        a(f"s_waitcnt lgkmcnt({NS})")
        a("v_max_f32 v4, v16, v18")
        for w in range(2, NS):
            a(f"v_max_f32 v4, v4, v{16+2*w}")
        for w in range(NS):
            a(f"v_sub_f32 v{16+2*w}, v{16+2*w}, v4")
            a(f"v_mul_f32 v{16+2*w}, s{S_LOG2E}, v{16+2*w}")
            a(f"v_exp_f32 v{16+2*w}, v{16+2*w}")
        a("v_mul_f32 v5, v16, v17")
        for w in range(1, NS):
            a(f"v_fmac_f32 v5, v{16+2*w}, v{17+2*w}")
        a("s_waitcnt lgkmcnt(0)")
        for r in range(4):
            a(f"v_mul_f32 v{8+r}, v16, v{32+r}")
        for w in range(1, NS):
            for r in range(4):
                a(f"v_fmac_f32 v{8+r}, v{16+2*w}, v{32+4*w+r}")
        for r in range(4):
            a(f"v_min_u32 v{8+r}, s{S_SENTM1}, v{8+r}")
        a(f"v_min_u32 v4, s{S_SENTM1}, v4")
        a(f"v_min_u32 v5, s{S_SENTM1}, v5")
        a(f"s_lshl_b32 s{S_T0}, s{S_HKV}, 4")
        a(f"s_add_u32 s{S_T0}, s{S_T0}, s{S_J}")
        a(f"s_lshl_b32 s{S_T0}, s{S_T0}, 11")
        a(f"buffer_store_dwordx4 v[8:11], v2, {sr(SRD_WS,4)}, s{S_T0} offen sc1")
        a(f"v_readlane_b32 s{S_T1}, v4, 32")
        a(f"v_readlane_b32 s{S_T2}, v5, 32")
        a("v_mov_b32 v12, v4")
        a("v_mov_b32 v13, v5")
        a(f"v_mov_b32 v14, s{S_T1}")
        a(f"v_mov_b32 v15, s{S_T2}")
        a("v_mov_b32 v3, 0")
        a("s_mov_b64 exec, 1")
        a(f"buffer_store_dwordx4 v[12:15], v3, {sr(SRD_WS,4)}, s{S_T0} offen offset:1024 sc1")
        a("s_mov_b64 exec, -1")
        self.stamp(6)
        a.label("L_nomerge")
        a(f"s_cmp_lt_u32 s{S_J}, 10")
        a("s_cbranch_scc0 L_notcons")
        a(f"s_cmp_eq_u32 s{S_SPLIT}, 1")
        a("s_cbranch_scc1 L_consumer")
        a.label("L_notcons")
        a(f"s_cmp_lt_i32 s{S_R}, 0")
        a("s_cbranch_scc1 L_end")
        a("s_setprio 3")
        self.poll1(WS_P2, "p2", 1)
        self.stamp(7)
        self.rowsum4(16)
        self.select4(10, 16)
        self.rne(10)
        a("v_add_f32 v10, v9, v10")
        self.rne(10)
        a("v_add_f32 v10, v10, v8")
        a("v_cvt_pk_bf16_f32 v10, v10, v10")
        self.srd(SRD_X, S_OUT, 8 * 1152)
        a("v_and_b32 v2, 15, v0")
        a("v_cmp_gt_u32 vcc, 4, v2")
        a(f"s_and_saveexec_b64 {sr(S_EX,2)}, vcc")
        a(f"buffer_store_short v10, v7, {sr(SRD_X,4)}, 0 offen {self.ofl}")
        self.restore_exec()
        a(f"s_cmp_lg_u32 s{S_R}, 0")
        a("s_cbranch_scc1 L_end")
        a(f"s_add_u32 s{S_TA}, s{S_TA}, 0x9e3779b9")
        a(f"v_mov_b32 v3, s{S_TA}")
        a("v_mov_b32 v2, 0")
        a(f"s_mov_b32 s{S_T0}, {WS_GEN}")
        a("s_mov_b64 exec, 1")
        a(f"buffer_store_dword v3, v2, {sr(SRD_WS,4)}, s{S_T0} offen sc1")
        a("s_mov_b64 exec, -1")
        a("s_branch L_end")
        a.label("L_consumer")
        a(f"s_cmp_ge_u32 s{S_WAVE}, 8")
        a("s_cbranch_scc1 L_c_nopre")
        self.proj_preload(8, S_WAVE)
        a.label("L_c_nopre")
        a(f"s_lshr_b32 s{S_T1}, s{S_WAVE}, 1")
        a(f"s_and_b32 s{S_T2}, s{S_WAVE}, 1")
        a(f"s_lshl_b32 s{S_T0}, s{S_HKV}, 4")
        a(f"s_lshl_b32 s{S_T3}, s{S_T1}, 1")
        a(f"s_add_u32 s{S_T0}, s{S_T0}, s{S_T3}")
        a(f"s_lshl_b32 s{S_T0}, s{S_T0}, 11")
        a("v_lshrrev_b32 v2, 5, v0")
        a("v_lshlrev_b32 v2, 11, v2")
        a("v_and_b32 v3, 31, v0")
        a("v_lshl_add_u32 v3, v3, 4, v2")
        a(f"s_lshl_b32 s{S_T3}, s{S_T2}, 9")
        a(f"v_add_u32 v3, s{S_T3}, v3")
        a(f"s_mov_b32 s{S_SPIN}, 0")
        a.label("L_c_poll")
        a(f"buffer_load_dwordx4 v[8:11], v3, {sr(SRD_WS,4)}, s{S_T0} offen sc1")
        a(f"buffer_load_dwordx4 v[12:15], v2, {sr(SRD_WS,4)}, s{S_T0} offen offset:1024 sc1")
        a("s_waitcnt vmcnt(0)")
        a("v_max3_u32 v6, v8, v9, v10")
        a("v_max3_u32 v6, v6, v11, v12")
        a("v_max3_u32 v6, v6, v13, v14")
        a("v_max_u32 v6, v6, v15")
        a("v_cmp_eq_u32 vcc, -1, v6")
        a("s_cbranch_vccz L_c_ok")
        self.spin("L_c_poll", 1, 0x40000)
        a.label("L_c_ok")
        self.stamp(7)
        a(f"s_cmp_eq_u32 s{S_T2}, 0")
        a("s_cselect_b64 vcc, -1, 0")
        a("v_cndmask_b32 v4, v14, v12, vcc")
        a("v_cndmask_b32 v5, v15, v13, vcc")
        a("v_mov_b32 v6, v4")
        a("v_permlane32_swap_b32 v4, v6")
        a("v_mov_b32 v7, v5")
        a("v_permlane32_swap_b32 v5, v7")
        a("v_max_f32 v16, v4, v6")
        a("v_sub_f32 v4, v4, v16")
        a("v_sub_f32 v6, v6, v16")
        a(f"v_mul_f32 v4, s{S_LOG2E}, v4")
        a(f"v_mul_f32 v6, s{S_LOG2E}, v6")
        a("v_exp_f32 v4, v4")
        a("v_exp_f32 v6, v6")
        a("v_mul_f32 v5, v4, v5")
        a("v_fmac_f32 v5, v6, v7")
        a("v_rcp_f32 v7, v5")
        a("v_cmp_gt_u32 vcc, 32, v0")
        a("v_cndmask_b32 v4, v6, v4, vcc")
        a("v_fma_f32 v6, -v5, v7, 1.0")
        a("v_fma_f32 v7, v6, v7, v7")
        a("v_mul_f32 v4, v4, v7")
        for r in range(4):
            a(f"v_mul_f32 v{8+r}, v{8+r}, v4")
        for r in range(4):
            a(f"v_mov_b32 v{12+r}, v{8+r}")
        for r in range(4):
            a(f"v_permlane32_swap_b32 v{8+r}, v{12+r}")
        for r in range(4):
            a(f"v_add_f32 v{8+r}, v{8+r}, v{12+r}")
        a("v_cvt_pk_bf16_f32 v8, v8, v9")
        a("v_cvt_pk_bf16_f32 v9, v10, v11")
        a(f"s_mul_i32 s{S_T0}, s{S_T1}, {O_STRIDE}")
        a(f"s_lshl_b32 s{S_T3}, s{S_T2}, 8")
        a(f"s_add_u32 s{S_T0}, s{S_T0}, s{S_T3}")
        a("v_lshlrev_b32 v3, 3, v0")
        a(f"v_add_u32 v3, s{S_T0}, v3")
        self.lane_mask_lt(32)
        a(f"ds_write_b64 v3, v[8:9] offset:{LDS_O}")
        self.restore_exec()
        a("s_waitcnt lgkmcnt(0)")
        a("s_barrier")
        self.stamp(8)
        a(f"s_cmp_ge_u32 s{S_WAVE}, 8")
        a("s_cbranch_scc1 L_end")
        self.proj(8, LDS_O, O_STRIDE, S_WAVE, "a", preloaded=True)
        a(f"s_mul_i32 s{S_T0}, s{S_HKV}, 5")
        a(f"s_add_u32 s{S_T0}, s{S_T0}, s{S_B}")
        a(f"s_lshl_b32 s{S_T0}, s{S_T0}, 12")
        a(f"s_lshl_b32 s{S_T1}, s{S_WAVE}, 9")
        a(f"s_add_u32 s{S_T0}, s{S_T0}, s{S_T1}")
        a(f"s_add_u32 s{S_T0}, s{S_T0}, {WS_P2}")
        self.publish4(32)
        a.label("L_end")
        if self.diag:
            a(f"s_cmp_lt_i32 s{S_R}, 0")
            a("s_cbranch_scc1 L_dg1")
            a(f"s_and_b32 s{S_T0}, s{S_R}, 31")
            a(f"s_cmp_lg_u32 s{S_T0}, 0")
            a("s_cbranch_scc1 L_dg1")
            a(f"s_memrealtime {sr(S_TS,2)}")
            a("s_waitcnt lgkmcnt(0)")
            a(f"v_mov_b32 v8, s{S_TS}")
            a("v_mov_b32 v9, 12")
            a("s_mov_b64 exec, 1")
            a(f"global_atomic_umax v9, v8, {sr(S_DBG,2)}")
            a("s_mov_b64 exec, -1")
            a.label("L_dg1")
        self.stamp(9)
        self.stamp_flush()
        a.label("L_exit")
        a("s_endpgm")

    def build(self):
        self.prologue()
        self.stream()
        self.aux()
        self.tail()
        body = self.a.finish()
        hdr = open("cdna_kernels/" + NAME + ".s.ref").read().split("; Override launch geometry")[0]
        out = hdr
        out += "; Override launch geometry by editing the next line (default: block=256,\n"
        out += f"; @launch grid=(256,1,1) block=(1024,1,1) lds={LDS_TOTAL}\n"
        out += '.amdgcn_target "amdgcn-amd-amdhsa--gfx950"\n.text\n'
        out += f".globl {NAME}_kernel\n.p2align 8\n.type {NAME}_kernel,@function\n{NAME}_kernel:\n"
        out += body
        out += '.section .rodata,"a"\n.p2align 6\n'
        out += f".amdhsa_kernel {NAME}_kernel\n"
        out += "  .amdhsa_next_free_vgpr 128\n  .amdhsa_next_free_sgpr 100\n  .amdhsa_accum_offset 128\n"
        out += "  .amdhsa_group_segment_fixed_size 0\n  .amdhsa_kernarg_size 96\n  .amdhsa_user_sgpr_count 2\n"
        out += "  .amdhsa_user_sgpr_kernarg_segment_ptr 1\n  .amdhsa_system_sgpr_workgroup_id_x 1\n.end_amdhsa_kernel\n"
        return out

if __name__ == "__main__":
    dbg = "--debug" in sys.argv
    outp = [x for x in sys.argv[1:] if not x.startswith("--")]
    kw = {}
    for x in sys.argv[1:]:
        if x.startswith("--") and "=" in x:
            k_, v_ = x[2:].split("="); kw[k_] = int(v_)
    g = Gen(debug=dbg, stamps="--stamps" in sys.argv, **kw)
    s = g.build()
    path = outp[0] if outp else "cdna_kernels/" + NAME + ".s"
    open(path, "w").write(s)
    print("wrote", path, "lines", s.count("\n"), "nops inserted", g.a.ninserted)
```

```python
import sys
from dsl import Asm, vr, sr

NAME = "parallel_sum__gqa_block_cached__swiglu_ffn__decode"
LOG2E = 0x3fb8aa3b
SCALE = 0x3db504f3

XN_STRIDE = 1184
LDS_XN = 0
LDS_XB = LDS_XN + 8 * XN_STRIDE
LDS_QPART = LDS_XB + 1152
LDS_Q = LDS_QPART + 12 * 512
LDS_SP = LDS_Q + 512
SP_STRIDE = 1040
LDS_O = LDS_SP + 8 * SP_STRIDE
O_STRIDE = 544
LDS_CNT = LDS_O + 8 * O_STRIDE
LDS_H = LDS_CNT + 64
H_STRIDE = 608
LDS_FP = LDS_H + 8 * H_STRIDE
LDS_W = LDS_FP
LDS_QFP = LDS_W + 9 * 8192
LDS_TQ = LDS_QFP + 6 * 4096
LDS_TOTAL = LDS_TQ + 512

REC_STRIDE = 2048
WS_REC = 0
WS_P2 = 256 * REC_STRIDE
WS_F2 = WS_P2 + 16 * 5 * 4096
WS_H = WS_F2 + 16 * 5 * 4096
WS_GEN = WS_H + 8 * 9216
WS_PC = WS_GEN + 4096
WS_QP = WS_PC + 8192
WS_DBG = WS_QP + 16 * 3 * 16384
WS_STAMP = WS_DBG + (512 << 10)
WS_SIZE = WS_DBG + (1 << 20)

S_WAVE = 3
S_X, S_K, S_V, S_WQ, S_WO, S_BX, S_WG, S_WU = 4, 6, 8, 10, 12, 14, 16, 18
S_WD, S_OUT, S_DBG, S_WS = 20, 22, 24, 26
S_HKV, S_B, S_SPLIT, S_J = 28, 29, 30, 31
SRD_K, SRD_V, SRD_W, SRD_WS = 32, 36, 40, 44
S_SEL_LO, S_SEL_HI = 48, 49
S_OFF, S_OFF2, S_CNT = 50, 51, 52
S_STRIDE, S_UOFF, S_NT, S_FIRST, S_T0 = 53, 54, 55, 56, 57
S_HW, S_ROLE, S_RIDX, S_T1, S_T2, S_T3 = 58, 59, 60, 61, 62, 63
S_LOG2E, S_SCALE, S_MASKHI, S_SENTM1 = 64, 65, 66, 67
S_EX = 68
SRD_W2 = 72
SRD_X = 76
S_SPIN = 80
S_R = 81
S_CB = 82
S_NXT = 83
S_TA, S_TB = 70, 71
S_TS = 84
S_ST0 = 86
ROLE_NONE, ROLE_A, ROLE_B, ROLE_C = 0, 1, 2, 3

class Gen:
    def __init__(self, debug=False, stamps=False, NS=8, KT=32, LA=1, comp=1, map4=1, earlyV=1, earlyK=1, qsleep=8, kvtouch=1, pace=4, kpol=1, vpol=1, noq=0, nowt=0, hsleep=1, only=0, stop=0, qfix=0, qsc=1, qst=1, dC=6, dA=4, dB=4, pj0=10, emask=0xff, vearly=3, ofl=0, warm=0, nors=0, rearly=0, diag=0, pool=64, pD=6, pB=2):
        self.pool = pool; self.pD = pD; self.pB = pB
        self.diag = diag
        self.rearly = rearly
        self.nors = nors
        self.ofl = {0: '', 1: 'sc1', 2: 'sc0 sc1', 3: 'nt'}[ofl]; self.warm = warm
        self.vearly = vearly
        self.emask = emask
        assert NS <= 6
        self.dC = dC; self.dA = dA; self.dB = dB; self.pj0 = pj0
        self.qst = qst
        self.qfix = qfix; self.qfl = 'sc1' if qsc else ''
        self.stop = stop
        self.only = only
        self.hsleep = hsleep
        self.nowt = nowt
        self.noq = noq
        POL = {0: '', 1: 'nt', 2: 'sc1', 3: 'sc0 sc1', 4: 'sc1 nt', 5: 'sc0'}
        self.kfl = POL[kpol]; self.vfl = POL[vpol]
        self.pace = pace
        self.kvtouch = kvtouch
        self.earlyK = earlyK
        self.qsleep = qsleep
        self.earlyV = earlyV
        self.map4 = map4
        self.a = Asm()
        self.debug = debug; self.stamps = stamps
        self.NS = NS; self.KT = KT; self.LA = LA; self.comp = comp

    def srd(self, dst, base, size, off_sgpr=None):
        a = self.a
        if off_sgpr is not None:
            a(f"s_add_u32 s{dst}, s{base}, s{off_sgpr}")
            a(f"s_addc_u32 s{dst+1}, s{base+1}, 0")
        else:
            a(f"s_mov_b32 s{dst}, s{base}")
            a(f"s_mov_b32 s{dst+1}, s{base+1}")
        a(f"s_mov_b32 s{dst+2}, {size}")
        a(f"s_mov_b32 s{dst+3}, 0x20000")

    def stamp(self, k):
        if not self.stamps: return
        a = self.a
        a(f"s_memrealtime {sr(S_TS,2)}")
        a("s_waitcnt lgkmcnt(0)")
        a(f"s_mov_b32 s{S_ST0+k}, s{S_TS}")

    def stamp_flush(self):
        if not self.stamps: return
        a = self.a
        a("s_mov_b64 exec, -1")
        a("v_mbcnt_lo_u32_b32 v0, -1, 0")
        a("v_mbcnt_hi_u32_b32 v0, -1, v0")
        a("v_mov_b32 v1, 0")
        for k in range(12):
            a(f"v_writelane_b32 v1, s{S_ST0+k}, {k}")
        a(f"s_lshl_b32 s{S_T0}, s2, 4")
        a(f"s_add_u32 s{S_T0}, s{S_T0}, s{S_WAVE}")
        a(f"s_lshl_b32 s{S_T0}, s{S_T0}, 6")
        a(f"s_add_u32 s{S_T0}, s{S_T0}, {WS_STAMP}")
        a("v_lshlrev_b32 v2, 2, v0")
        a("v_cmp_gt_u32 vcc, 16, v0")
        a(f"s_and_saveexec_b64 {sr(S_EX,2)}, vcc")
        a(f"buffer_store_dword v1, v2, {sr(SRD_WS,4)}, s{S_T0} offen")

    def wave_sum(self, x, t):
        a = self.a
        for pat in ("quad_perm:[1,0,3,2]", "quad_perm:[2,3,0,1]", "row_half_mirror", "row_mirror"):
            a(f"v_add_f32_dpp v{x}, v{x}, v{x} {pat} row_mask:0xf bank_mask:0xf")
        a(f"v_mov_b32 v{t}, v{x}")
        a(f"v_permlane16_swap_b32 v{x}, v{t}")
        a(f"v_add_f32 v{x}, v{x}, v{t}")
        a(f"v_mov_b32 v{t}, v{x}")
        a(f"v_permlane32_swap_b32 v{x}, v{t}")
        a(f"v_add_f32 v{x}, v{x}, v{t}")

    def rne(self, x):
        a = self.a
        a(f"v_cvt_pk_bf16_f32 v{x}, v{x}, v{x}")
        a(f"v_and_b32 v{x}, 0xffff0000, v{x}")

    def lane_mask_lt(self, n, lane="v0"):
        a = self.a
        a(f"v_cmp_gt_u32 vcc, {n}, {lane}")
        a(f"s_and_saveexec_b64 {sr(S_EX,2)}, vcc")
    def restore_exec(self):
        self.a(f"s_mov_b64 exec, {sr(S_EX,2)}")

    def spin(self, lab, sleep, bound):
        a = self.a
        a(f"s_sleep {sleep}")
        a(f"s_add_u32 s{S_SPIN}, s{S_SPIN}, 1")
        a(f"s_cmp_lt_u32 s{S_SPIN}, {bound}")
        a(f"s_cbranch_scc1 {lab}")

    def layernorm(self, R, X, T, vL, lds_imm, s_row=None):
        a = self.a
        t0, t1, t2, t3, t4, t5 = range(T, T + 6)
        for k in range(5):
            a(f"v_lshlrev_b32 v{X+2*k}, 16, v{R+k}")
            a(f"v_and_b32 v{X+2*k+1}, s{S_MASKHI}, v{R+k}")
        a(f"v_add_f32 v{t0}, v{X}, v{X+1}")
        for k in range(2, 10):
            a(f"v_add_f32 v{t0}, v{t0}, v{X+k}")
        self.wave_sum(t0, t1)
        a(f"s_mov_b32 s{S_T1}, 0x44100000")
        a(f"s_mov_b32 s{S_T2}, 0x3ae38e39")
        a(f"v_mul_f32 v{t1}, s{S_T2}, v{t0}")
        a(f"v_fma_f32 v{t2}, -v{t1}, s{S_T1}, v{t0}")
        a(f"v_fma_f32 v{t1}, v{t2}, s{S_T2}, v{t1}")
        a(f"v_cmp_gt_u32 vcc, 32, v{vL}")
        a(f"v_sub_f32 v{t2}, v{X+8}, v{t1}")
        a(f"v_mul_f32 v{t3}, v{t2}, v{t2}")
        a(f"v_sub_f32 v{t2}, v{X+9}, v{t1}")
        a(f"v_fmac_f32 v{t3}, v{t2}, v{t2}")
        a(f"v_cndmask_b32 v{t3}, 0, v{t3}, vcc")
        for k in range(8):
            a(f"v_sub_f32 v{t2}, v{X+k}, v{t1}")
            a(f"v_fmac_f32 v{t3}, v{t2}, v{t2}")
        self.wave_sum(t3, t2)
        a(f"v_mul_f32 v{t2}, s{S_T2}, v{t3}")
        a(f"v_fma_f32 v{t0}, -v{t2}, s{S_T1}, v{t3}")
        a(f"v_fma_f32 v{t2}, v{t0}, s{S_T2}, v{t2}")
        self.rne(t1); self.rne(t2)
        a(f"v_add_f32 v{t2}, 0x3727c5ac, v{t2}")
        self.rne(t2)
        a(f"v_sqrt_f32 v{t3}, v{t2}")
        a(f"v_rcp_f32 v{t0}, v{t3}")
        a(f"v_fma_f32 v{t4}, -v{t3}, v{t3}, v{t2}")
        a(f"v_mul_f32 v{t0}, 0.5, v{t0}")
        a(f"v_fma_f32 v{t3}, v{t4}, v{t0}, v{t3}")
        self.rne(t3)
        a(f"v_rcp_f32 v{t0}, v{t3}")
        for k in range(10):
            a(f"v_sub_f32 v{X+k}, v{X+k}, v{t1}")
        for k in range(5):
            a(f"v_cvt_pk_bf16_f32 v{R+k}, v{X+2*k}, v{X+2*k+1}")
        for k in range(5):
            a(f"v_lshlrev_b32 v{X+2*k}, 16, v{R+k}")
            a(f"v_and_b32 v{X+2*k+1}, s{S_MASKHI}, v{R+k}")
        for k in range(10):
            a(f"v_mul_f32 v{t4}, v{X+k}, v{t0}")
            a(f"v_fma_f32 v{t5}, -v{t4}, v{t3}, v{X+k}")
            a(f"v_fma_f32 v{X+k}, v{t5}, v{t0}, v{t4}")
        for k in range(5):
            a(f"v_cvt_pk_bf16_f32 v{R+k}, v{X+2*k}, v{X+2*k+1}")
        a(f"v_lshlrev_b32 v{t4}, 4, v{vL}")
        a(f"v_lshlrev_b32 v{t5}, 2, v{vL}")
        if s_row is not None:
            a(f"v_add_u32 v{t4}, s{s_row}, v{t4}")
            a(f"v_add_u32 v{t5}, s{s_row}, v{t5}")
        a(f"ds_write_b128 v{t4}, {vr(R,4)} offset:{lds_imm}")
        a(f"s_and_saveexec_b64 {sr(S_EX,2)}, vcc")
        a(f"ds_write_b32 v{t5}, v{R+4} offset:{lds_imm+1024}")
        self.restore_exec()

    def xload(self, R, vL, tmp, s_rowbytes):
        a = self.a
        self.srd(SRD_X, S_X, 1152, off_sgpr=s_rowbytes)
        a(f"v_lshlrev_b32 v{tmp}, 4, v{vL}")
        a(f"buffer_load_dwordx4 {vr(R,4)}, v{tmp}, {sr(SRD_X,4)}, 0 offen")
        a(f"v_lshlrev_b32 v{tmp}, 2, v{vL}")
        a(f"buffer_load_dword v{R+4}, v{tmp}, {sr(SRD_X,4)}, 0 offen offset:1024")

    def prologue(self):
        a = self.a
        a("s_cmp_ge_u32 s2, 256")
        a("s_cbranch_scc1 L_exit")
        a("s_load_dwordx16 s[4:19], s[0:1], 0")
        a("s_load_dwordx8 s[20:27], s[0:1], 64")
        a("v_lshrrev_b32 v1, 6, v0")
        a("v_and_b32 v0, 63, v0")
        a(f"v_readfirstlane_b32 s{S_WAVE}, v1")
        for k in range(2, 8): a(f"v_mov_b32 v{k}, 0")
        if self.map4 == 5:
            a(f"s_bfe_u32 s{S_HKV}, s2, 0x20001")
            a(f"s_lshl_b32 s{S_HKV}, s{S_HKV}, 2")
            a(f"s_bfe_u32 s{S_T1}, s2, 0x20003")
            a(f"s_add_u32 s{S_HKV}, s{S_HKV}, s{S_T1}")
            a(f"s_lshr_b32 s{S_B}, s2, 5")
            a(f"s_and_b32 s{S_SPLIT}, s2, 1")
        elif self.map4:
            a(f"s_and_b32 s{S_HKV}, s2, 3")
            a(f"s_lshl_b32 s{S_HKV}, s{S_HKV}, 2")
            a(f"s_bfe_u32 s{S_T1}, s2, 0x20003")
            a(f"s_add_u32 s{S_HKV}, s{S_HKV}, s{S_T1}")
            a(f"s_lshr_b32 s{S_B}, s2, 5")
            a(f"s_bfe_u32 s{S_SPLIT}, s2, 0x10002")
        else:
            a(f"s_and_b32 s{S_HKV}, s2, 7")
            a(f"s_lshr_b32 s{S_T0}, s2, 3")
            a(f"s_and_b32 s{S_T1}, s{S_T0}, 1")
            a(f"s_lshl_b32 s{S_HKV}, s{S_HKV}, 1")
            a(f"s_add_u32 s{S_HKV}, s{S_HKV}, s{S_T1}")
            a(f"s_lshr_b32 s{S_T0}, s{S_T0}, 1")
            a(f"s_and_b32 s{S_B}, s{S_T0}, 7")
            a(f"s_lshr_b32 s{S_SPLIT}, s{S_T0}, 3")
        a(f"s_lshl_b32 s{S_J}, s{S_B}, 1")
        a(f"s_add_u32 s{S_J}, s{S_J}, s{S_SPLIT}")
        a(f"s_mov_b32 s{S_SEL_LO}, 0x05040100")
        a(f"s_mov_b32 s{S_SEL_HI}, 0x07060302")
        a(f"s_mov_b32 s{S_LOG2E}, {LOG2E:#x}")
        a(f"s_mov_b32 s{S_SCALE}, {SCALE:#x}")
        a(f"s_mov_b32 s{S_MASKHI}, 0xffff0000")
        a(f"s_mov_b32 s{S_SENTM1}, 0xfffffffe")
        a(f"s_mov_b32 s{S_R}, -1")
        if self.stamps:
            for k in range(12): a(f"s_mov_b32 s{S_ST0+k}, 0")
        a("s_waitcnt lgkmcnt(0)")
        self.srd(SRD_WS, S_WS, WS_SIZE)
        a(f"s_add_u32 s{S_T0}, s{S_WS}, {WS_GEN}")
        a(f"s_addc_u32 s{S_T1}, s{S_WS+1}, 0")
        a(f"s_mov_b32 s{S_T2}, s{S_T0}")
        a(f"s_mov_b32 s{S_T3}, s{S_T1}")
        a(f"s_load_dword s{S_TA}, {sr(S_T2,2)}, 0")
        self.stamp(0)
        if self.diag:
            a(f"s_cmp_lg_u32 s{S_WAVE}, 0")
            a("s_cbranch_scc1 L_dg0")
            a(f"s_and_b32 s{S_T0}, s2, 31")
            a(f"s_cmp_lg_u32 s{S_T0}, 0")
            a("s_cbranch_scc1 L_dg0")
            a(f"s_memrealtime {sr(S_TS,2)}")
            a("s_waitcnt lgkmcnt(0)")
            a(f"s_not_b32 s{S_TS}, s{S_TS}")
            a(f"v_mov_b32 v8, s{S_TS}")
            a("v_mov_b32 v9, 8")
            a("s_mov_b64 exec, 1")
            a(f"global_atomic_umax v9, v8, {sr(S_DBG,2)}")
            a("s_mov_b64 exec, -1")
            a.label("L_dg0")
        a(f"s_cmp_ge_u32 s{S_WAVE}, 8")
        a("s_cbranch_scc1 L_aux")

    def touch(self, base, size, n, dst):
        a = self.a
        self.srd(SRD_W, base, size)
        a("v_lshlrev_b32 v4, 20, v0")
        self.lane_mask_lt(n)
        a(f"buffer_load_dword v{dst}, v4, {sr(SRD_W,4)}, 0 offen")
        self.restore_exec()

    def stream_setup(self):
        a = self.a
        KT = self.KT; TB = KT * 256; NTP = 8192 // KT
        self.NTP = NTP
        POOL = self.pool * (32 // KT) // 2
        self.POOLT = POOL
        ST = (NTP - POOL) // 2
        self.ST = ST
        a(f"s_cmp_eq_u32 s{S_SPLIT}, 0")
        a(f"s_cselect_b32 s{S_UOFF}, 0, {ST + POOL}")
        a(f"s_lshl_b32 s{S_T0}, s{S_B}, 4")
        a(f"s_add_u32 s{S_T0}, s{S_T0}, s{S_HKV}")
        a(f"s_lshl_b32 s{S_T0}, s{S_T0}, 21")
        self.srd(SRD_K, S_K, 0x200000, off_sgpr=S_T0)
        self.srd(SRD_V, S_V, 0x200000, off_sgpr=S_T0)
        a("v_and_b32 v4, 15, v0")
        a("v_lshrrev_b32 v5, 4, v0")
        a("v_lshlrev_b32 v6, 10, v5")
        a("v_lshl_add_u32 v1, v4, 4, v6")
        a("v_lshlrev_b32 v6, 4, v5")
        a("v_and_b32 v7, 1, v0")
        a("v_lshl_add_u32 v7, v7, 8, v6")
        a("v_lshl_add_u32 v0, v4, 8, v6")

    def issueK(self, o1=S_OFF, o2=S_OFF2):
        for u in range(self.KT // 16):
            for s_ in range(4):
                r = 64 + (u * 4 + s_) * 4
                self.a(f"buffer_load_dwordx4 {vr(r,4)}, v0, {sr(SRD_K,4)}, s{o1 if u == 0 else o2} offen offset:{s_*64} {self.kfl}")
    def issueV(self, o1=S_OFF, o2=S_OFF2):
        for u in range(self.KT // 16):
            for r_ in range(4):
                r = 96 + (u * 4 + r_) * 4
                self.a(f"buffer_load_dwordx4 {vr(r,4)}, v1, {sr(SRD_V,4)}, s{o1 if u == 0 else o2} offen offset:{r_*256} {self.vfl}")

    def stream(self):
        a = self.a
        NS, KT, LA = self.NS, self.KT, self.LA
        NU = KT // 16; NL = 4 * NU; TB = KT * 256
        VK, VV, M, L, P, S, Q, O, KB, VB = 0, 1, 2, 3, 4, 8, 16, 32, 64, 96
        a(f"s_cmp_ge_u32 s{S_WAVE}, {NS}")
        a("s_cbranch_scc1 L_idle")
        tl = {1: [(S_WS, WS_SIZE, 4), (S_WO, 4096*1152, 5), (S_OUT, 8*1152, 1)],
              2: [(S_WG, 576*9216, 6), (S_WU, 576*9216, 6), (S_DBG, 256, 1)],
              3: [(S_WD, 4608*1152, 6)]}
        for w in (1, 2, 3):
            lab = f"L_s_t{w}"
            a(f"s_cmp_lg_u32 s{S_WAVE}, {w}")
            a(f"s_cbranch_scc1 {lab}")
            for k, t in enumerate(tl[w]):
                self.touch(*t, 8 + k)
            a.label(lab)
        self.stream_setup()
        if self.kvtouch:
            a(f"s_cmp_lg_u32 s{S_WAVE}, 0")
            a("s_cbranch_scc1 L_s_nkt")
            a("v_mbcnt_lo_u32_b32 v12, -1, 0")
            a("v_mbcnt_hi_u32_b32 v12, -1, v12")
            a("v_lshlrev_b32 v12, 18, v12")
            a("s_mov_b64 exec, 0xff")
            a(f"buffer_load_dword v13, v12, {sr(SRD_K,4)}, 0 offen nt")
            a(f"buffer_load_dword v14, v12, {sr(SRD_V,4)}, 0 offen nt")
            a("s_mov_b64 exec, -1")
            a.label("L_s_nkt")
        a(f"s_add_u32 s{S_CNT}, s{S_UOFF}, s{S_WAVE}")
        a(f"s_mul_i32 s{S_OFF}, s{S_CNT}, {TB}")
        a(f"s_add_u32 s{S_OFF2}, s{S_OFF}, 4096")
        seq = []
        for u in range(NU):
            for s_ in range(4):
                seq.append(f"buffer_load_dwordx4 {vr(KB+(u*4+s_)*4,4)}, v0, {sr(SRD_K,4)}, s{S_OFF if u == 0 else S_OFF2} offen offset:{s_*64} {self.kfl}")
        for u in range(NU):
            for r_ in range(4):
                seq.append(f"buffer_load_dwordx4 {vr(VB+(u*4+r_)*4,4)}, v1, {sr(SRD_V,4)}, s{S_OFF if u == 0 else S_OFF2} offen offset:{r_*256} {self.vfl}")
        PS = self.pace
        for k0 in range(0, len(seq), PS):
            if k0 > 0: a("s_waitcnt vmcnt(0)")
            for ins in seq[k0:k0+PS]: a(ins)
            if k0 == 0:
                a("s_barrier")
                for k in range(32):
                    a(f"v_mov_b32 v{O+k}, 0")
                a(f"v_mov_b32 v{M}, 0xff800000")
                a(f"v_mov_b32 v{L}, 0")
        self.stamp(4)
        if self.only or self.noq: a("s_branch L_s_qok")
        a(f"v_mov_b32 v{P}, {LDS_CNT + 20}")
        a(f"s_mov_b32 s{S_SPIN}, 0")
        a.label("L_s_qw")
        a(f"ds_read_b32 v{P+1}, v{P}")
        a("s_waitcnt lgkmcnt(0)")
        a(f"v_readfirstlane_b32 s{S_T0}, v{P+1}")
        a(f"s_cmp_ge_u32 s{S_T0}, 2")
        a("s_cbranch_scc1 L_s_qok")
        self.spin("L_s_qw", 2, 0x100000)
        a.label("L_s_qok")
        self.stamp(1)
        for s_ in range(4):
            a(f"ds_read_b128 {vr(Q+4*s_,4)}, v7 offset:{LDS_Q + s_*64}")
        a(f"s_mov_b32 s{S_FIRST}, 0")
        a(f"s_mov_b32 s{S_STRIDE}, 0")
        a(f"v_mov_b32 v{P}, {LDS_CNT + 32}")
        a(f"v_mov_b32 v{P+1}, 1")
        a("s_mov_b64 exec, 1")
        a(f"ds_add_rtn_u32 v{P+2}, v{P}, v{P+1}")
        a("s_mov_b64 exec, -1")
        a("s_waitcnt lgkmcnt(0)")
        a(f"v_readfirstlane_b32 s{S_NXT}, v{P+2}")
        a(f"s_add_u32 s{S_NXT}, s{S_NXT}, s{S_UOFF}")
        a.label("L_sloop")
        a(f"s_mul_i32 s{S_OFF}, s{S_NXT}, {TB}")
        a(f"s_add_u32 s{S_OFF2}, s{S_OFF}, 4096")
        if LA == 2:
            a(f"s_waitcnt vmcnt({NL})")
        else:
            a("s_waitcnt vmcnt(0)")
            a(f"s_cmp_eq_u32 s{S_FIRST}, 0")
            a(f"s_mov_b32 s{S_FIRST}, 1")
            a("s_cbranch_scc1 L_skipV")
            a(f"s_mul_i32 s{S_T2}, s{S_CNT}, {TB}")
            a(f"s_add_u32 s{S_T3}, s{S_T2}, 4096")
            self.issueV(S_T2, S_T3)
            a.label("L_skipV")
        for s_ in range(4):
            for u in range(NU):
                c = "0" if s_ == 0 else vr(S + 4 * u, 4)
                a(f"v_mfma_f32_16x16x32_bf16 {vr(S+4*u,4)}, {vr(KB+(u*4+s_)*4,4)}, {vr(Q+4*s_,4)}, {c}")
        if LA == 2:
            self.issueK()
        NP = 2 * NU; NSV = 4 * NU
        for p in range(NP):
            a(f"v_cvt_pk_bf16_f32 v{P+p}, v{S+2*p}, v{S+2*p+1}")
        for p in range(NP):
            a(f"v_lshlrev_b32 v{S+2*p}, 16, v{P+p}")
            a(f"v_and_b32 v{S+2*p+1}, s{S_MASKHI}, v{P+p}")
        for k in range(NSV):
            a(f"v_mul_f32 v{S+k}, s{S_SCALE}, v{S+k}")
        for p in range(NP):
            a(f"v_cvt_pk_bf16_f32 v{P+p}, v{S+2*p}, v{S+2*p+1}")
        for p in range(NP):
            a(f"v_lshlrev_b32 v{S+2*p}, 16, v{P+p}")
            a(f"v_and_b32 v{S+2*p+1}, s{S_MASKHI}, v{P+p}")
        if NU == 2:
            a(f"v_max3_f32 v{P}, v{S}, v{S+1}, v{S+2}")
            a(f"v_max3_f32 v{P+1}, v{S+3}, v{S+4}, v{S+5}")
            a(f"v_max3_f32 v{P}, v{P}, v{S+6}, v{S+7}")
            a(f"v_max_f32 v{P}, v{P}, v{P+1}")
        else:
            a(f"v_max3_f32 v{P}, v{S}, v{S+1}, v{S+2}")
            a(f"v_max_f32 v{P}, v{P}, v{S+3}")
        a(f"v_cmp_gt_f32 vcc, v{P}, v{M}")
        a("s_cbranch_vccz L_nores")
        a(f"v_mov_b32 v{P+1}, v{P}")
        a(f"v_permlane16_swap_b32 v{P}, v{P+1}")
        a(f"v_max_f32 v{P}, v{P}, v{P+1}")
        a(f"v_mov_b32 v{P+1}, v{P}")
        a(f"v_permlane32_swap_b32 v{P}, v{P+1}")
        a(f"v_max3_f32 v{P}, v{P}, v{P+1}, v{M}")
        a(f"v_sub_f32 v{P+2}, v{M}, v{P}")
        a(f"v_mul_f32 v{P+2}, s{S_LOG2E}, v{P+2}")
        a(f"v_exp_f32 v{P+2}, v{P+2}")
        a(f"v_mov_b32 v{M}, v{P}")
        a(f"v_mov_b32 v{P+3}, v{P+2}")
        a(f"v_mul_f32 v{L}, v{L}, v{P+2}")
        for k in range(16):
            a(f"v_pk_mul_f32 {vr(O+2*k,2)}, {vr(O+2*k,2)}, {vr(P+2,2)}")
        a.label("L_nores")
        a(f"v_mul_f32 v{P}, s{S_LOG2E}, v{M}")
        for k in range(NSV):
            a(f"v_fma_f32 v{S+k}, v{S+k}, s{S_LOG2E}, -v{P}")
        for k in range(NSV):
            a(f"v_exp_f32 v{S+k}, v{S+k}")
        if NU == 2:
            a(f"v_add_f32 v{P+1}, v{S}, v{S+1}")
            a(f"v_add_f32 v{P+2}, v{S+2}, v{S+3}")
            a(f"v_add_f32 v{P+3}, v{S+4}, v{S+5}")
            a(f"v_add_f32 v{P}, v{S+6}, v{S+7}")
            a(f"v_add_f32 v{P+1}, v{P+1}, v{P+2}")
            a(f"v_add_f32 v{P+3}, v{P+3}, v{P}")
            a(f"v_add_f32 v{L}, v{L}, v{P+1}")
            a(f"v_add_f32 v{L}, v{L}, v{P+3}")
        else:
            a(f"v_add_f32 v{P+1}, v{S}, v{S+1}")
            a(f"v_add_f32 v{P+2}, v{S+2}, v{S+3}")
            a(f"v_add_f32 v{L}, v{L}, v{P+1}")
            a(f"v_add_f32 v{L}, v{L}, v{P+2}")
        for p in range(NP):
            a(f"v_cvt_pk_bf16_f32 v{P+p}, v{S+2*p}, v{S+2*p+1}")
        if LA == 2:
            a(f"s_waitcnt vmcnt({NL})")
        else:
            a("s_waitcnt vmcnt(0)")
            self.issueK()
        npp = 4 if NU == 2 else 2
        def perms(c, e):
            for p in range(npp):
                a(f"v_perm_b32 v{S+4*e+p}, v{VB+(2*p+1)*4+c}, v{VB+(2*p)*4+c}, s{S_SEL_LO if e == 0 else S_SEL_HI}")
        def pv(c, e):
            j = 2 * c + e
            if NU == 2:
                a(f"v_mfma_f32_16x16x32_bf16 {vr(O+4*j,4)}, {vr(S+4*e,4)}, {vr(P,4)}, {vr(O+4*j,4)}")
            else:
                a(f"v_mfma_f32_16x16x16_bf16 {vr(O+4*j,4)}, {vr(S+4*e,2)}, {vr(P,2)}, {vr(O+4*j,4)}")
        perms(0, 0); perms(0, 1)
        for c in range(4):
            pv(c, 0)
            if c < 3: perms(c + 1, 0)
            pv(c, 1)
            if c < 3: perms(c + 1, 1)
        a(f"v_mov_b32 v{S}, {LDS_CNT + 32}")
        a(f"v_mov_b32 v{S+1}, 1")
        a("s_mov_b64 exec, 1")
        a(f"ds_add_rtn_u32 v{S+2}, v{S}, v{S+1}")
        a("s_mov_b64 exec, -1")
        if LA == 2:
            self.issueV()
        a(f"s_mov_b32 s{S_CNT}, s{S_NXT}")
        a("s_waitcnt lgkmcnt(0)")
        a(f"v_readfirstlane_b32 s{S_NXT}, v{S+2}")
        a(f"s_cmp_lt_u32 s{S_NXT}, {self.ST}")
        a("s_cbranch_scc0 L_s_pool")
        a(f"s_add_u32 s{S_NXT}, s{S_NXT}, s{S_UOFF}")
        a.label("L_s_tile")
        if self.stamps:
            a(f"s_add_u32 s{S_STRIDE}, s{S_STRIDE}, 1")
            for slot, it in ((8, 64), (10, 128), (11, 192)):
                lab = a.newlabel("L_its")
                a(f"s_cmp_lg_u32 s{S_NXT}, {it}")
                a(f"s_cbranch_scc1 {lab}")
                self.stamp(slot)
                a.label(lab)
        a(f"s_cmp_lt_u32 s{S_CNT}, {self.NTP}")
        a("s_cbranch_scc1 L_sloop")
        a("s_branch L_s_done")
        a.label("L_s_pool")
        a(f"s_sub_u32 s{S_NXT}, s{S_NXT}, {self.ST}")
        a(f"s_cmp_lt_u32 s{S_NXT}, 128")
        a("s_cbranch_scc1 L_s_pq")
        a(f"s_mov_b32 s{S_NXT}, {4*self.NTP}")
        a("s_branch L_s_tile")
        a.label("L_s_pq")
        a(f"s_lshl_b32 s{S_T0}, s{S_NXT}, 2")
        a(f"s_add_u32 s{S_T0}, s{S_T0}, {LDS_TQ}")
        a(f"v_mov_b32 v{S}, s{S_T0}")
        a(f"s_mov_b32 s{S_SPIN}, 0")
        a.label("L_s_pqw")
        a(f"ds_read_b32 v{S+1}, v{S}")
        a("s_waitcnt lgkmcnt(0)")
        a(f"v_readfirstlane_b32 s{S_NXT}, v{S+1}")
        a(f"s_cmp_lg_u32 s{S_NXT}, -1")
        a("s_cbranch_scc1 L_s_tile")
        self.spin("L_s_pqw", 1, 0x100000)
        a(f"s_mov_b32 s{S_NXT}, {4*self.NTP}")
        a("s_branch L_s_tile")
        a.label("L_s_done")
        self.stamp(2)
        if self.only or self.stop in (1, 2, 11, 12, 13): a("s_branch L_exit")
        a(f"v_mov_b32 v{P}, v{L}")
        a(f"v_permlane16_swap_b32 v{L}, v{P}")
        a(f"v_add_f32 v{L}, v{L}, v{P}")
        a(f"v_mov_b32 v{P}, v{L}")
        a(f"v_permlane32_swap_b32 v{L}, v{P}")
        a(f"v_add_f32 v{L}, v{L}, v{P}")
        a("v_mbcnt_lo_u32_b32 v8, -1, 0")
        a("v_mbcnt_hi_u32_b32 v8, -1, v8")
        a("v_and_b32 v9, 15, v8")
        a("v_lshrrev_b32 v10, 4, v8")
        a(f"s_mul_i32 s{S_T0}, s{S_WAVE}, {SP_STRIDE}")
        a(f"s_add_u32 s{S_T0}, s{S_T0}, {LDS_SP}")
        a("v_lshlrev_b32 v11, 9, v9")
        a("v_lshl_add_u32 v11, v10, 4, v11")
        a(f"v_add_u32 v11, s{S_T0}, v11")
        a("v_cmp_gt_u32 vcc, 2, v9")
        a(f"s_and_saveexec_b64 {sr(S_EX,2)}, vcc")
        for j in range(8):
            a(f"ds_write_b128 v11, {vr(O+4*j,4)} offset:{j*64}")
        a("v_cmp_gt_u32 vcc, 2, v8")
        a("s_and_b64 exec, exec, vcc")
        a("v_lshlrev_b32 v12, 3, v9")
        a(f"v_add_u32 v12, s{S_T0}, v12")
        a(f"ds_write_b64 v12, {vr(M,2)} offset:1024")
        self.restore_exec()
        a("s_waitcnt vmcnt(0) lgkmcnt(0)")
        a("s_branch L_B4")
        a.label("L_idle")
        if self.only:
            a("s_barrier")
            a("s_branch L_exit")
        if self.rearly:
            a(f"s_cmp_lg_u32 s{S_WAVE}, 4")
            a("s_cbranch_scc1 L_id_nr")
            self.role_decode("i")
            self.resets("i")
            a("s_barrier")
            self.reset_signal()
            a("s_branch L_id_r")
            a.label("L_id_nr")
        a("s_barrier")
        if self.rearly: a.label("L_id_r")
        if self.stop in (1, 2, 11, 12, 13): a("s_branch L_exit")
        a(f"s_cmp_lg_u32 s{S_WAVE}, 5")
        a("s_cbranch_scc1 L_nofeed")
        self.feeder()
        a("s_branch L_B4")
        a.label("L_nofeed")
        if self.warm:
            a(f"s_cmp_lg_u32 s{S_WAVE}, 4")
            a("s_cbranch_scc1 L_nowarm")
            a("v_mbcnt_lo_u32_b32 v0, -1, 0")
            a("v_mbcnt_hi_u32_b32 v0, -1, v0")
            self.wait_tiles(105 * (32 // self.KT))
            a(f"s_getpc_b64 {sr(S_T2,2)}")
            a.label("L_pc0")
            a(f"s_add_u32 s{S_T2}, s{S_T2}, L_B4-L_pc0")
            a(f"s_addc_u32 s{S_T3}, s{S_T3}, 0")
            a("v_lshlrev_b32 v3, 6, v0")
            a(f"global_load_dword v4, v3, {sr(S_T2,2)}")
            a("s_waitcnt vmcnt(0)")
            a.label("L_nowarm")
        a(f"s_cmp_lt_u32 s{S_WAVE}, 6")
        a("s_cbranch_scc1 L_B4")
        a(f"s_cmp_lt_u32 s{S_J}, 10")
        a("s_cbranch_scc0 L_rw_hi")
        a(f"s_cmp_eq_u32 s{S_SPLIT}, 0")
        a("s_cbranch_scc0 L_B4")
        a(f"s_mov_b32 s{S_T0}, s{S_B}")
        a("s_branch L_rw_go")
        a.label("L_rw_hi")
        a(f"s_sub_u32 s{S_T0}, s{S_J}, 5")
        a.label("L_rw_go")
        a(f"s_cmp_lt_u32 s{S_T0}, 9")
        a("s_cbranch_scc0 L_B4")
        a(f"s_mul_i32 s{S_R}, s{S_HKV}, 9")
        a(f"s_add_u32 s{S_R}, s{S_R}, s{S_T0}")
        a(f"s_lshl_b32 s{S_R}, s{S_R}, 1")
        a(f"s_add_u32 s{S_R}, s{S_R}, s{S_WAVE}")
        a(f"s_sub_u32 s{S_R}, s{S_R}, 6")
        self.reducer_pre()
        a("s_branch L_B4")

    def perm_block(self, buf, c, e, T):
        for p in range(4):
            self.a(f"v_perm_b32 v{T+p}, v{buf+(2*p+1)*4+c}, v{buf+(2*p)*4+c}, s{S_SEL_LO if e == 0 else S_SEL_HI}")

    def aux(self):
        a = self.a
        a.label("L_aux")
        if self.only:
            a("v_mov_b32 v8, 0")
            a("v_cmp_eq_u32 vcc, 8, v0")
            a(f"v_mov_b32 v9, {self.NS}")
            a("v_cndmask_b32 v8, v8, v9, vcc")
            a("v_lshlrev_b32 v9, 2, v0")
            self.lane_mask_lt(16)
            a(f"ds_write_b32 v9, v8 offset:{LDS_CNT}")
            self.restore_exec()
            a("s_waitcnt lgkmcnt(0)")
            a("s_barrier")
            a("s_branch L_exit")
        a("s_setprio 3")
        a(f"s_sub_u32 s{S_HW}, s{S_WAVE}, 8")
        a(f"s_mul_i32 s{S_T0}, s{S_HW}, 1152")
        self.xload(16, 0, 4, S_T0)
        a(f"s_cmp_lg_u32 s{S_HW}, 0")
        a("s_cbranch_scc1 L_a_nc")
        a("v_mov_b32 v8, 0")
        a("v_cmp_eq_u32 vcc, 8, v0")
        a(f"v_mov_b32 v9, {self.NS}")
        a("v_cndmask_b32 v8, v8, v9, vcc")
        a("v_lshlrev_b32 v9, 2, v0")
        self.lane_mask_lt(16)
        a(f"ds_write_b32 v9, v8 offset:{LDS_CNT}")
        self.restore_exec()
        a("v_mov_b32 v8, -1")
        a(f"v_add_u32 v9, {LDS_TQ}, v9")
        a("ds_write_b32 v9, v8")
        a("ds_write_b32 v9, v8 offset:256")
        a("s_waitcnt lgkmcnt(0)")
        a.label("L_a_nc")
        self.role_decode()
        a(f"s_mov_b32 s{S_FIRST}, 0")
        a(f"s_sub_u32 s{S_CB}, s{S_J}, {self.pj0}")
        a(f"s_cmp_lt_u32 s{S_CB}, 6")
        a("s_cbranch_scc0 L_a_np")
        a(f"s_mov_b32 s{S_FIRST}, 1")
        a(f"s_cmp_lt_u32 s{S_HW}, 6")
        a("s_cbranch_scc0 L_a_w0")
        self.srd(SRD_W, S_WQ, 576 * 8192)
        a("v_lshrrev_b32 v3, 4, v0")
        a("v_lshlrev_b32 v3, 16, v3")
        a("v_and_b32 v1, 15, v0")
        a("v_lshl_add_u32 v1, v1, 4, v3")
        a(f"s_lshr_b32 s{S_T1}, s{S_CB}, 1")
        a(f"s_mul_i32 s{S_T1}, s{S_T1}, 6")
        a(f"s_add_u32 s{S_T1}, s{S_T1}, s{S_HW}")
        a(f"s_mov_b32 s{S_NT}, s{S_T1}")
        a(f"s_lshl_b32 s{S_UOFF}, s{S_T1}, 18")
        a(f"s_and_b32 s{S_T2}, s{S_CB}, 1")
        a(f"s_lshl_b32 s{S_T2}, s{S_T2}, 8")
        a(f"s_lshl_b32 s{S_T3}, s{S_HKV}, 9")
        a(f"s_add_u32 s{S_UOFF}, s{S_UOFF}, s{S_T2}")
        a(f"s_add_u32 s{S_UOFF}, s{S_UOFF}, s{S_T3}")
        for t in range(8):
            a(f"buffer_load_dwordx4 {vr(64+4*t,4)}, v1, {sr(SRD_W,4)}, s{S_UOFF} offen nt")
            if t < 7: a(f"s_add_u32 s{S_UOFF}, s{S_UOFF}, 8192")
        a.label("L_a_w8")
        a("s_barrier")
        a("s_waitcnt vmcnt(8)")
        a("s_branch L_a_ln")
        a.label("L_a_np")
        if self.vearly & 1:
            a(f"s_cmp_eq_u32 s{S_ROLE}, {ROLE_A}")
            a("s_cbranch_scc0 L_a_na")
            self.w_setup_a()
            self.w_issue()
            a("s_branch L_a_w8")
            a.label("L_a_na")
        if self.vearly & 2:
            a(f"s_cmp_eq_u32 s{S_ROLE}, {ROLE_C}")
            a("s_cbranch_scc0 L_a_w0")
            self.c_setup()
            self.c_issue(64)
            a("s_barrier")
            a("s_waitcnt vmcnt(16)")
            a("s_branch L_a_ln")
        a.label("L_a_w0")
        a("s_barrier")
        a("s_waitcnt vmcnt(0)")
        a.label("L_a_ln")
        self.stamp(4)
        a(f"s_mul_i32 s{S_T3}, s{S_HW}, {XN_STRIDE}")
        self.layernorm(16, 32, 8, 0, LDS_XN, s_row=S_T3)
        self.stamp(2)
        self.helper_sync(3)
        if self.stop == 12: a("s_branch L_exit")
        a(f"s_xor_b32 s{S_TB}, s{S_TA}, 0x5bd1e995")
        a(f"s_add_u32 s{S_TB}, s{S_TB}, 0x7f4a7c15")
        a(f"s_add_u32 s{S_TA}, s{S_TA}, 0x9e3779b9")
        a(f"s_cmp_eq_u32 s{S_FIRST}, 0")
        a("s_cbranch_scc1 L_a_cons")
        a(f"s_cmp_lt_u32 s{S_HW}, 6")
        a("s_cbranch_scc0 L_a_pr")
        a("v_and_b32 v2, 7, v0")
        a(f"s_movk_i32 s{S_T0}, {XN_STRIDE}")
        a(f"v_mul_lo_u32 v2, v2, s{S_T0}")
        a("v_lshrrev_b32 v3, 4, v0")
        a("v_lshl_add_u32 v2, v3, 4, v2")
        a(f"s_lshl_b32 s{S_T1}, s{S_NT}, 6")
        a(f"v_add_u32 v2, s{S_T1}, v2")
        a(f"ds_read_b128 v[16:19], v2 offset:{LDS_XN}")
        a("s_waitcnt vmcnt(0)")
        self.stamp(7)
        self.perm_block(64, 0, 0, 8); self.perm_block(64, 0, 1, 12)
        a("s_waitcnt lgkmcnt(0)")
        for c in range(4):
            for e in range(2):
                j = 2 * c + e
                a(f"v_mfma_f32_16x16x32_bf16 {vr(32+4*j,4)}, {vr(8+4*e,4)}, v[16:19], 0")
                if c < 3: self.perm_block(64, c + 1, e, 8 + 4 * e)
        a("v_and_b32 v2, 15, v0")
        a("v_lshlrev_b32 v3, 9, v2")
        a("v_lshrrev_b32 v4, 4, v0")
        a("v_lshl_add_u32 v3, v4, 4, v3")
        a(f"s_lshl_b32 s{S_T1}, s{S_HW}, 12")
        a(f"s_add_u32 s{S_T1}, s{S_T1}, {LDS_QFP}")
        a(f"v_add_u32 v3, s{S_T1}, v3")
        a("v_cmp_gt_u32 vcc, 8, v2")
        a(f"s_and_saveexec_b64 {sr(S_EX,2)}, vcc")
        for j in range(8):
            a(f"ds_write_b128 v3, {vr(32+4*j,4)} offset:{j*64}")
        self.restore_exec()
        a.label("L_a_pr")
        self.helper_sync(4)
        a(f"s_lshl_b32 s{S_T1}, s{S_HW}, 9")
        a(f"s_add_u32 s{S_T1}, s{S_T1}, {LDS_QFP}")
        a("v_lshlrev_b32 v3, 3, v0")
        a(f"v_add_u32 v3, s{S_T1}, v3")
        for w in range(6):
            a(f"ds_read_b64 {vr(64+2*w,2)}, v3 offset:{w*4096}")
        a(f"s_lshr_b32 s{S_T0}, s{S_CB}, 1")
        a(f"s_mul_i32 s{S_T1}, s{S_HKV}, 3")
        a(f"s_add_u32 s{S_T0}, s{S_T0}, s{S_T1}")
        a(f"s_lshl_b32 s{S_T0}, s{S_T0}, 3")
        a(f"s_add_u32 s{S_T0}, s{S_T0}, s{S_HW}")
        a(f"s_lshl_b32 s{S_T0}, s{S_T0}, 11")
        a(f"s_and_b32 s{S_T1}, s{S_CB}, 1")
        a(f"s_lshl_b32 s{S_T1}, s{S_T1}, 10")
        a(f"s_add_u32 s{S_T0}, s{S_T0}, s{S_T1}")
        a(f"s_add_u32 s{S_T0}, s{S_T0}, {WS_QP}")
        a(f"v_mov_b32 v10, s{S_TA}")
        a(f"v_mov_b32 v11, s{S_TB}")
        a("v_lshlrev_b32 v3, 4, v0")
        a("s_waitcnt lgkmcnt(0)")
        for r in range(2):
            a(f"v_add_f32 v{64+r}, v{64+r}, v{66+r}")
            a(f"v_add_f32 v{68+r}, v{68+r}, v{70+r}")
            a(f"v_add_f32 v{72+r}, v{72+r}, v{74+r}")
            a(f"v_add_f32 v{64+r}, v{64+r}, v{68+r}")
            a(f"v_add_f32 v{8+r}, v{64+r}, v{72+r}")
        if self.qst == 1: a(f"buffer_store_dwordx4 v[8:11], v3, {sr(SRD_WS,4)}, s{S_T0} offen sc1")
        if self.qst == 5:
            a("s_mov_b64 exec, 0xffff")
            a(f"buffer_store_dwordx4 v[8:11], v3, {sr(SRD_WS,4)}, s{S_T0} offen sc1")
            a("s_mov_b64 exec, -1")
        if self.qst == 6:
            a(f"s_cmp_lt_u32 s{S_HW}, 2")
            a("s_cbranch_scc0 L_qst6")
            a(f"buffer_store_dwordx4 v[8:11], v3, {sr(SRD_WS,4)}, s{S_T0} offen sc1")
            a.label("L_qst6")
        if self.qst == 2: a(f"buffer_store_dwordx4 v[8:11], v3, {sr(SRD_WS,4)}, s{S_T0} offen")
        if self.qst == 3: a(f"buffer_store_dwordx4 v[8:11], v3, {sr(SRD_WS,4)}, s{S_T0} offen sc1 nt")
        if self.qst == 4: a(f"buffer_store_dwordx4 v[8:11], v3, {sr(SRD_WS,4)}, s{S_T0} offen sc0 sc1")
        self.stamp(6)
        a.label("L_a_cons")
        a(f"s_sub_u32 s{S_T3}, s{S_HW}, 2")
        a(f"s_cmp_lt_u32 s{S_T3}, 2")
        a("s_cbranch_scc0 L_a_B2")
        if self.stop == 13: a("s_branch L_exit")
        a(f"s_mul_i32 s{S_T1}, s{S_HKV}, {3*16384}")
        a(f"s_lshl_b32 s{S_T2}, s{S_B}, 11")
        a(f"s_add_u32 s{S_T1}, s{S_T1}, s{S_T2}")
        a(f"s_lshl_b32 s{S_T2}, s{S_T3}, 10")
        a(f"s_add_u32 s{S_T1}, s{S_T1}, s{S_T2}")
        a(f"s_add_u32 s{S_T1}, s{S_T1}, {WS_QP}")
        a("v_lshlrev_b32 v3, 4, v0")
        a(f"s_mov_b32 s{S_SPIN}, 0")
        a.label("L_q_poll")
        a(f"s_mov_b32 s{S_T0}, s{S_T1}")
        for p in range(3):
            a(f"buffer_load_dwordx4 {vr(96+4*p,4)}, v3, {sr(SRD_WS,4)}, s{S_T0} offen {self.qfl}")
            if p < 2: a(f"s_add_u32 s{S_T0}, s{S_T0}, 16384")
        a("s_waitcnt vmcnt(0)")
        a(f"v_xor_b32 v4, s{S_TA}, v98")
        a(f"v_xor_b32 v5, s{S_TB}, v99")
        a("v_or_b32 v4, v4, v5")
        for p in range(1, 3):
            a(f"v_xor_b32 v5, s{S_TA}, v{96+4*p+2}")
            a(f"v_xor_b32 v6, s{S_TB}, v{96+4*p+3}")
            a("v_or3_b32 v4, v4, v5, v6")
        a("v_cmp_ne_u32 vcc, 0, v4")
        if self.qfix == 0: a("s_cbranch_vccz L_q_ok")
        self.spin("L_q_poll", self.qsleep, 0x40000 if self.qfix == 0 else self.qfix)
        a.label("L_q_ok")
        self.stamp(8)
        for r in range(2):
            a(f"v_add_f32 v{96+r}, v{96+r}, v{100+r}")
            a(f"v_add_f32 v{96+r}, v{96+r}, v{104+r}")
        a("v_cvt_pk_bf16_f32 v96, v96, v97")
        a("v_lshrrev_b32 v5, 3, v0")
        a("v_and_b32 v6, 7, v0")
        a("v_lshlrev_b32 v4, 5, v6")
        a("v_lshl_add_u32 v4, v5, 1, v4")
        a(f"s_lshl_b32 s{S_T2}, s{S_T3}, 8")
        a(f"v_add_u32 v4, s{S_T2}, v4")
        a(f"ds_write_b16 v4, v96 offset:{LDS_Q}")
        a(f"ds_write_b16_d16_hi v4, v96 offset:{LDS_Q+16}")
        if self.debug:
            a("v_lshlrev_b32 v12, 16, v96")
            a("v_and_b32 v13, 0xffff0000, v96")
            a(f"s_lshl_b32 s{S_T0}, s2, 10")
            a(f"s_add_u32 s{S_T0}, s{S_T0}, {WS_DBG}")
            a("v_lshlrev_b32 v10, 1, v4")
            a(f"buffer_store_dword v12, v10, {sr(SRD_WS,4)}, s{S_T0} offen")
            a(f"buffer_store_dword v13, v10, {sr(SRD_WS,4)}, s{S_T0} offen offset:32")
        a("s_waitcnt lgkmcnt(0)")
        a(f"v_mov_b32 v3, {LDS_CNT + 20}")
        a("v_mov_b32 v4, 1")
        a("s_mov_b64 exec, 1")
        a("ds_add_u32 v3, v4")
        a("s_mov_b64 exec, -1")
        a.label("L_a_B2")
        if self.emask != 0xff:
            a(f"s_lshl_b32 s{S_T0}, 1, s{S_HW}")
            a(f"s_and_b32 s{S_T0}, s{S_T0}, {self.emask}")
            a("s_cbranch_scc1 L_a_go")
            a(f"v_mov_b32 v3, {LDS_CNT + 20}")
            a(f"s_mov_b32 s{S_SPIN}, 0")
            a.label("L_a_qw")
            a("ds_read_b32 v4, v3")
            a("s_waitcnt lgkmcnt(0)")
            a(f"v_readfirstlane_b32 s{S_T0}, v4")
            a(f"s_cmp_ge_u32 s{S_T0}, 2")
            a("s_cbranch_scc1 L_a_go")
            self.spin("L_a_qw", 4, 0x100000)
            a.label("L_a_go")
        if self.stop in (1, 13): a("s_branch L_exit")
        self.stamp(3)
        self.helper_mid()
        self.stamp(1)
        if self.stop == 2: a("s_branch L_exit")
        a("s_branch L_B4")

    def role_decode(self, tag=''):
        a = self.a
        a(f"s_mov_b32 s{S_ROLE}, {ROLE_NONE}")
        a(f"s_mov_b32 s{S_RIDX}, 0")
        a(f"s_cmp_lt_u32 s{S_J}, 10")
        a(f"s_cbranch_scc0 L_rd_hi{tag}")
        a(f"s_cmp_eq_u32 s{S_SPLIT}, 0")
        a(f"s_cbranch_scc1 L_rd_even{tag}")
        a(f"s_mov_b32 s{S_ROLE}, {ROLE_A}")
        a(f"s_mov_b32 s{S_RIDX}, s{S_B}")
        a(f"s_branch L_rd_done{tag}")
        a.label(f"L_rd_even{tag}")
        a(f"s_lshl_b32 s{S_T0}, s{S_B}, 4")
        a(f"s_add_u32 s{S_T0}, s{S_T0}, s{S_HKV}")
        a(f"s_cmp_lt_u32 s{S_T0}, 72")
        a(f"s_cbranch_scc0 L_rd_red2{tag}")
        a(f"s_mov_b32 s{S_ROLE}, {ROLE_C}")
        a(f"s_mov_b32 s{S_RIDX}, s{S_T0}")
        a(f"s_branch L_rd_done{tag}")
        a.label(f"L_rd_red2{tag}")
        a(f"s_branch L_rd_done{tag}")
        a.label(f"L_rd_hi{tag}")
        a(f"s_cmp_eq_u32 s{S_J}, 15")
        a(f"s_cbranch_scc1 L_rd_red{tag}")
        a(f"s_mov_b32 s{S_ROLE}, {ROLE_B}")
        a(f"s_sub_u32 s{S_RIDX}, s{S_J}, 10")
        a(f"s_branch L_rd_done{tag}")
        a.label(f"L_rd_red{tag}")
        a.label(f"L_rd_done{tag}")

    def helper_sync(self, idx):
        a = self.a
        lab = a.newlabel("L_hs")
        a("s_waitcnt lgkmcnt(0)")
        a(f"v_mov_b32 v3, {LDS_CNT + 4*idx}")
        a("v_mov_b32 v4, 1")
        a("s_mov_b64 exec, 1")
        a("ds_add_u32 v3, v4")
        a("s_mov_b64 exec, -1")
        a(f"s_mov_b32 s{S_SPIN}, 0")
        a.label(lab)
        a("ds_read_b32 v4, v3")
        a("s_waitcnt lgkmcnt(0)")
        a(f"v_readfirstlane_b32 s{S_T0}, v4")
        a(f"s_cmp_ge_u32 s{S_T0}, 8")
        a(f"s_cbranch_scc1 {lab}_done")
        self.spin(lab, self.hsleep, 0x100000)
        a.label(lab + "_done")

    def wait_tiles(self, thr):
        a = self.a
        lab = a.newlabel("L_wt")
        a(f"s_mov_b32 s{S_SPIN}, 0")
        a(f"v_mov_b32 v3, {LDS_CNT + 32}")
        a.label(lab)
        a("ds_read_b32 v4, v3")
        a("s_waitcnt lgkmcnt(0)")
        a(f"v_readfirstlane_b32 s{S_T0}, v4")
        a(f"s_cmp_ge_u32 s{S_T0}, {thr}")
        a(f"s_cbranch_scc1 {lab}_done")
        self.spin(lab, 32, 0x10000)
        a.label(lab + "_done")

    def poll_counter(self, target):
        a = self.a
        lab = a.newlabel("L_pc")
        a(f"s_mov_b32 s{S_SPIN}, 0")
        a("v_mov_b32 v3, 0")
        a.label(lab)
        a(f"global_load_dword v4, v3, {sr(S_DBG,2)} sc1")
        a("s_waitcnt vmcnt(0)")
        a(f"v_readfirstlane_b32 s{S_T0}, v4")
        a(f"s_cmp_ge_u32 s{S_T0}, {target}")
        a(f"s_cbranch_scc1 {lab}_done")
        self.spin(lab, 32, 0x10000)
        a.label(lab + "_done")

    def helper_mid(self):
        a = self.a
        KT = self.KT; TS = 32 // KT
        if not self.rearly:
            a(f"s_cmp_lg_u32 s{S_HW}, 7")
            a("s_cbranch_scc1 L_reset_done")
            self.resets("m")
            self.reset_signal()
        a.label("L_reset_done")
        if self.nors & 2: a("s_branch L_mid_done")
        self.stamp(11)
        a(f"s_cmp_eq_u32 s{S_ROLE}, {ROLE_C}")
        a("s_cbranch_scc1 L_role_c")
        a(f"s_cmp_eq_u32 s{S_ROLE}, {ROLE_NONE}")
        a("s_cbranch_scc1 L_role_none")
        self.w_prefetch()
        a(f"s_cmp_eq_u32 s{S_ROLE}, {ROLE_B}")
        a("s_cbranch_scc1 L_role_b")
        a(f"s_cmp_lg_u32 s{S_HW}, 0")
        a("s_cbranch_scc1 L_mid_done")
        self.wait_tiles(80 * TS)
        self.poll_counter(256)
        a("s_branch L_mid_done")
        a.label("L_role_b")
        self.role_b()
        a("s_branch L_mid_done")
        a.label("L_role_c")
        self.role_c()
        a("s_branch L_mid_done")
        a.label("L_role_none")
        a.label("L_mid_done")

    def resets(self, tag):
        a = self.a
        if self.nors & 1: return
        for k in range(4, 8): a(f"v_mov_b32 v{k}, -1")
        a("v_lshlrev_b32 v3, 4, v0")
        a(f"s_lshl_b32 s{S_T0}, s{S_HKV}, 4")
        a(f"s_add_u32 s{S_T0}, s{S_T0}, s{S_J}")
        a(f"s_lshl_b32 s{S_T0}, s{S_T0}, 11")
        a(f"buffer_store_dwordx4 v[4:7], v3, {sr(SRD_WS,4)}, s{S_T0} offen sc1")
        a("s_mov_b64 exec, 1")
        a(f"buffer_store_dwordx4 v[4:7], v3, {sr(SRD_WS,4)}, s{S_T0} offen offset:1024 sc1")
        a(f"s_cmp_lg_u32 s{S_SPLIT}, 0")
        a(f"s_cbranch_scc1 L_rs_np{tag}")
        a(f"s_lshl_b32 s{S_T0}, s{S_B}, 4")
        a(f"s_add_u32 s{S_T0}, s{S_T0}, s{S_HKV}")
        a(f"s_lshl_b32 s{S_T0}, s{S_T0}, 6")
        a(f"s_add_u32 s{S_T0}, s{S_T0}, {WS_PC}")
        a("v_mov_b32 v8, 0")
        a(f"buffer_store_dword v8, v3, {sr(SRD_WS,4)}, s{S_T0} offen sc1")
        a.label(f"L_rs_np{tag}")
        a("s_mov_b64 exec, -1")
        a(f"s_cmp_eq_u32 s{S_ROLE}, {ROLE_NONE}")
        a(f"s_cbranch_scc1 L_rs_end{tag}")
        a(f"s_cmp_eq_u32 s{S_ROLE}, {ROLE_C}")
        a(f"s_cbranch_scc1 L_rs_c{tag}")
        a(f"s_mul_i32 s{S_T0}, s{S_HKV}, 5")
        a(f"s_add_u32 s{S_T0}, s{S_T0}, s{S_RIDX}")
        a(f"s_lshl_b32 s{S_T0}, s{S_T0}, 12")
        a(f"s_cmp_eq_u32 s{S_ROLE}, {ROLE_A}")
        a(f"s_mov_b32 s{S_T2}, {WS_F2}")
        a(f"s_cselect_b32 s{S_T1}, {WS_P2}, s{S_T2}")
        a(f"s_add_u32 s{S_T0}, s{S_T0}, s{S_T1}")
        for k in range(4):
            a(f"buffer_store_dwordx4 v[4:7], v3, {sr(SRD_WS,4)}, s{S_T0} offen offset:{k*1024} sc1")
        a(f"s_branch L_rs_end{tag}")
        a.label(f"L_rs_c{tag}")
        self.h_addr()
        a(f"buffer_store_dwordx4 v[4:7], v8, {sr(SRD_WS,4)}, s{S_T0} offen sc1")
        a.label(f"L_rs_end{tag}")

    def reset_signal(self):
        a = self.a
        a("s_waitcnt vmcnt(0)")
        a("v_mov_b32 v3, 0")
        a("v_mov_b32 v4, 1")
        a(f"v_mov_b32 v5, {LDS_CNT + 24}")
        a("s_mov_b64 exec, 1")
        a(f"global_atomic_add v3, v4, {sr(S_DBG,2)} sc1")
        a("ds_add_u32 v5, v4")
        a("s_mov_b64 exec, -1")

    def h_addr(self):
        a = self.a
        a("v_lshrrev_b32 v8, 3, v0")
        a(f"s_movk_i32 s{S_T1}, 9216")
        a(f"v_mul_lo_u32 v8, v8, s{S_T1}")
        a("v_and_b32 v9, 7, v0")
        a("v_lshl_add_u32 v8, v9, 4, v8")
        a(f"s_lshl_b32 s{S_T0}, s{S_RIDX}, 7")
        a(f"s_add_u32 s{S_T0}, s{S_T0}, {WS_H}")

    def w_unit_to_lds(self, kb_sgpr):
        a = self.a
        a(f"s_lshl_b32 s{S_T0}, s{kb_sgpr}, 13")
        a("v_lshlrev_b32 v3, 4, v0")
        a(f"v_add_u32 v3, s{S_T0}, v3")
        a(f"v_add_u32 v3, {LDS_W}, v3")
        for c in range(4):
            for e in range(2):
                j = 2 * c + e
                T = 8 + 4 * (j & 3)
                self.perm_block(64, c, e, T)
                a(f"ds_write_b128 v3, {vr(T,4)} offset:{j*1024}")

    def w_common(self):
        a = self.a
        a(f"s_movk_i32 s{S_T1}, 1152")
        a(f"v_mul_lo_u32 v3, v3, s{S_T1}")
        a("v_and_b32 v1, 15, v0")
        a("v_lshl_add_u32 v1, v1, 4, v3")
        a(f"s_mul_i32 s{S_UOFF}, s{S_T0}, 1152")
        a(f"s_lshl_b32 s{S_T1}, s{S_RIDX}, 8")
        a(f"s_add_u32 s{S_UOFF}, s{S_UOFF}, s{S_T1}")

    def w_setup_a(self):
        a = self.a
        self.srd(SRD_W, S_WO, 0 if (self.nowt & 1) else 4096 * 1152)
        a("v_lshrrev_b32 v3, 4, v0")
        a("v_and_b32 v4, 1, v3")
        a("v_lshlrev_b32 v4, 6, v4")
        a("v_lshrrev_b32 v3, 1, v3")
        a("v_add_u32 v3, v3, v4")
        a(f"s_lshl_b32 s{S_T0}, s{S_HKV}, 8")
        a(f"s_lshr_b32 s{S_T1}, s{S_HW}, 2")
        a(f"s_lshl_b32 s{S_T1}, s{S_T1}, 7")
        a(f"s_add_u32 s{S_T0}, s{S_T0}, s{S_T1}")
        a(f"s_and_b32 s{S_T1}, s{S_HW}, 3")
        a(f"s_lshl_b32 s{S_T1}, s{S_T1}, 1")
        a(f"s_add_u32 s{S_T0}, s{S_T0}, s{S_T1}")
        a(f"s_movk_i32 s{S_STRIDE}, {8*1152}")
        self.w_common()

    def w_setup_b(self):
        a = self.a
        self.srd(SRD_W, S_WD, 0 if (self.nowt & 1) else 4608 * 1152)
        a("v_lshrrev_b32 v3, 4, v0")
        a("v_lshlrev_b32 v3, 3, v3")
        a(f"s_mul_i32 s{S_T0}, s{S_HKV}, 288")
        a(f"s_lshl_b32 s{S_T1}, s{S_HW}, 5")
        a(f"s_add_u32 s{S_T0}, s{S_T0}, s{S_T1}")
        a(f"s_movk_i32 s{S_STRIDE}, 1152")
        self.w_common()

    def w_issue(self):
        a = self.a
        a(f"s_mov_b32 s{S_T2}, s{S_UOFF}")
        for t in range(8):
            a(f"buffer_load_dwordx4 {vr(64+4*t,4)}, v1, {sr(SRD_W,4)}, s{S_T2} offen nt")
            if t < 7: a(f"s_add_u32 s{S_T2}, s{S_T2}, s{S_STRIDE}")

    def w_prefetch(self):
        a = self.a
        a(f"s_mov_b32 s{S_CNT}, s{S_HW}")
        a(f"s_cmp_eq_u32 s{S_ROLE}, {ROLE_B}")
        a("s_cbranch_scc1 L_wp_b")
        if self.vearly & 1:
            a("s_branch L_wp_fin")
        else:
            self.w_setup_a()
            a("s_branch L_wp_loop")
        a.label("L_wp_b")
        self.w_setup_b()
        a.label("L_wp_loop")
        self.w_issue()
        a.label("L_wp_fin")
        a("s_waitcnt vmcnt(0)")
        self.w_unit_to_lds(S_CNT)
        a(f"s_cmp_eq_u32 s{S_ROLE}, {ROLE_B}")
        a("s_cbranch_scc0 L_wp_done")
        a(f"s_cmp_eq_u32 s{S_CNT}, 0")
        a("s_cbranch_scc0 L_wp_done")
        a(f"s_mov_b32 s{S_CNT}, 8")
        a(f"s_add_u32 s{S_UOFF}, s{S_UOFF}, {256*1152}")
        a("s_branch L_wp_loop")
        a.label("L_wp_done")
        a("s_waitcnt lgkmcnt(0)")

    def c_setup(self):
        a = self.a
        self.srd(SRD_W, S_WG, 0 if (self.nowt & 2) else 576 * 9216)
        self.srd(SRD_W2, S_WU, 0 if (self.nowt & 2) else 576 * 9216)
        a("v_lshrrev_b32 v3, 4, v0")
        a(f"s_mov_b32 s{S_T1}, {8*9216}")
        a(f"v_mul_lo_u32 v3, v3, s{S_T1}")
        a("v_and_b32 v1, 7, v0")
        a("v_lshl_add_u32 v1, v1, 4, v3")
        a(f"s_mul_i32 s{S_UOFF}, s{S_HW}, {32*9216}")
        a(f"s_lshl_b32 s{S_T1}, s{S_RIDX}, 7")
        a(f"s_add_u32 s{S_UOFF}, s{S_UOFF}, s{S_T1}")

    def c_issue(self, buf):
        a = self.a
        a(f"s_mov_b32 s{S_T2}, s{S_UOFF}")
        a("s_mov_b32 exec_lo, 0x00ff00ff"); a("s_mov_b32 exec_hi, 0x00ff00ff")
        for t in range(8):
            a(f"buffer_load_dwordx4 {vr(buf+4*t,4)}, v1, {sr(SRD_W,4)}, s{S_T2} offen nt")
            a(f"s_add_u32 s{S_T2}, s{S_T2}, 9216")
        a(f"s_mov_b32 s{S_T2}, s{S_UOFF}")
        a("s_mov_b32 exec_lo, 0xff00ff00"); a("s_mov_b32 exec_hi, 0xff00ff00")
        for t in range(8):
            a(f"buffer_load_dwordx4 {vr(buf+4*t,4)}, v1, {sr(SRD_W2,4)}, s{S_T2} offen nt")
            a(f"s_add_u32 s{S_T2}, s{S_T2}, 9216")
        a("s_mov_b64 exec, -1")
        a(f"s_add_u32 s{S_UOFF}, s{S_UOFF}, {8*32*9216}")

    def proj(self, nkb, a_imm, a_stride, wave_sgpr, tag, preloaded=False):
        a = self.a
        if not preloaded:
            self.proj_preload(nkb, wave_sgpr)
        a("v_and_b32 v2, 7, v0")
        a(f"s_movk_i32 s{S_T0}, {a_stride}")
        a(f"v_mul_lo_u32 v2, v2, s{S_T0}")
        a("v_lshrrev_b32 v3, 4, v0")
        a("v_lshl_add_u32 v2, v3, 4, v2")
        AR = [4 + 4 * k for k in range(7)] + [100, 104]
        for kb in range(nkb):
            a(f"ds_read_b128 {vr(AR[kb],4)}, v2 offset:{a_imm + kb*64}")
        for kb in range(nkb):
            a(f"s_waitcnt lgkmcnt({nkb-1-kb})")
            c = "0" if kb == 0 else "v[32:35]"
            a(f"v_mfma_f32_16x16x32_bf16 v[32:35], {vr(AR[kb],4)}, {vr(64+4*kb,4)}, {c}")

    def proj_preload(self, nkb, wave_sgpr):
        a = self.a
        a(f"s_lshl_b32 s{S_T0}, s{wave_sgpr}, 10")
        a("v_lshlrev_b32 v3, 4, v0")
        a(f"v_add_u32 v3, s{S_T0}, v3")
        a(f"v_add_u32 v3, {LDS_W}, v3")
        for kb in range(nkb):
            if kb < 8:
                a(f"ds_read_b128 {vr(64+4*kb,4)}, v3 offset:{kb*8192}")
            else:
                a("v_add_u32 v2, 0x10000, v3")
                a(f"ds_read_b128 {vr(64+4*kb,4)}, v2 offset:{(kb-8)*8192}")

    def publish4(self, acc):
        a = self.a
        for k in range(4):
            a(f"v_min_u32 v{acc+k}, s{S_SENTM1}, v{acc+k}")
        a("v_and_b32 v3, 15, v0")
        a("v_lshlrev_b32 v3, 5, v3")
        a("v_lshrrev_b32 v2, 4, v0")
        a("v_lshl_add_u32 v3, v2, 4, v3")
        self.lane_mask_lt(32)
        a(f"buffer_store_dwordx4 {vr(acc,4)}, v3, {sr(SRD_WS,4)}, s{S_T0} offen sc1")
        self.restore_exec()

    def role_b(self):
        a = self.a
        TS = 32 // self.KT
        self.wait_tiles(48 * TS)
        self.poll_counter(256)
        a(f"s_mul_i32 s{S_T1}, s{S_HW}, 9216")
        a(f"s_mul_i32 s{S_T2}, s{S_HKV}, 576")
        a(f"s_add_u32 s{S_T1}, s{S_T1}, s{S_T2}")
        a(f"s_add_u32 s{S_T1}, s{S_T1}, {WS_H}")
        a("v_lshlrev_b32 v5, 4, v0")
        self.lane_mask_lt(36)
        a(f"s_mov_b32 s{S_SPIN}, 0")
        a.label("L_b_poll")
        a(f"buffer_load_dwordx4 v[8:11], v5, {sr(SRD_WS,4)}, s{S_T1} offen sc1")
        a("s_waitcnt vmcnt(0)")
        a("v_max3_u32 v6, v8, v9, v10")
        a("v_max_u32 v6, v6, v11")
        a("v_cmp_eq_u32 vcc, -1, v6")
        a("s_cbranch_vccz L_b_ok")
        self.spin("L_b_poll", 64, 0x8000)
        a.label("L_b_ok")
        a(f"s_mul_i32 s{S_T1}, s{S_HW}, {H_STRIDE}")
        a(f"v_add_u32 v5, s{S_T1}, v5")
        a(f"ds_write_b128 v5, v[8:11] offset:{LDS_H}")
        self.restore_exec()
        self.helper_sync(0)
        self.proj(9, LDS_H, H_STRIDE, S_HW, "b")
        a(f"s_mul_i32 s{S_T0}, s{S_HKV}, 5")
        a(f"s_add_u32 s{S_T0}, s{S_T0}, s{S_RIDX}")
        a(f"s_lshl_b32 s{S_T0}, s{S_T0}, 12")
        a(f"s_lshl_b32 s{S_T1}, s{S_HW}, 9")
        a(f"s_add_u32 s{S_T0}, s{S_T0}, s{S_T1}")
        a(f"s_add_u32 s{S_T0}, s{S_T0}, {WS_F2}")
        self.publish4(32)

    def role_c(self):
        a = self.a
        issue = self.c_issue
        if not (self.vearly & 2):
            self.c_setup()
            issue(64)
        issue(96)
        a("v_and_b32 v2, 7, v0")
        a(f"s_movk_i32 s{S_T0}, {XN_STRIDE}")
        a(f"v_mul_lo_u32 v2, v2, s{S_T0}")
        a("v_lshrrev_b32 v3, 4, v0")
        a("v_lshl_add_u32 v2, v3, 4, v2")
        a(f"s_lshl_b32 s{S_T1}, s{S_HW}, 6")
        a(f"v_add_u32 v2, s{S_T1}, v2")
        for k in range(32): a(f"v_mov_b32 v{32+k}, 0")
        def process(buf, u, vm):
            a(f"ds_read_b128 v[16:19], v2 offset:{LDS_XN + u*512}")
            a(f"s_waitcnt vmcnt({vm})")
            self.perm_block(buf, 0, 0, 8); self.perm_block(buf, 0, 1, 12)
            a("s_waitcnt lgkmcnt(0)")
            for c in range(4):
                for e in range(2):
                    j = 2 * c + e
                    a(f"v_mfma_f32_16x16x32_bf16 {vr(32+4*j,4)}, v[16:19], {vr(8+4*e,4)}, {vr(32+4*j,4)}")
                    if c < 3: self.perm_block(buf, c + 1, e, 8 + 4 * e)
        process(64, 0, 16)
        a(f"s_cmp_ge_u32 s{S_HW}, 2")
        a("s_cbranch_scc1 L_c_u1")
        issue(64)
        process(96, 1, 16)
        process(64, 2, 0)
        a("s_branch L_c_ud")
        a.label("L_c_u1")
        process(96, 1, 0)
        a.label("L_c_ud")
        a(f"s_lshl_b32 s{S_T0}, s{S_HW}, 12")
        a("v_and_b32 v3, 15, v0")
        a("v_lshlrev_b32 v3, 8, v3")
        a("v_lshrrev_b32 v4, 4, v0")
        a("v_lshl_add_u32 v3, v4, 4, v3")
        a(f"v_add_u32 v3, s{S_T0}, v3")
        self.lane_mask_lt(32)
        for j in range(8):
            a(f"ds_write_b128 v3, {vr(32+4*j,4)} offset:{LDS_FP + j*32}")
        self.restore_exec()
        self.helper_sync(1)
        a(f"s_lshl_b32 s{S_T0}, s{S_HW}, 6")
        a(f"v_add_u32 v3, s{S_T0}, v0")
        a("v_lshlrev_b32 v4, 2, v3")
        a(f"v_add_u32 v4, {LDS_FP}, v4")
        for k in range(8):
            a(f"ds_read_b32 v{8+k}, v4 offset:{k*4096}")
        for k in range(8):
            a(f"ds_read_b32 v{16+k}, v4 offset:{k*4096 + 2048}")
        a("s_waitcnt lgkmcnt(0)")
        for base in (8, 16):
            for k in range(4):
                a(f"v_add_f32 v{base+k}, v{base+k}, v{base+4+k}")
            a(f"v_add_f32 v{base}, v{base}, v{base+2}")
            a(f"v_add_f32 v{base+1}, v{base+1}, v{base+3}")
            a(f"v_add_f32 v{base}, v{base}, v{base+1}")
            self.rne(base)
        a(f"v_mul_f32 v10, s{S_LOG2E}, v8")
        a("v_exp_f32 v10, -v10")
        a("v_add_f32 v10, 1.0, v10")
        a("v_rcp_f32 v12, v10")
        a("v_mul_f32 v14, v8, v12")
        a("v_fma_f32 v18, -v14, v10, v8")
        a("v_fma_f32 v14, v18, v12, v14")
        self.rne(14)
        a("v_mul_f32 v14, v14, v16")
        a("v_cvt_pk_bf16_f32 v14, v14, v14")
        a("v_lshrrev_b32 v5, 3, v3")
        a("v_and_b32 v6, 7, v3")
        a("v_lshlrev_b32 v6, 7, v6")
        a("v_lshl_add_u32 v6, v5, 1, v6")
        a(f"ds_write_b16 v6, v14 offset:{LDS_H}")
        self.helper_sync(2)
        a(f"s_cmp_lg_u32 s{S_HW}, 0")
        a("s_cbranch_scc1 L_c_done")
        a(f"v_mov_b32 v3, {LDS_CNT + 24}")
        a(f"s_mov_b32 s{S_SPIN}, 0")
        a.label("L_c_rw")
        a("ds_read_b32 v4, v3")
        a("s_waitcnt lgkmcnt(0)")
        a(f"v_readfirstlane_b32 s{S_T0}, v4")
        a(f"s_cmp_ge_u32 s{S_T0}, 1")
        a("s_cbranch_scc1 L_c_rok")
        self.spin("L_c_rw", 4, 0x100000)
        a.label("L_c_rok")
        a("v_lshlrev_b32 v3, 4, v0")
        a(f"ds_read_b128 v[4:7], v3 offset:{LDS_H}")
        self.h_addr()
        a("s_waitcnt lgkmcnt(0)")
        for k in range(4, 8):
            a(f"v_min_u32 v{k}, s{S_SENTM1}, v{k}")
        a(f"buffer_store_dwordx4 v[4:7], v8, {sr(SRD_WS,4)}, s{S_T0} offen sc1")
        a.label("L_c_done")

    def rowsum4(self, base):
        for pat in ("quad_perm:[1,0,3,2]", "quad_perm:[2,3,0,1]", "row_half_mirror", "row_mirror"):
            for r in range(4):
                self.a(f"v_add_f32_dpp v{base+r}, v{base+r}, v{base+r} {pat} row_mask:0xf bank_mask:0xf")

    def select4(self, dst, base):
        a = self.a
        a(f"v_mov_b32 v{dst}, v{base}")
        for k in range(1, 4):
            a(f"v_cmp_eq_u32 vcc, {k}, v6")
            a(f"v_cndmask_b32 v{dst}, v{dst}, v{base+k}, vcc")

    def poll1(self, base_imm, tag, sleep):
        a = self.a
        a(f"s_mov_b32 s{S_SPIN}, 0")
        a(f"s_mov_b32 s{S_T0}, {base_imm}")
        a.label(f"L_p1_{tag}")
        a(f"buffer_load_dwordx4 v[16:19], v1, {sr(SRD_WS,4)}, s{S_T0} offen sc1")
        a("s_waitcnt vmcnt(0)")
        a("v_max3_u32 v5, v16, v17, v18")
        a("v_max_u32 v5, v5, v19")
        a("v_cmp_eq_u32 vcc, -1, v5")
        a(f"s_cbranch_vccz L_p1_{tag}_done")
        self.spin(f"L_p1_{tag}", sleep, 0x40000)
        a.label(f"L_p1_{tag}_done")

    def feeder(self):
        a = self.a
        ST, POOL, D, B = self.ST, self.POOLT, self.pD, self.pB
        INV = 4 * self.NTP
        a("v_mbcnt_lo_u32_b32 v0, -1, 0")
        a("v_mbcnt_hi_u32_b32 v0, -1, v0")
        self.wait_tiles(ST - D - 16)
        self.poll_counter(256)
        a("s_setprio 3")
        a(f"s_lshl_b32 s{S_T1}, s{S_B}, 4")
        a(f"s_add_u32 s{S_T1}, s{S_T1}, s{S_HKV}")
        a(f"s_lshl_b32 s{S_T1}, s{S_T1}, 6")
        a(f"s_add_u32 s{S_T1}, s{S_T1}, {WS_PC}")
        a(f"s_mov_b32 s{S_T2}, 0")
        a(f"s_mov_b32 s{S_SPIN}, 0")
        a(f"v_mov_b32 v3, {LDS_CNT + 32}")
        a("v_mov_b32 v2, 0")
        a.label("L_fd_loop")
        a("ds_read_b32 v4, v3")
        a("s_waitcnt lgkmcnt(0)")
        a(f"v_readfirstlane_b32 s{S_T0}, v4")
        a(f"s_add_u32 s{S_T0}, s{S_T0}, {D}")
        a(f"s_add_u32 s{S_T3}, s{S_T2}, {ST}")
        a(f"s_cmp_gt_u32 s{S_T0}, s{S_T3}")
        a("s_cbranch_scc1 L_fd_claim")
        self.spin("L_fd_loop", 2, 0x200000)
        a("s_branch L_fd_rest")
        a.label("L_fd_claim")
        a(f"v_mov_b32 v5, {B}")
        a("s_mov_b64 exec, 1")
        a(f"buffer_atomic_add v5, v2, {sr(SRD_WS,4)}, s{S_T1} offen sc0 sc1")
        a("s_mov_b64 exec, -1")
        a("s_waitcnt vmcnt(0)")
        a(f"v_readfirstlane_b32 s{S_T0}, v5")
        a(f"v_add_u32 v6, s{S_T0}, v0")
        a(f"v_add_u32 v7, {ST}, v6")
        a(f"v_mov_b32 v8, {INV}")
        a(f"v_cmp_gt_u32 vcc, {POOL}, v6")
        a("v_cndmask_b32 v7, v8, v7, vcc")
        a(f"v_add_u32 v9, s{S_T2}, v0")
        a("v_lshlrev_b32 v9, 2, v9")
        a(f"v_add_u32 v9, {LDS_TQ}, v9")
        a(f"s_mov_b64 exec, {(1 << B) - 1}")
        a("ds_write_b32 v9, v7")
        a("s_mov_b64 exec, -1")
        a(f"s_add_u32 s{S_T2}, s{S_T2}, {B}")
        a(f"s_add_u32 s{S_T0}, s{S_T0}, {B}")
        a(f"s_cmp_ge_u32 s{S_T0}, {POOL}")
        a("s_cbranch_scc1 L_fd_rest")
        a(f"s_cmp_lt_u32 s{S_T2}, {128 - B}")
        a("s_cbranch_scc1 L_fd_loop")
        a.label("L_fd_rest")
        a(f"v_mov_b32 v8, {INV}")
        for off in (0, 64):
            a(f"v_add_u32 v9, s{S_T2}, v0")
            if off: a(f"v_add_u32 v9, {off}, v9")
            a("v_cmp_gt_u32 vcc, 128, v9")
            a("v_lshlrev_b32 v9, 2, v9")
            a(f"v_add_u32 v9, {LDS_TQ}, v9")
            a(f"s_and_saveexec_b64 {sr(S_EX,2)}, vcc")
            a(f"s_cbranch_execz L_fd_e{off}")
            a("ds_write_b32 v9, v8")
            a.label(f"L_fd_e{off}")
            self.restore_exec()
        a("s_waitcnt lgkmcnt(0)")
        a("s_setprio 0")

    def reducer_pre(self):
        a = self.a
        TS = 32 // self.KT
        a("v_mbcnt_lo_u32_b32 v0, -1, 0")
        a("v_mbcnt_hi_u32_b32 v0, -1, v0")
        self.wait_tiles(100 * TS)
        self.poll_counter(256)
        a(f"s_lshr_b32 s{S_CB}, s{S_R}, 6")
        a(f"s_bfe_u32 s{S_T1}, s{S_R}, 0x30003")
        a(f"s_and_b32 s{S_T2}, s{S_R}, 7")
        a(f"s_cmp_lt_u32 s{S_R}, 256")
        a("s_cbranch_scc1 L_rp_dec")
        a(f"s_sub_u32 s{S_T3}, s{S_R}, 256")
        a(f"s_lshr_b32 s{S_T1}, s{S_T3}, 2")
        a(f"s_and_b32 s{S_T2}, s{S_T3}, 3")
        a.label("L_rp_dec")
        a(f"s_lshl_b32 s{S_T0}, s{S_CB}, 12")
        a(f"s_lshl_b32 s{S_T3}, s{S_T1}, 9")
        a(f"s_add_u32 s{S_T0}, s{S_T0}, s{S_T3}")
        a(f"s_lshl_b32 s{S_T3}, s{S_T2}, 6")
        a(f"s_add_u32 s{S_T0}, s{S_T0}, s{S_T3}")
        a("v_and_b32 v2, 15, v0")
        a(f"s_movk_i32 s{S_T3}, 20480")
        a(f"v_mul_lo_u32 v1, v2, s{S_T3}")
        a("v_lshrrev_b32 v3, 5, v0")
        a("v_bfe_u32 v4, v0, 4, 1")
        a("v_lshl_add_u32 v1, v3, 5, v1")
        a("v_lshl_add_u32 v1, v4, 4, v1")
        a(f"v_add_u32 v1, s{S_T0}, v1")
        a("v_and_b32 v6, 3, v0")
        a(f"s_lshl_b32 s{S_T0}, s{S_CB}, 7")
        a(f"s_lshl_b32 s{S_T3}, s{S_T2}, 4")
        a(f"s_add_u32 s{S_T0}, s{S_T0}, s{S_T3}")
        a(f"s_add_u32 s{S_T0}, s{S_T0}, s{S_T1}")
        a("v_lshlrev_b32 v3, 3, v3")
        a(f"v_add_u32 v3, s{S_T0}, v3")
        a("v_lshl_add_u32 v4, v4, 2, v6")
        a(f"s_movk_i32 s{S_T3}, 1152")
        a(f"v_mul_lo_u32 v4, v4, s{S_T3}")
        a("v_lshl_add_u32 v7, v3, 1, v4")
        self.srd(SRD_X, S_X, 8 * 1152)
        a(f"buffer_load_ushort v9, v7, {sr(SRD_X,4)}, 0 offen")
        self.poll1(WS_F2, "f2", 32)
        self.rowsum4(16)
        self.select4(8, 16)
        self.rne(8)
        a("v_lshlrev_b32 v9, 16, v9")

    def tail(self):
        a = self.a
        NS = self.NS
        a.label("L_B4")
        a("s_barrier")
        self.stamp(5)
        a("s_setprio 0")
        a("v_mbcnt_lo_u32_b32 v0, -1, 0")
        a("v_mbcnt_hi_u32_b32 v0, -1, v0")
        a(f"s_cmp_lg_u32 s{S_WAVE}, 0")
        a("s_cbranch_scc1 L_nomerge")
        a("v_lshlrev_b32 v2, 4, v0")
        a("v_lshrrev_b32 v3, 5, v0")
        a("v_lshlrev_b32 v3, 3, v3")
        for w in range(NS):
            a(f"ds_read_b64 {vr(16+2*w,2)}, v3 offset:{LDS_SP + w*SP_STRIDE + 1024}")
        for w in range(NS):
            a(f"ds_read_b128 {vr(32+4*w,4)}, v2 offset:{LDS_SP + w*SP_STRIDE}")
        a(f"s_waitcnt lgkmcnt({NS})")
        a("v_max_f32 v4, v16, v18")
        for w in range(2, NS):
            a(f"v_max_f32 v4, v4, v{16+2*w}")
        for w in range(NS):
            a(f"v_sub_f32 v{16+2*w}, v{16+2*w}, v4")
            a(f"v_mul_f32 v{16+2*w}, s{S_LOG2E}, v{16+2*w}")
            a(f"v_exp_f32 v{16+2*w}, v{16+2*w}")
        a("v_mul_f32 v5, v16, v17")
        for w in range(1, NS):
            a(f"v_fmac_f32 v5, v{16+2*w}, v{17+2*w}")
        a("s_waitcnt lgkmcnt(0)")
        for r in range(4):
            a(f"v_mul_f32 v{8+r}, v16, v{32+r}")
        for w in range(1, NS):
            for r in range(4):
                a(f"v_fmac_f32 v{8+r}, v{16+2*w}, v{32+4*w+r}")
        for r in range(4):
            a(f"v_min_u32 v{8+r}, s{S_SENTM1}, v{8+r}")
        a(f"v_min_u32 v4, s{S_SENTM1}, v4")
        a(f"v_min_u32 v5, s{S_SENTM1}, v5")
        a(f"s_lshl_b32 s{S_T0}, s{S_HKV}, 4")
        a(f"s_add_u32 s{S_T0}, s{S_T0}, s{S_J}")
        a(f"s_lshl_b32 s{S_T0}, s{S_T0}, 11")
        a(f"buffer_store_dwordx4 v[8:11], v2, {sr(SRD_WS,4)}, s{S_T0} offen sc1")
        a(f"v_readlane_b32 s{S_T1}, v4, 32")
        a(f"v_readlane_b32 s{S_T2}, v5, 32")
        a("v_mov_b32 v12, v4")
        a("v_mov_b32 v13, v5")
        a(f"v_mov_b32 v14, s{S_T1}")
        a(f"v_mov_b32 v15, s{S_T2}")
        a("v_mov_b32 v3, 0")
        a("s_mov_b64 exec, 1")
        a(f"buffer_store_dwordx4 v[12:15], v3, {sr(SRD_WS,4)}, s{S_T0} offen offset:1024 sc1")
        a("s_mov_b64 exec, -1")
        self.stamp(6)
        a.label("L_nomerge")
        a(f"s_cmp_lt_u32 s{S_J}, 10")
        a("s_cbranch_scc0 L_notcons")
        a(f"s_cmp_eq_u32 s{S_SPLIT}, 1")
        a("s_cbranch_scc1 L_consumer")
        a.label("L_notcons")
        a(f"s_cmp_lt_i32 s{S_R}, 0")
        a("s_cbranch_scc1 L_end")
        a("s_setprio 3")
        self.poll1(WS_P2, "p2", 1)
        self.stamp(7)
        self.rowsum4(16)
        self.select4(10, 16)
        self.rne(10)
        a("v_add_f32 v10, v9, v10")
        self.rne(10)
        a("v_add_f32 v10, v10, v8")
        a("v_cvt_pk_bf16_f32 v10, v10, v10")
        self.srd(SRD_X, S_OUT, 8 * 1152)
        a("v_and_b32 v2, 15, v0")
        a("v_cmp_gt_u32 vcc, 4, v2")
        a(f"s_and_saveexec_b64 {sr(S_EX,2)}, vcc")
        a(f"buffer_store_short v10, v7, {sr(SRD_X,4)}, 0 offen {self.ofl}")
        self.restore_exec()
        a(f"s_cmp_lg_u32 s{S_R}, 0")
        a("s_cbranch_scc1 L_end")
        a(f"s_add_u32 s{S_TA}, s{S_TA}, 0x9e3779b9")
        a(f"v_mov_b32 v3, s{S_TA}")
        a("v_mov_b32 v2, 0")
        a(f"s_mov_b32 s{S_T0}, {WS_GEN}")
        a("s_mov_b64 exec, 1")
        a(f"buffer_store_dword v3, v2, {sr(SRD_WS,4)}, s{S_T0} offen sc1")
        a("s_mov_b64 exec, -1")
        a("s_branch L_end")
        a.label("L_consumer")
        a(f"s_cmp_ge_u32 s{S_WAVE}, 8")
        a("s_cbranch_scc1 L_c_nopre")
        self.proj_preload(8, S_WAVE)
        a.label("L_c_nopre")
        a(f"s_lshr_b32 s{S_T1}, s{S_WAVE}, 1")
        a(f"s_and_b32 s{S_T2}, s{S_WAVE}, 1")
        a(f"s_lshl_b32 s{S_T0}, s{S_HKV}, 4")
        a(f"s_lshl_b32 s{S_T3}, s{S_T1}, 1")
        a(f"s_add_u32 s{S_T0}, s{S_T0}, s{S_T3}")
        a(f"s_lshl_b32 s{S_T0}, s{S_T0}, 11")
        a("v_lshrrev_b32 v2, 5, v0")
        a("v_lshlrev_b32 v2, 11, v2")
        a("v_and_b32 v3, 31, v0")
        a("v_lshl_add_u32 v3, v3, 4, v2")
        a(f"s_lshl_b32 s{S_T3}, s{S_T2}, 9")
        a(f"v_add_u32 v3, s{S_T3}, v3")
        a(f"s_mov_b32 s{S_SPIN}, 0")
        a.label("L_c_poll")
        a(f"buffer_load_dwordx4 v[8:11], v3, {sr(SRD_WS,4)}, s{S_T0} offen sc1")
        a(f"buffer_load_dwordx4 v[12:15], v2, {sr(SRD_WS,4)}, s{S_T0} offen offset:1024 sc1")
        a("s_waitcnt vmcnt(0)")
        a("v_max3_u32 v6, v8, v9, v10")
        a("v_max3_u32 v6, v6, v11, v12")
        a("v_max3_u32 v6, v6, v13, v14")
        a("v_max_u32 v6, v6, v15")
        a("v_cmp_eq_u32 vcc, -1, v6")
        a("s_cbranch_vccz L_c_ok")
        self.spin("L_c_poll", 1, 0x40000)
        a.label("L_c_ok")
        self.stamp(7)
        a(f"s_cmp_eq_u32 s{S_T2}, 0")
        a("s_cselect_b64 vcc, -1, 0")
        a("v_cndmask_b32 v4, v14, v12, vcc")
        a("v_cndmask_b32 v5, v15, v13, vcc")
        a("v_mov_b32 v6, v4")
        a("v_permlane32_swap_b32 v4, v6")
        a("v_mov_b32 v7, v5")
        a("v_permlane32_swap_b32 v5, v7")
        a("v_max_f32 v16, v4, v6")
        a("v_sub_f32 v4, v4, v16")
        a("v_sub_f32 v6, v6, v16")
        a(f"v_mul_f32 v4, s{S_LOG2E}, v4")
        a(f"v_mul_f32 v6, s{S_LOG2E}, v6")
        a("v_exp_f32 v4, v4")
        a("v_exp_f32 v6, v6")
        a("v_mul_f32 v5, v4, v5")
        a("v_fmac_f32 v5, v6, v7")
        a("v_rcp_f32 v7, v5")
        a("v_cmp_gt_u32 vcc, 32, v0")
        a("v_cndmask_b32 v4, v6, v4, vcc")
        a("v_fma_f32 v6, -v5, v7, 1.0")
        a("v_fma_f32 v7, v6, v7, v7")
        a("v_mul_f32 v4, v4, v7")
        for r in range(4):
            a(f"v_mul_f32 v{8+r}, v{8+r}, v4")
        for r in range(4):
            a(f"v_mov_b32 v{12+r}, v{8+r}")
        for r in range(4):
            a(f"v_permlane32_swap_b32 v{8+r}, v{12+r}")
        for r in range(4):
            a(f"v_add_f32 v{8+r}, v{8+r}, v{12+r}")
        a("v_cvt_pk_bf16_f32 v8, v8, v9")
        a("v_cvt_pk_bf16_f32 v9, v10, v11")
        a(f"s_mul_i32 s{S_T0}, s{S_T1}, {O_STRIDE}")
        a(f"s_lshl_b32 s{S_T3}, s{S_T2}, 8")
        a(f"s_add_u32 s{S_T0}, s{S_T0}, s{S_T3}")
        a("v_lshlrev_b32 v3, 3, v0")
        a(f"v_add_u32 v3, s{S_T0}, v3")
        self.lane_mask_lt(32)
        a(f"ds_write_b64 v3, v[8:9] offset:{LDS_O}")
        self.restore_exec()
        a("s_waitcnt lgkmcnt(0)")
        a("s_barrier")
        self.stamp(8)
        a(f"s_cmp_ge_u32 s{S_WAVE}, 8")
        a("s_cbranch_scc1 L_end")
        self.proj(8, LDS_O, O_STRIDE, S_WAVE, "a", preloaded=True)
        a(f"s_mul_i32 s{S_T0}, s{S_HKV}, 5")
        a(f"s_add_u32 s{S_T0}, s{S_T0}, s{S_B}")
        a(f"s_lshl_b32 s{S_T0}, s{S_T0}, 12")
        a(f"s_lshl_b32 s{S_T1}, s{S_WAVE}, 9")
        a(f"s_add_u32 s{S_T0}, s{S_T0}, s{S_T1}")
        a(f"s_add_u32 s{S_T0}, s{S_T0}, {WS_P2}")
        self.publish4(32)
        a.label("L_end")
        if self.diag:
            a(f"s_cmp_lt_i32 s{S_R}, 0")
            a("s_cbranch_scc1 L_dg1")
            a(f"s_and_b32 s{S_T0}, s{S_R}, 31")
            a(f"s_cmp_lg_u32 s{S_T0}, 0")
            a("s_cbranch_scc1 L_dg1")
            a(f"s_memrealtime {sr(S_TS,2)}")
            a("s_waitcnt lgkmcnt(0)")
            a(f"v_mov_b32 v8, s{S_TS}")
            a("v_mov_b32 v9, 12")
            a("s_mov_b64 exec, 1")
            a(f"global_atomic_umax v9, v8, {sr(S_DBG,2)}")
            a("s_mov_b64 exec, -1")
            a.label("L_dg1")
        self.stamp(9)
        self.stamp_flush()
        a.label("L_exit")
        a("s_endpgm")

    def build(self):
        self.prologue()
        self.stream()
        self.aux()
        self.tail()
        body = self.a.finish()
        hdr = open("cdna_kernels/" + NAME + ".s.ref").read().split("; Override launch geometry")[0]
        out = hdr
        out += "; Override launch geometry by editing the next line (default: block=256,\n"
        out += f"; @launch grid=(256,1,1) block=(1024,1,1) lds={LDS_TOTAL}\n"
        out += '.amdgcn_target "amdgcn-amd-amdhsa--gfx950"\n.text\n'
        out += f".globl {NAME}_kernel\n.p2align 8\n.type {NAME}_kernel,@function\n{NAME}_kernel:\n"
        out += body
        out += '.section .rodata,"a"\n.p2align 6\n'
        out += f".amdhsa_kernel {NAME}_kernel\n"
        out += "  .amdhsa_next_free_vgpr 128\n  .amdhsa_next_free_sgpr 100\n  .amdhsa_accum_offset 128\n"
        out += "  .amdhsa_group_segment_fixed_size 0\n  .amdhsa_kernarg_size 96\n  .amdhsa_user_sgpr_count 2\n"
        out += "  .amdhsa_user_sgpr_kernarg_segment_ptr 1\n  .amdhsa_system_sgpr_workgroup_id_x 1\n.end_amdhsa_kernel\n"
        return out

if __name__ == "__main__":
    dbg = "--debug" in sys.argv
    outp = [x for x in sys.argv[1:] if not x.startswith("--")]
    kw = {}
    for x in sys.argv[1:]:
        if x.startswith("--") and "=" in x:
            k_, v_ = x[2:].split("="); kw[k_] = int(v_)
    g = Gen(debug=dbg, stamps="--stamps" in sys.argv, **kw)
    s = g.build()
    path = outp[0] if outp else "cdna_kernels/" + NAME + ".s"
    open(path, "w").write(s)
    print("wrote", path, "lines", s.count("\n"), "nops inserted", g.a.ninserted)
```

```python
import sys
from dsl import Asm, vr, sr

NAME = "parallel_sum__gqa_block_cached__swiglu_ffn__decode"
LOG2E = 0x3fb8aa3b
SCALE = 0x3db504f3

XN_STRIDE = 1184
LDS_XN = 0
LDS_XB = LDS_XN + 8 * XN_STRIDE
LDS_QPART = LDS_XB + 1152
LDS_Q = LDS_QPART + 12 * 512
LDS_SP = LDS_Q + 512
SP_STRIDE = 1040
LDS_O = LDS_SP + 8 * SP_STRIDE
O_STRIDE = 544
LDS_CNT = LDS_O + 8 * O_STRIDE
LDS_H = LDS_CNT + 64
H_STRIDE = 608
LDS_FP = LDS_H + 8 * H_STRIDE
LDS_W = LDS_FP
LDS_QFP = LDS_W + 9 * 8192
LDS_TQ = LDS_QFP + 6 * 4096
LDS_TOTAL = LDS_TQ + 512

REC_STRIDE = 2048
WS_REC = 0
WS_P2 = 256 * REC_STRIDE
WS_F2 = WS_P2 + 16 * 5 * 4096
WS_H = WS_F2 + 16 * 5 * 4096
WS_GEN = WS_H + 8 * 9216
WS_PC = WS_GEN + 4096
WS_QP = WS_PC + 8192
WS_DBG = WS_QP + 16 * 3 * 16384
WS_STAMP = WS_DBG + (512 << 10)
WS_SIZE = WS_DBG + (1 << 20)

S_WAVE = 3
S_X, S_K, S_V, S_WQ, S_WO, S_BX, S_WG, S_WU = 4, 6, 8, 10, 12, 14, 16, 18
S_WD, S_OUT, S_DBG, S_WS = 20, 22, 24, 26
S_HKV, S_B, S_SPLIT, S_J = 28, 29, 30, 31
SRD_K, SRD_V, SRD_W, SRD_WS = 32, 36, 40, 44
S_SEL_LO, S_SEL_HI = 48, 49
S_OFF, S_OFF2, S_CNT = 50, 51, 52
S_STRIDE, S_UOFF, S_NT, S_FIRST, S_T0 = 53, 54, 55, 56, 57
S_HW, S_ROLE, S_RIDX, S_T1, S_T2, S_T3 = 58, 59, 60, 61, 62, 63
S_LOG2E, S_SCALE, S_MASKHI, S_SENTM1 = 64, 65, 66, 67
S_EX = 68
SRD_W2 = 72
SRD_X = 76
S_SPIN = 80
S_R = 81
S_CB = 82
S_NXT = 83
S_TA, S_TB = 70, 71
S_TS = 84
S_ST0 = 86
ROLE_NONE, ROLE_A, ROLE_B, ROLE_C = 0, 1, 2, 3

class Gen:
    def __init__(self, debug=False, stamps=False, NS=8, KT=32, LA=1, comp=1, map4=1, earlyV=1, earlyK=1, qsleep=8, kvtouch=1, pace=4, kpol=1, vpol=1, noq=0, nowt=0, hsleep=1, only=0, stop=0, qfix=0, qsc=1, qst=1, dC=6, dA=4, dB=4, pj0=10, emask=0xff, vearly=3, ofl=0, warm=0, nors=0, rearly=0, diag=0, pool=64, pD=6, pB=2):
        self.pool = pool; self.pD = pD; self.pB = pB
        self.diag = diag
        self.rearly = rearly
        self.nors = nors
        self.ofl = {0: '', 1: 'sc1', 2: 'sc0 sc1', 3: 'nt'}[ofl]; self.warm = warm
        self.vearly = vearly
        self.emask = emask
        assert NS <= 6
        self.dC = dC; self.dA = dA; self.dB = dB; self.pj0 = pj0
        self.qst = qst
        self.qfix = qfix; self.qfl = 'sc1' if qsc else ''
        self.stop = stop
        self.only = only
        self.hsleep = hsleep
        self.nowt = nowt
        self.noq = noq
        POL = {0: '', 1: 'nt', 2: 'sc1', 3: 'sc0 sc1', 4: 'sc1 nt', 5: 'sc0'}
        self.kfl = POL[kpol]; self.vfl = POL[vpol]
        self.pace = pace
        self.kvtouch = kvtouch
        self.earlyK = earlyK
        self.qsleep = qsleep
        self.earlyV = earlyV
        self.map4 = map4
        self.a = Asm()
        self.debug = debug; self.stamps = stamps
        self.NS = NS; self.KT = KT; self.LA = LA; self.comp = comp

    def srd(self, dst, base, size, off_sgpr=None):
        a = self.a
        if off_sgpr is not None:
            a(f"s_add_u32 s{dst}, s{base}, s{off_sgpr}")
            a(f"s_addc_u32 s{dst+1}, s{base+1}, 0")
        else:
            a(f"s_mov_b32 s{dst}, s{base}")
            a(f"s_mov_b32 s{dst+1}, s{base+1}")
        a(f"s_mov_b32 s{dst+2}, {size}")
        a(f"s_mov_b32 s{dst+3}, 0x20000")

    def stamp(self, k):
        if not self.stamps: return
        a = self.a
        a(f"s_memrealtime {sr(S_TS,2)}")
        a("s_waitcnt lgkmcnt(0)")
        a(f"s_mov_b32 s{S_ST0+k}, s{S_TS}")

    def stamp_flush(self):
        if not self.stamps: return
        a = self.a
        a("s_mov_b64 exec, -1")
        a("v_mbcnt_lo_u32_b32 v0, -1, 0")
        a("v_mbcnt_hi_u32_b32 v0, -1, v0")
        a("v_mov_b32 v1, 0")
        for k in range(12):
            a(f"v_writelane_b32 v1, s{S_ST0+k}, {k}")
        a(f"s_lshl_b32 s{S_T0}, s2, 4")
        a(f"s_add_u32 s{S_T0}, s{S_T0}, s{S_WAVE}")
        a(f"s_lshl_b32 s{S_T0}, s{S_T0}, 6")
        a(f"s_add_u32 s{S_T0}, s{S_T0}, {WS_STAMP}")
        a("v_lshlrev_b32 v2, 2, v0")
        a("v_cmp_gt_u32 vcc, 16, v0")
        a(f"s_and_saveexec_b64 {sr(S_EX,2)}, vcc")
        a(f"buffer_store_dword v1, v2, {sr(SRD_WS,4)}, s{S_T0} offen")

    def wave_sum(self, x, t):
        a = self.a
        for pat in ("quad_perm:[1,0,3,2]", "quad_perm:[2,3,0,1]", "row_half_mirror", "row_mirror"):
            a(f"v_add_f32_dpp v{x}, v{x}, v{x} {pat} row_mask:0xf bank_mask:0xf")
        a(f"v_mov_b32 v{t}, v{x}")
        a(f"v_permlane16_swap_b32 v{x}, v{t}")
        a(f"v_add_f32 v{x}, v{x}, v{t}")
        a(f"v_mov_b32 v{t}, v{x}")
        a(f"v_permlane32_swap_b32 v{x}, v{t}")
        a(f"v_add_f32 v{x}, v{x}, v{t}")

    def rne(self, x):
        a = self.a
        a(f"v_cvt_pk_bf16_f32 v{x}, v{x}, v{x}")
        a(f"v_and_b32 v{x}, 0xffff0000, v{x}")

    def lane_mask_lt(self, n, lane="v0"):
        a = self.a
        a(f"v_cmp_gt_u32 vcc, {n}, {lane}")
        a(f"s_and_saveexec_b64 {sr(S_EX,2)}, vcc")
    def restore_exec(self):
        self.a(f"s_mov_b64 exec, {sr(S_EX,2)}")

    def spin(self, lab, sleep, bound):
        a = self.a
        a(f"s_sleep {sleep}")
        a(f"s_add_u32 s{S_SPIN}, s{S_SPIN}, 1")
        a(f"s_cmp_lt_u32 s{S_SPIN}, {bound}")
        a(f"s_cbranch_scc1 {lab}")

    def layernorm(self, R, X, T, vL, lds_imm, s_row=None):
        a = self.a
        t0, t1, t2, t3, t4, t5 = range(T, T + 6)
        for k in range(5):
            a(f"v_lshlrev_b32 v{X+2*k}, 16, v{R+k}")
            a(f"v_and_b32 v{X+2*k+1}, s{S_MASKHI}, v{R+k}")
        a(f"v_add_f32 v{t0}, v{X}, v{X+1}")
        for k in range(2, 10):
            a(f"v_add_f32 v{t0}, v{t0}, v{X+k}")
        self.wave_sum(t0, t1)
        a(f"s_mov_b32 s{S_T1}, 0x44100000")
        a(f"s_mov_b32 s{S_T2}, 0x3ae38e39")
        a(f"v_mul_f32 v{t1}, s{S_T2}, v{t0}")
        a(f"v_fma_f32 v{t2}, -v{t1}, s{S_T1}, v{t0}")
        a(f"v_fma_f32 v{t1}, v{t2}, s{S_T2}, v{t1}")
        a(f"v_cmp_gt_u32 vcc, 32, v{vL}")
        a(f"v_sub_f32 v{t2}, v{X+8}, v{t1}")
        a(f"v_mul_f32 v{t3}, v{t2}, v{t2}")
        a(f"v_sub_f32 v{t2}, v{X+9}, v{t1}")
        a(f"v_fmac_f32 v{t3}, v{t2}, v{t2}")
        a(f"v_cndmask_b32 v{t3}, 0, v{t3}, vcc")
        for k in range(8):
            a(f"v_sub_f32 v{t2}, v{X+k}, v{t1}")
            a(f"v_fmac_f32 v{t3}, v{t2}, v{t2}")
        self.wave_sum(t3, t2)
        a(f"v_mul_f32 v{t2}, s{S_T2}, v{t3}")
        a(f"v_fma_f32 v{t0}, -v{t2}, s{S_T1}, v{t3}")
        a(f"v_fma_f32 v{t2}, v{t0}, s{S_T2}, v{t2}")
        self.rne(t1); self.rne(t2)
        a(f"v_add_f32 v{t2}, 0x3727c5ac, v{t2}")
        self.rne(t2)
        a(f"v_sqrt_f32 v{t3}, v{t2}")
        a(f"v_rcp_f32 v{t0}, v{t3}")
        a(f"v_fma_f32 v{t4}, -v{t3}, v{t3}, v{t2}")
        a(f"v_mul_f32 v{t0}, 0.5, v{t0}")
        a(f"v_fma_f32 v{t3}, v{t4}, v{t0}, v{t3}")
        self.rne(t3)
        a(f"v_rcp_f32 v{t0}, v{t3}")
        for k in range(10):
            a(f"v_sub_f32 v{X+k}, v{X+k}, v{t1}")
        for k in range(5):
            a(f"v_cvt_pk_bf16_f32 v{R+k}, v{X+2*k}, v{X+2*k+1}")
        for k in range(5):
            a(f"v_lshlrev_b32 v{X+2*k}, 16, v{R+k}")
            a(f"v_and_b32 v{X+2*k+1}, s{S_MASKHI}, v{R+k}")
        for k in range(10):
            a(f"v_mul_f32 v{t4}, v{X+k}, v{t0}")
            a(f"v_fma_f32 v{t5}, -v{t4}, v{t3}, v{X+k}")
            a(f"v_fma_f32 v{X+k}, v{t5}, v{t0}, v{t4}")
        for k in range(5):
            a(f"v_cvt_pk_bf16_f32 v{R+k}, v{X+2*k}, v{X+2*k+1}")
        a(f"v_lshlrev_b32 v{t4}, 4, v{vL}")
        a(f"v_lshlrev_b32 v{t5}, 2, v{vL}")
        if s_row is not None:
            a(f"v_add_u32 v{t4}, s{s_row}, v{t4}")
            a(f"v_add_u32 v{t5}, s{s_row}, v{t5}")
        a(f"ds_write_b128 v{t4}, {vr(R,4)} offset:{lds_imm}")
        a(f"s_and_saveexec_b64 {sr(S_EX,2)}, vcc")
        a(f"ds_write_b32 v{t5}, v{R+4} offset:{lds_imm+1024}")
        self.restore_exec()

    def xload(self, R, vL, tmp, s_rowbytes):
        a = self.a
        self.srd(SRD_X, S_X, 1152, off_sgpr=s_rowbytes)
        a(f"v_lshlrev_b32 v{tmp}, 4, v{vL}")
        a(f"buffer_load_dwordx4 {vr(R,4)}, v{tmp}, {sr(SRD_X,4)}, 0 offen")
        a(f"v_lshlrev_b32 v{tmp}, 2, v{vL}")
        a(f"buffer_load_dword v{R+4}, v{tmp}, {sr(SRD_X,4)}, 0 offen offset:1024")

    def prologue(self):
        a = self.a
        a("s_cmp_ge_u32 s2, 256")
        a("s_cbranch_scc1 L_exit")
        a("s_load_dwordx16 s[4:19], s[0:1], 0")
        a("s_load_dwordx8 s[20:27], s[0:1], 64")
        a("v_lshrrev_b32 v1, 6, v0")
        a("v_and_b32 v0, 63, v0")
        a(f"v_readfirstlane_b32 s{S_WAVE}, v1")
        for k in range(2, 8): a(f"v_mov_b32 v{k}, 0")
        if self.map4 == 6:
            a(f"s_bfe_u32 s{S_SPLIT}, s2, 0x10001")
            a(f"s_xor_b32 s{S_T1}, s2, s{S_SPLIT}")
            a(f"s_and_b32 s{S_T1}, s{S_T1}, 1")
            a(f"s_bfe_u32 s{S_HKV}, s2, 0x10002")
            a(f"s_lshl_b32 s{S_HKV}, s{S_HKV}, 1")
            a(f"s_add_u32 s{S_HKV}, s{S_HKV}, s{S_T1}")
            a(f"s_lshl_b32 s{S_HKV}, s{S_HKV}, 2")
            a(f"s_bfe_u32 s{S_T1}, s2, 0x20003")
            a(f"s_add_u32 s{S_HKV}, s{S_HKV}, s{S_T1}")
            a(f"s_lshr_b32 s{S_B}, s2, 5")
        elif self.map4 == 5:
            a(f"s_bfe_u32 s{S_HKV}, s2, 0x20001")
            a(f"s_lshl_b32 s{S_HKV}, s{S_HKV}, 2")
            a(f"s_bfe_u32 s{S_T1}, s2, 0x20003")
            a(f"s_add_u32 s{S_HKV}, s{S_HKV}, s{S_T1}")
            a(f"s_lshr_b32 s{S_B}, s2, 5")
            a(f"s_and_b32 s{S_SPLIT}, s2, 1")
        elif self.map4:
            a(f"s_and_b32 s{S_HKV}, s2, 3")
            a(f"s_lshl_b32 s{S_HKV}, s{S_HKV}, 2")
            a(f"s_bfe_u32 s{S_T1}, s2, 0x20003")
            a(f"s_add_u32 s{S_HKV}, s{S_HKV}, s{S_T1}")
            a(f"s_lshr_b32 s{S_B}, s2, 5")
            a(f"s_bfe_u32 s{S_SPLIT}, s2, 0x10002")
        else:
            a(f"s_and_b32 s{S_HKV}, s2, 7")
            a(f"s_lshr_b32 s{S_T0}, s2, 3")
            a(f"s_and_b32 s{S_T1}, s{S_T0}, 1")
            a(f"s_lshl_b32 s{S_HKV}, s{S_HKV}, 1")
            a(f"s_add_u32 s{S_HKV}, s{S_HKV}, s{S_T1}")
            a(f"s_lshr_b32 s{S_T0}, s{S_T0}, 1")
            a(f"s_and_b32 s{S_B}, s{S_T0}, 7")
            a(f"s_lshr_b32 s{S_SPLIT}, s{S_T0}, 3")
        a(f"s_lshl_b32 s{S_J}, s{S_B}, 1")
        a(f"s_add_u32 s{S_J}, s{S_J}, s{S_SPLIT}")
        a(f"s_mov_b32 s{S_SEL_LO}, 0x05040100")
        a(f"s_mov_b32 s{S_SEL_HI}, 0x07060302")
        a(f"s_mov_b32 s{S_LOG2E}, {LOG2E:#x}")
        a(f"s_mov_b32 s{S_SCALE}, {SCALE:#x}")
        a(f"s_mov_b32 s{S_MASKHI}, 0xffff0000")
        a(f"s_mov_b32 s{S_SENTM1}, 0xfffffffe")
        a(f"s_mov_b32 s{S_R}, -1")
        if self.stamps:
            for k in range(12): a(f"s_mov_b32 s{S_ST0+k}, 0")
        a("s_waitcnt lgkmcnt(0)")
        self.srd(SRD_WS, S_WS, WS_SIZE)
        a(f"s_add_u32 s{S_T0}, s{S_WS}, {WS_GEN}")
        a(f"s_addc_u32 s{S_T1}, s{S_WS+1}, 0")
        a(f"s_mov_b32 s{S_T2}, s{S_T0}")
        a(f"s_mov_b32 s{S_T3}, s{S_T1}")
        a(f"s_load_dword s{S_TA}, {sr(S_T2,2)}, 0")
        self.stamp(0)
        if self.diag:
            a(f"s_cmp_lg_u32 s{S_WAVE}, 0")
            a("s_cbranch_scc1 L_dg0")
            a(f"s_and_b32 s{S_T0}, s2, 31")
            a(f"s_cmp_lg_u32 s{S_T0}, 0")
            a("s_cbranch_scc1 L_dg0")
            a(f"s_memrealtime {sr(S_TS,2)}")
            a("s_waitcnt lgkmcnt(0)")
            a(f"s_not_b32 s{S_TS}, s{S_TS}")
            a(f"v_mov_b32 v8, s{S_TS}")
            a("v_mov_b32 v9, 8")
            a("s_mov_b64 exec, 1")
            a(f"global_atomic_umax v9, v8, {sr(S_DBG,2)}")
            a("s_mov_b64 exec, -1")
            a.label("L_dg0")
        a(f"s_cmp_ge_u32 s{S_WAVE}, 8")
        a("s_cbranch_scc1 L_aux")

    def touch(self, base, size, n, dst):
        a = self.a
        self.srd(SRD_W, base, size)
        a("v_lshlrev_b32 v4, 20, v0")
        self.lane_mask_lt(n)
        a(f"buffer_load_dword v{dst}, v4, {sr(SRD_W,4)}, 0 offen")
        self.restore_exec()

    def stream_setup(self):
        a = self.a
        KT = self.KT; TB = KT * 256; NTP = 8192 // KT
        self.NTP = NTP
        POOL = self.pool * (32 // KT) // 2
        self.POOLT = POOL
        ST = (NTP - POOL) // 2
        self.ST = ST
        a(f"s_cmp_eq_u32 s{S_SPLIT}, 0")
        a(f"s_cselect_b32 s{S_UOFF}, 0, {ST + POOL}")
        a(f"s_lshl_b32 s{S_T0}, s{S_B}, 4")
        a(f"s_add_u32 s{S_T0}, s{S_T0}, s{S_HKV}")
        a(f"s_lshl_b32 s{S_T0}, s{S_T0}, 21")
        self.srd(SRD_K, S_K, 0x200000, off_sgpr=S_T0)
        self.srd(SRD_V, S_V, 0x200000, off_sgpr=S_T0)
        a("v_and_b32 v4, 15, v0")
        a("v_lshrrev_b32 v5, 4, v0")
        a("v_lshlrev_b32 v6, 10, v5")
        a("v_lshl_add_u32 v1, v4, 4, v6")
        a("v_lshlrev_b32 v6, 4, v5")
        a("v_and_b32 v7, 1, v0")
        a("v_lshl_add_u32 v7, v7, 8, v6")
        a("v_lshl_add_u32 v0, v4, 8, v6")

    def issueK(self, o1=S_OFF, o2=S_OFF2):
        for u in range(self.KT // 16):
            for s_ in range(4):
                r = 64 + (u * 4 + s_) * 4
                self.a(f"buffer_load_dwordx4 {vr(r,4)}, v0, {sr(SRD_K,4)}, s{o1 if u == 0 else o2} offen offset:{s_*64} {self.kfl}")
    def issueV(self, o1=S_OFF, o2=S_OFF2):
        for u in range(self.KT // 16):
            for r_ in range(4):
                r = 96 + (u * 4 + r_) * 4
                self.a(f"buffer_load_dwordx4 {vr(r,4)}, v1, {sr(SRD_V,4)}, s{o1 if u == 0 else o2} offen offset:{r_*256} {self.vfl}")

    def stream(self):
        a = self.a
        NS, KT, LA = self.NS, self.KT, self.LA
        NU = KT // 16; NL = 4 * NU; TB = KT * 256
        VK, VV, M, L, P, S, Q, O, KB, VB = 0, 1, 2, 3, 4, 8, 16, 32, 64, 96
        a(f"s_cmp_ge_u32 s{S_WAVE}, {NS}")
        a("s_cbranch_scc1 L_idle")
        tl = {1: [(S_WS, WS_SIZE, 4), (S_WO, 4096*1152, 5), (S_OUT, 8*1152, 1)],
              2: [(S_WG, 576*9216, 6), (S_WU, 576*9216, 6), (S_DBG, 256, 1)],
              3: [(S_WD, 4608*1152, 6)]}
        for w in (1, 2, 3):
            lab = f"L_s_t{w}"
            a(f"s_cmp_lg_u32 s{S_WAVE}, {w}")
            a(f"s_cbranch_scc1 {lab}")
            for k, t in enumerate(tl[w]):
                self.touch(*t, 8 + k)
            a.label(lab)
        self.stream_setup()
        if self.kvtouch:
            a(f"s_cmp_lg_u32 s{S_WAVE}, 0")
            a("s_cbranch_scc1 L_s_nkt")
            a("v_mbcnt_lo_u32_b32 v12, -1, 0")
            a("v_mbcnt_hi_u32_b32 v12, -1, v12")
            a("v_lshlrev_b32 v12, 18, v12")
            a("s_mov_b64 exec, 0xff")
            a(f"buffer_load_dword v13, v12, {sr(SRD_K,4)}, 0 offen nt")
            a(f"buffer_load_dword v14, v12, {sr(SRD_V,4)}, 0 offen nt")
            a("s_mov_b64 exec, -1")
            a.label("L_s_nkt")
        a(f"s_add_u32 s{S_CNT}, s{S_UOFF}, s{S_WAVE}")
        a(f"s_mul_i32 s{S_OFF}, s{S_CNT}, {TB}")
        a(f"s_add_u32 s{S_OFF2}, s{S_OFF}, 4096")
        seq = []
        for u in range(NU):
            for s_ in range(4):
                seq.append(f"buffer_load_dwordx4 {vr(KB+(u*4+s_)*4,4)}, v0, {sr(SRD_K,4)}, s{S_OFF if u == 0 else S_OFF2} offen offset:{s_*64} {self.kfl}")
        for u in range(NU):
            for r_ in range(4):
                seq.append(f"buffer_load_dwordx4 {vr(VB+(u*4+r_)*4,4)}, v1, {sr(SRD_V,4)}, s{S_OFF if u == 0 else S_OFF2} offen offset:{r_*256} {self.vfl}")
        PS = self.pace
        for k0 in range(0, len(seq), PS):
            if k0 > 0: a("s_waitcnt vmcnt(0)")
            for ins in seq[k0:k0+PS]: a(ins)
            if k0 == 0:
                a("s_barrier")
                for k in range(32):
                    a(f"v_mov_b32 v{O+k}, 0")
                a(f"v_mov_b32 v{M}, 0xff800000")
                a(f"v_mov_b32 v{L}, 0")
        self.stamp(4)
        if self.only or self.noq: a("s_branch L_s_qok")
        a(f"v_mov_b32 v{P}, {LDS_CNT + 20}")
        a(f"s_mov_b32 s{S_SPIN}, 0")
        a.label("L_s_qw")
        a(f"ds_read_b32 v{P+1}, v{P}")
        a("s_waitcnt lgkmcnt(0)")
        a(f"v_readfirstlane_b32 s{S_T0}, v{P+1}")
        a(f"s_cmp_ge_u32 s{S_T0}, 2")
        a("s_cbranch_scc1 L_s_qok")
        self.spin("L_s_qw", 2, 0x100000)
        a.label("L_s_qok")
        self.stamp(1)
        for s_ in range(4):
            a(f"ds_read_b128 {vr(Q+4*s_,4)}, v7 offset:{LDS_Q + s_*64}")
        a(f"s_mov_b32 s{S_FIRST}, 0")
        a(f"s_mov_b32 s{S_STRIDE}, 0")
        a(f"v_mov_b32 v{P}, {LDS_CNT + 32}")
        a(f"v_mov_b32 v{P+1}, 1")
        a("s_mov_b64 exec, 1")
        a(f"ds_add_rtn_u32 v{P+2}, v{P}, v{P+1}")
        a("s_mov_b64 exec, -1")
        a("s_waitcnt lgkmcnt(0)")
        a(f"v_readfirstlane_b32 s{S_NXT}, v{P+2}")
        a(f"s_add_u32 s{S_NXT}, s{S_NXT}, s{S_UOFF}")
        a.label("L_sloop")
        a(f"s_mul_i32 s{S_OFF}, s{S_NXT}, {TB}")
        a(f"s_add_u32 s{S_OFF2}, s{S_OFF}, 4096")
        if LA == 2:
            a(f"s_waitcnt vmcnt({NL})")
        else:
            a("s_waitcnt vmcnt(0)")
            a(f"s_cmp_eq_u32 s{S_FIRST}, 0")
            a(f"s_mov_b32 s{S_FIRST}, 1")
            a("s_cbranch_scc1 L_skipV")
            a(f"s_mul_i32 s{S_T2}, s{S_CNT}, {TB}")
            a(f"s_add_u32 s{S_T3}, s{S_T2}, 4096")
            self.issueV(S_T2, S_T3)
            a.label("L_skipV")
        for s_ in range(4):
            for u in range(NU):
                c = "0" if s_ == 0 else vr(S + 4 * u, 4)
                a(f"v_mfma_f32_16x16x32_bf16 {vr(S+4*u,4)}, {vr(KB+(u*4+s_)*4,4)}, {vr(Q+4*s_,4)}, {c}")
        if LA == 2:
            self.issueK()
        NP = 2 * NU; NSV = 4 * NU
        for p in range(NP):
            a(f"v_cvt_pk_bf16_f32 v{P+p}, v{S+2*p}, v{S+2*p+1}")
        for p in range(NP):
            a(f"v_lshlrev_b32 v{S+2*p}, 16, v{P+p}")
            a(f"v_and_b32 v{S+2*p+1}, s{S_MASKHI}, v{P+p}")
        for k in range(NSV):
            a(f"v_mul_f32 v{S+k}, s{S_SCALE}, v{S+k}")
        for p in range(NP):
            a(f"v_cvt_pk_bf16_f32 v{P+p}, v{S+2*p}, v{S+2*p+1}")
        for p in range(NP):
            a(f"v_lshlrev_b32 v{S+2*p}, 16, v{P+p}")
            a(f"v_and_b32 v{S+2*p+1}, s{S_MASKHI}, v{P+p}")
        if NU == 2:
            a(f"v_max3_f32 v{P}, v{S}, v{S+1}, v{S+2}")
            a(f"v_max3_f32 v{P+1}, v{S+3}, v{S+4}, v{S+5}")
            a(f"v_max3_f32 v{P}, v{P}, v{S+6}, v{S+7}")
            a(f"v_max_f32 v{P}, v{P}, v{P+1}")
        else:
            a(f"v_max3_f32 v{P}, v{S}, v{S+1}, v{S+2}")
            a(f"v_max_f32 v{P}, v{P}, v{S+3}")
        a(f"v_cmp_gt_f32 vcc, v{P}, v{M}")
        a("s_cbranch_vccz L_nores")
        a(f"v_mov_b32 v{P+1}, v{P}")
        a(f"v_permlane16_swap_b32 v{P}, v{P+1}")
        a(f"v_max_f32 v{P}, v{P}, v{P+1}")
        a(f"v_mov_b32 v{P+1}, v{P}")
        a(f"v_permlane32_swap_b32 v{P}, v{P+1}")
        a(f"v_max3_f32 v{P}, v{P}, v{P+1}, v{M}")
        a(f"v_sub_f32 v{P+2}, v{M}, v{P}")
        a(f"v_mul_f32 v{P+2}, s{S_LOG2E}, v{P+2}")
        a(f"v_exp_f32 v{P+2}, v{P+2}")
        a(f"v_mov_b32 v{M}, v{P}")
        a(f"v_mov_b32 v{P+3}, v{P+2}")
        a(f"v_mul_f32 v{L}, v{L}, v{P+2}")
        for k in range(16):
            a(f"v_pk_mul_f32 {vr(O+2*k,2)}, {vr(O+2*k,2)}, {vr(P+2,2)}")
        a.label("L_nores")
        a(f"v_mul_f32 v{P}, s{S_LOG2E}, v{M}")
        for k in range(NSV):
            a(f"v_fma_f32 v{S+k}, v{S+k}, s{S_LOG2E}, -v{P}")
        for k in range(NSV):
            a(f"v_exp_f32 v{S+k}, v{S+k}")
        if NU == 2:
            a(f"v_add_f32 v{P+1}, v{S}, v{S+1}")
            a(f"v_add_f32 v{P+2}, v{S+2}, v{S+3}")
            a(f"v_add_f32 v{P+3}, v{S+4}, v{S+5}")
            a(f"v_add_f32 v{P}, v{S+6}, v{S+7}")
            a(f"v_add_f32 v{P+1}, v{P+1}, v{P+2}")
            a(f"v_add_f32 v{P+3}, v{P+3}, v{P}")
            a(f"v_add_f32 v{L}, v{L}, v{P+1}")
            a(f"v_add_f32 v{L}, v{L}, v{P+3}")
        else:
            a(f"v_add_f32 v{P+1}, v{S}, v{S+1}")
            a(f"v_add_f32 v{P+2}, v{S+2}, v{S+3}")
            a(f"v_add_f32 v{L}, v{L}, v{P+1}")
            a(f"v_add_f32 v{L}, v{L}, v{P+2}")
        for p in range(NP):
            a(f"v_cvt_pk_bf16_f32 v{P+p}, v{S+2*p}, v{S+2*p+1}")
        if LA == 2:
            a(f"s_waitcnt vmcnt({NL})")
        else:
            a("s_waitcnt vmcnt(0)")
            self.issueK()
        npp = 4 if NU == 2 else 2
        def perms(c, e):
            for p in range(npp):
                a(f"v_perm_b32 v{S+4*e+p}, v{VB+(2*p+1)*4+c}, v{VB+(2*p)*4+c}, s{S_SEL_LO if e == 0 else S_SEL_HI}")
        def pv(c, e):
            j = 2 * c + e
            if NU == 2:
                a(f"v_mfma_f32_16x16x32_bf16 {vr(O+4*j,4)}, {vr(S+4*e,4)}, {vr(P,4)}, {vr(O+4*j,4)}")
            else:
                a(f"v_mfma_f32_16x16x16_bf16 {vr(O+4*j,4)}, {vr(S+4*e,2)}, {vr(P,2)}, {vr(O+4*j,4)}")
        perms(0, 0); perms(0, 1)
        for c in range(4):
            pv(c, 0)
            if c < 3: perms(c + 1, 0)
            pv(c, 1)
            if c < 3: perms(c + 1, 1)
        a(f"v_mov_b32 v{S}, {LDS_CNT + 32}")
        a(f"v_mov_b32 v{S+1}, 1")
        a("s_mov_b64 exec, 1")
        a(f"ds_add_rtn_u32 v{S+2}, v{S}, v{S+1}")
        a("s_mov_b64 exec, -1")
        if LA == 2:
            self.issueV()
        a(f"s_mov_b32 s{S_CNT}, s{S_NXT}")
        a("s_waitcnt lgkmcnt(0)")
        a(f"v_readfirstlane_b32 s{S_NXT}, v{S+2}")
        a(f"s_cmp_lt_u32 s{S_NXT}, {self.ST}")
        a("s_cbranch_scc0 L_s_pool")
        a(f"s_add_u32 s{S_NXT}, s{S_NXT}, s{S_UOFF}")
        a.label("L_s_tile")
        if self.stamps:
            a(f"s_add_u32 s{S_STRIDE}, s{S_STRIDE}, 1")
            for slot, it in ((8, 64), (10, 128), (11, 192)):
                lab = a.newlabel("L_its")
                a(f"s_cmp_lg_u32 s{S_NXT}, {it}")
                a(f"s_cbranch_scc1 {lab}")
                self.stamp(slot)
                a.label(lab)
        a(f"s_cmp_lt_u32 s{S_CNT}, {self.NTP}")
        a("s_cbranch_scc1 L_sloop")
        a("s_branch L_s_done")
        a.label("L_s_pool")
        a(f"s_sub_u32 s{S_NXT}, s{S_NXT}, {self.ST}")
        a(f"s_cmp_lt_u32 s{S_NXT}, 128")
        a("s_cbranch_scc1 L_s_pq")
        a(f"s_mov_b32 s{S_NXT}, {4*self.NTP}")
        a("s_branch L_s_tile")
        a.label("L_s_pq")
        a(f"s_lshl_b32 s{S_T0}, s{S_NXT}, 2")
        a(f"s_add_u32 s{S_T0}, s{S_T0}, {LDS_TQ}")
        a(f"v_mov_b32 v{S}, s{S_T0}")
        a(f"s_mov_b32 s{S_SPIN}, 0")
        a.label("L_s_pqw")
        a(f"ds_read_b32 v{S+1}, v{S}")
        a("s_waitcnt lgkmcnt(0)")
        a(f"v_readfirstlane_b32 s{S_NXT}, v{S+1}")
        a(f"s_cmp_lg_u32 s{S_NXT}, -1")
        a("s_cbranch_scc1 L_s_tile")
        self.spin("L_s_pqw", 1, 0x100000)
        a(f"s_mov_b32 s{S_NXT}, {4*self.NTP}")
        a("s_branch L_s_tile")
        a.label("L_s_done")
        self.stamp(2)
        if self.only or self.stop in (1, 2, 11, 12, 13): a("s_branch L_exit")
        a(f"v_mov_b32 v{P}, v{L}")
        a(f"v_permlane16_swap_b32 v{L}, v{P}")
        a(f"v_add_f32 v{L}, v{L}, v{P}")
        a(f"v_mov_b32 v{P}, v{L}")
        a(f"v_permlane32_swap_b32 v{L}, v{P}")
        a(f"v_add_f32 v{L}, v{L}, v{P}")
        a("v_mbcnt_lo_u32_b32 v8, -1, 0")
        a("v_mbcnt_hi_u32_b32 v8, -1, v8")
        a("v_and_b32 v9, 15, v8")
        a("v_lshrrev_b32 v10, 4, v8")
        a(f"s_mul_i32 s{S_T0}, s{S_WAVE}, {SP_STRIDE}")
        a(f"s_add_u32 s{S_T0}, s{S_T0}, {LDS_SP}")
        a("v_lshlrev_b32 v11, 9, v9")
        a("v_lshl_add_u32 v11, v10, 4, v11")
        a(f"v_add_u32 v11, s{S_T0}, v11")
        a("v_cmp_gt_u32 vcc, 2, v9")
        a(f"s_and_saveexec_b64 {sr(S_EX,2)}, vcc")
        for j in range(8):
            a(f"ds_write_b128 v11, {vr(O+4*j,4)} offset:{j*64}")
        a("v_cmp_gt_u32 vcc, 2, v8")
        a("s_and_b64 exec, exec, vcc")
        a("v_lshlrev_b32 v12, 3, v9")
        a(f"v_add_u32 v12, s{S_T0}, v12")
        a(f"ds_write_b64 v12, {vr(M,2)} offset:1024")
        self.restore_exec()
        a("s_waitcnt vmcnt(0) lgkmcnt(0)")
        a("s_branch L_B4")
        a.label("L_idle")
        if self.only:
            a("s_barrier")
            a("s_branch L_exit")
        if self.rearly:
            a(f"s_cmp_lg_u32 s{S_WAVE}, 4")
            a("s_cbranch_scc1 L_id_nr")
            self.role_decode("i")
            self.resets("i")
            a("s_barrier")
            self.reset_signal()
            a("s_branch L_id_r")
            a.label("L_id_nr")
        a("s_barrier")
        if self.rearly: a.label("L_id_r")
        if self.stop in (1, 2, 11, 12, 13): a("s_branch L_exit")
        a(f"s_cmp_lg_u32 s{S_WAVE}, 5")
        a("s_cbranch_scc1 L_nofeed")
        self.feeder()
        a("s_branch L_B4")
        a.label("L_nofeed")
        if self.warm:
            a(f"s_cmp_lg_u32 s{S_WAVE}, 4")
            a("s_cbranch_scc1 L_nowarm")
            a("v_mbcnt_lo_u32_b32 v0, -1, 0")
            a("v_mbcnt_hi_u32_b32 v0, -1, v0")
            self.wait_tiles(105 * (32 // self.KT))
            a(f"s_getpc_b64 {sr(S_T2,2)}")
            a.label("L_pc0")
            a(f"s_add_u32 s{S_T2}, s{S_T2}, L_B4-L_pc0")
            a(f"s_addc_u32 s{S_T3}, s{S_T3}, 0")
            a("v_lshlrev_b32 v3, 6, v0")
            a(f"global_load_dword v4, v3, {sr(S_T2,2)}")
            a("s_waitcnt vmcnt(0)")
            a.label("L_nowarm")
        a(f"s_cmp_lt_u32 s{S_WAVE}, 6")
        a("s_cbranch_scc1 L_B4")
        a(f"s_cmp_lt_u32 s{S_J}, 10")
        a("s_cbranch_scc0 L_rw_hi")
        a(f"s_cmp_eq_u32 s{S_SPLIT}, 0")
        a("s_cbranch_scc0 L_B4")
        a(f"s_mov_b32 s{S_T0}, s{S_B}")
        a("s_branch L_rw_go")
        a.label("L_rw_hi")
        a(f"s_sub_u32 s{S_T0}, s{S_J}, 5")
        a.label("L_rw_go")
        a(f"s_cmp_lt_u32 s{S_T0}, 9")
        a("s_cbranch_scc0 L_B4")
        a(f"s_mul_i32 s{S_R}, s{S_HKV}, 9")
        a(f"s_add_u32 s{S_R}, s{S_R}, s{S_T0}")
        a(f"s_lshl_b32 s{S_R}, s{S_R}, 1")
        a(f"s_add_u32 s{S_R}, s{S_R}, s{S_WAVE}")
        a(f"s_sub_u32 s{S_R}, s{S_R}, 6")
        self.reducer_pre()
        a("s_branch L_B4")

    def perm_block(self, buf, c, e, T):
        for p in range(4):
            self.a(f"v_perm_b32 v{T+p}, v{buf+(2*p+1)*4+c}, v{buf+(2*p)*4+c}, s{S_SEL_LO if e == 0 else S_SEL_HI}")

    def aux(self):
        a = self.a
        a.label("L_aux")
        if self.only:
            a("v_mov_b32 v8, 0")
            a("v_cmp_eq_u32 vcc, 8, v0")
            a(f"v_mov_b32 v9, {self.NS}")
            a("v_cndmask_b32 v8, v8, v9, vcc")
            a("v_lshlrev_b32 v9, 2, v0")
            self.lane_mask_lt(16)
            a(f"ds_write_b32 v9, v8 offset:{LDS_CNT}")
            self.restore_exec()
            a("s_waitcnt lgkmcnt(0)")
            a("s_barrier")
            a("s_branch L_exit")
        a("s_setprio 3")
        a(f"s_sub_u32 s{S_HW}, s{S_WAVE}, 8")
        a(f"s_mul_i32 s{S_T0}, s{S_HW}, 1152")
        self.xload(16, 0, 4, S_T0)
        a(f"s_cmp_lg_u32 s{S_HW}, 0")
        a("s_cbranch_scc1 L_a_nc")
        a("v_mov_b32 v8, 0")
        a("v_cmp_eq_u32 vcc, 8, v0")
        a(f"v_mov_b32 v9, {self.NS}")
        a("v_cndmask_b32 v8, v8, v9, vcc")
        a("v_lshlrev_b32 v9, 2, v0")
        self.lane_mask_lt(16)
        a(f"ds_write_b32 v9, v8 offset:{LDS_CNT}")
        self.restore_exec()
        a("v_mov_b32 v8, -1")
        a(f"v_add_u32 v9, {LDS_TQ}, v9")
        a("ds_write_b32 v9, v8")
        a("ds_write_b32 v9, v8 offset:256")
        a("s_waitcnt lgkmcnt(0)")
        a.label("L_a_nc")
        self.role_decode()
        a(f"s_mov_b32 s{S_FIRST}, 0")
        a(f"s_sub_u32 s{S_CB}, s{S_J}, {self.pj0}")
        a(f"s_cmp_lt_u32 s{S_CB}, 6")
        a("s_cbranch_scc0 L_a_np")
        a(f"s_mov_b32 s{S_FIRST}, 1")
        a(f"s_cmp_lt_u32 s{S_HW}, 6")
        a("s_cbranch_scc0 L_a_w0")
        self.srd(SRD_W, S_WQ, 576 * 8192)
        a("v_lshrrev_b32 v3, 4, v0")
        a("v_lshlrev_b32 v3, 16, v3")
        a("v_and_b32 v1, 15, v0")
        a("v_lshl_add_u32 v1, v1, 4, v3")
        a(f"s_lshr_b32 s{S_T1}, s{S_CB}, 1")
        a(f"s_mul_i32 s{S_T1}, s{S_T1}, 6")
        a(f"s_add_u32 s{S_T1}, s{S_T1}, s{S_HW}")
        a(f"s_mov_b32 s{S_NT}, s{S_T1}")
        a(f"s_lshl_b32 s{S_UOFF}, s{S_T1}, 18")
        a(f"s_and_b32 s{S_T2}, s{S_CB}, 1")
        a(f"s_lshl_b32 s{S_T2}, s{S_T2}, 8")
        a(f"s_lshl_b32 s{S_T3}, s{S_HKV}, 9")
        a(f"s_add_u32 s{S_UOFF}, s{S_UOFF}, s{S_T2}")
        a(f"s_add_u32 s{S_UOFF}, s{S_UOFF}, s{S_T3}")
        for t in range(8):
            a(f"buffer_load_dwordx4 {vr(64+4*t,4)}, v1, {sr(SRD_W,4)}, s{S_UOFF} offen nt")
            if t < 7: a(f"s_add_u32 s{S_UOFF}, s{S_UOFF}, 8192")
        a.label("L_a_w8")
        a("s_barrier")
        a("s_waitcnt vmcnt(8)")
        a("s_branch L_a_ln")
        a.label("L_a_np")
        if self.vearly & 1:
            a(f"s_cmp_eq_u32 s{S_ROLE}, {ROLE_A}")
            a("s_cbranch_scc0 L_a_na")
            self.w_setup_a()
            self.w_issue()
            a("s_branch L_a_w8")
            a.label("L_a_na")
        if self.vearly & 2:
            a(f"s_cmp_eq_u32 s{S_ROLE}, {ROLE_C}")
            a("s_cbranch_scc0 L_a_w0")
            self.c_setup()
            self.c_issue(64)
            a("s_barrier")
            a("s_waitcnt vmcnt(16)")
            a("s_branch L_a_ln")
        a.label("L_a_w0")
        a("s_barrier")
        a("s_waitcnt vmcnt(0)")
        a.label("L_a_ln")
        self.stamp(4)
        a(f"s_mul_i32 s{S_T3}, s{S_HW}, {XN_STRIDE}")
        self.layernorm(16, 32, 8, 0, LDS_XN, s_row=S_T3)
        self.stamp(2)
        self.helper_sync(3)
        if self.stop == 12: a("s_branch L_exit")
        a(f"s_xor_b32 s{S_TB}, s{S_TA}, 0x5bd1e995")
        a(f"s_add_u32 s{S_TB}, s{S_TB}, 0x7f4a7c15")
        a(f"s_add_u32 s{S_TA}, s{S_TA}, 0x9e3779b9")
        a(f"s_cmp_eq_u32 s{S_FIRST}, 0")
        a("s_cbranch_scc1 L_a_cons")
        a(f"s_cmp_lt_u32 s{S_HW}, 6")
        a("s_cbranch_scc0 L_a_pr")
        a("v_and_b32 v2, 7, v0")
        a(f"s_movk_i32 s{S_T0}, {XN_STRIDE}")
        a(f"v_mul_lo_u32 v2, v2, s{S_T0}")
        a("v_lshrrev_b32 v3, 4, v0")
        a("v_lshl_add_u32 v2, v3, 4, v2")
        a(f"s_lshl_b32 s{S_T1}, s{S_NT}, 6")
        a(f"v_add_u32 v2, s{S_T1}, v2")
        a(f"ds_read_b128 v[16:19], v2 offset:{LDS_XN}")
        a("s_waitcnt vmcnt(0)")
        self.stamp(7)
        self.perm_block(64, 0, 0, 8); self.perm_block(64, 0, 1, 12)
        a("s_waitcnt lgkmcnt(0)")
        for c in range(4):
            for e in range(2):
                j = 2 * c + e
                a(f"v_mfma_f32_16x16x32_bf16 {vr(32+4*j,4)}, {vr(8+4*e,4)}, v[16:19], 0")
                if c < 3: self.perm_block(64, c + 1, e, 8 + 4 * e)
        a("v_and_b32 v2, 15, v0")
        a("v_lshlrev_b32 v3, 9, v2")
        a("v_lshrrev_b32 v4, 4, v0")
        a("v_lshl_add_u32 v3, v4, 4, v3")
        a(f"s_lshl_b32 s{S_T1}, s{S_HW}, 12")
        a(f"s_add_u32 s{S_T1}, s{S_T1}, {LDS_QFP}")
        a(f"v_add_u32 v3, s{S_T1}, v3")
        a("v_cmp_gt_u32 vcc, 8, v2")
        a(f"s_and_saveexec_b64 {sr(S_EX,2)}, vcc")
        for j in range(8):
            a(f"ds_write_b128 v3, {vr(32+4*j,4)} offset:{j*64}")
        self.restore_exec()
        a.label("L_a_pr")
        self.helper_sync(4)
        a(f"s_lshl_b32 s{S_T1}, s{S_HW}, 9")
        a(f"s_add_u32 s{S_T1}, s{S_T1}, {LDS_QFP}")
        a("v_lshlrev_b32 v3, 3, v0")
        a(f"v_add_u32 v3, s{S_T1}, v3")
        for w in range(6):
            a(f"ds_read_b64 {vr(64+2*w,2)}, v3 offset:{w*4096}")
        a(f"s_lshr_b32 s{S_T0}, s{S_CB}, 1")
        a(f"s_mul_i32 s{S_T1}, s{S_HKV}, 3")
        a(f"s_add_u32 s{S_T0}, s{S_T0}, s{S_T1}")
        a(f"s_lshl_b32 s{S_T0}, s{S_T0}, 3")
        a(f"s_add_u32 s{S_T0}, s{S_T0}, s{S_HW}")
        a(f"s_lshl_b32 s{S_T0}, s{S_T0}, 11")
        a(f"s_and_b32 s{S_T1}, s{S_CB}, 1")
        a(f"s_lshl_b32 s{S_T1}, s{S_T1}, 10")
        a(f"s_add_u32 s{S_T0}, s{S_T0}, s{S_T1}")
        a(f"s_add_u32 s{S_T0}, s{S_T0}, {WS_QP}")
        a(f"v_mov_b32 v10, s{S_TA}")
        a(f"v_mov_b32 v11, s{S_TB}")
        a("v_lshlrev_b32 v3, 4, v0")
        a("s_waitcnt lgkmcnt(0)")
        for r in range(2):
            a(f"v_add_f32 v{64+r}, v{64+r}, v{66+r}")
            a(f"v_add_f32 v{68+r}, v{68+r}, v{70+r}")
            a(f"v_add_f32 v{72+r}, v{72+r}, v{74+r}")
            a(f"v_add_f32 v{64+r}, v{64+r}, v{68+r}")
            a(f"v_add_f32 v{8+r}, v{64+r}, v{72+r}")
        if self.qst == 1: a(f"buffer_store_dwordx4 v[8:11], v3, {sr(SRD_WS,4)}, s{S_T0} offen sc1")
        if self.qst == 5:
            a("s_mov_b64 exec, 0xffff")
            a(f"buffer_store_dwordx4 v[8:11], v3, {sr(SRD_WS,4)}, s{S_T0} offen sc1")
            a("s_mov_b64 exec, -1")
        if self.qst == 6:
            a(f"s_cmp_lt_u32 s{S_HW}, 2")
            a("s_cbranch_scc0 L_qst6")
            a(f"buffer_store_dwordx4 v[8:11], v3, {sr(SRD_WS,4)}, s{S_T0} offen sc1")
            a.label("L_qst6")
        if self.qst == 2: a(f"buffer_store_dwordx4 v[8:11], v3, {sr(SRD_WS,4)}, s{S_T0} offen")
        if self.qst == 3: a(f"buffer_store_dwordx4 v[8:11], v3, {sr(SRD_WS,4)}, s{S_T0} offen sc1 nt")
        if self.qst == 4: a(f"buffer_store_dwordx4 v[8:11], v3, {sr(SRD_WS,4)}, s{S_T0} offen sc0 sc1")
        self.stamp(6)
        a.label("L_a_cons")
        a(f"s_sub_u32 s{S_T3}, s{S_HW}, 2")
        a(f"s_cmp_lt_u32 s{S_T3}, 2")
        a("s_cbranch_scc0 L_a_B2")
        if self.stop == 13: a("s_branch L_exit")
        a(f"s_mul_i32 s{S_T1}, s{S_HKV}, {3*16384}")
        a(f"s_lshl_b32 s{S_T2}, s{S_B}, 11")
        a(f"s_add_u32 s{S_T1}, s{S_T1}, s{S_T2}")
        a(f"s_lshl_b32 s{S_T2}, s{S_T3}, 10")
        a(f"s_add_u32 s{S_T1}, s{S_T1}, s{S_T2}")
        a(f"s_add_u32 s{S_T1}, s{S_T1}, {WS_QP}")
        a("v_lshlrev_b32 v3, 4, v0")
        a(f"s_mov_b32 s{S_SPIN}, 0")
        a.label("L_q_poll")
        a(f"s_mov_b32 s{S_T0}, s{S_T1}")
        for p in range(3):
            a(f"buffer_load_dwordx4 {vr(96+4*p,4)}, v3, {sr(SRD_WS,4)}, s{S_T0} offen {self.qfl}")
            if p < 2: a(f"s_add_u32 s{S_T0}, s{S_T0}, 16384")
        a("s_waitcnt vmcnt(0)")
        a(f"v_xor_b32 v4, s{S_TA}, v98")
        a(f"v_xor_b32 v5, s{S_TB}, v99")
        a("v_or_b32 v4, v4, v5")
        for p in range(1, 3):
            a(f"v_xor_b32 v5, s{S_TA}, v{96+4*p+2}")
            a(f"v_xor_b32 v6, s{S_TB}, v{96+4*p+3}")
            a("v_or3_b32 v4, v4, v5, v6")
        a("v_cmp_ne_u32 vcc, 0, v4")
        if self.qfix == 0: a("s_cbranch_vccz L_q_ok")
        self.spin("L_q_poll", self.qsleep, 0x40000 if self.qfix == 0 else self.qfix)
        a.label("L_q_ok")
        self.stamp(8)
        for r in range(2):
            a(f"v_add_f32 v{96+r}, v{96+r}, v{100+r}")
            a(f"v_add_f32 v{96+r}, v{96+r}, v{104+r}")
        a("v_cvt_pk_bf16_f32 v96, v96, v97")
        a("v_lshrrev_b32 v5, 3, v0")
        a("v_and_b32 v6, 7, v0")
        a("v_lshlrev_b32 v4, 5, v6")
        a("v_lshl_add_u32 v4, v5, 1, v4")
        a(f"s_lshl_b32 s{S_T2}, s{S_T3}, 8")
        a(f"v_add_u32 v4, s{S_T2}, v4")
        a(f"ds_write_b16 v4, v96 offset:{LDS_Q}")
        a(f"ds_write_b16_d16_hi v4, v96 offset:{LDS_Q+16}")
        if self.debug:
            a("v_lshlrev_b32 v12, 16, v96")
            a("v_and_b32 v13, 0xffff0000, v96")
            a(f"s_lshl_b32 s{S_T0}, s2, 10")
            a(f"s_add_u32 s{S_T0}, s{S_T0}, {WS_DBG}")
            a("v_lshlrev_b32 v10, 1, v4")
            a(f"buffer_store_dword v12, v10, {sr(SRD_WS,4)}, s{S_T0} offen")
            a(f"buffer_store_dword v13, v10, {sr(SRD_WS,4)}, s{S_T0} offen offset:32")
        a("s_waitcnt lgkmcnt(0)")
        a(f"v_mov_b32 v3, {LDS_CNT + 20}")
        a("v_mov_b32 v4, 1")
        a("s_mov_b64 exec, 1")
        a("ds_add_u32 v3, v4")
        a("s_mov_b64 exec, -1")
        a.label("L_a_B2")
        if self.emask != 0xff:
            a(f"s_lshl_b32 s{S_T0}, 1, s{S_HW}")
            a(f"s_and_b32 s{S_T0}, s{S_T0}, {self.emask}")
            a("s_cbranch_scc1 L_a_go")
            a(f"v_mov_b32 v3, {LDS_CNT + 20}")
            a(f"s_mov_b32 s{S_SPIN}, 0")
            a.label("L_a_qw")
            a("ds_read_b32 v4, v3")
            a("s_waitcnt lgkmcnt(0)")
            a(f"v_readfirstlane_b32 s{S_T0}, v4")
            a(f"s_cmp_ge_u32 s{S_T0}, 2")
            a("s_cbranch_scc1 L_a_go")
            self.spin("L_a_qw", 4, 0x100000)
            a.label("L_a_go")
        if self.stop in (1, 13): a("s_branch L_exit")
        self.stamp(3)
        self.helper_mid()
        self.stamp(1)
        if self.stop == 2: a("s_branch L_exit")
        a("s_branch L_B4")

    def role_decode(self, tag=''):
        a = self.a
        a(f"s_mov_b32 s{S_ROLE}, {ROLE_NONE}")
        a(f"s_mov_b32 s{S_RIDX}, 0")
        a(f"s_cmp_lt_u32 s{S_J}, 10")
        a(f"s_cbranch_scc0 L_rd_hi{tag}")
        a(f"s_cmp_eq_u32 s{S_SPLIT}, 0")
        a(f"s_cbranch_scc1 L_rd_even{tag}")
        a(f"s_mov_b32 s{S_ROLE}, {ROLE_A}")
        a(f"s_mov_b32 s{S_RIDX}, s{S_B}")
        a(f"s_branch L_rd_done{tag}")
        a.label(f"L_rd_even{tag}")
        a(f"s_lshl_b32 s{S_T0}, s{S_B}, 4")
        a(f"s_add_u32 s{S_T0}, s{S_T0}, s{S_HKV}")
        a(f"s_cmp_lt_u32 s{S_T0}, 72")
        a(f"s_cbranch_scc0 L_rd_red2{tag}")
        a(f"s_mov_b32 s{S_ROLE}, {ROLE_C}")
        a(f"s_mov_b32 s{S_RIDX}, s{S_T0}")
        a(f"s_branch L_rd_done{tag}")
        a.label(f"L_rd_red2{tag}")
        a(f"s_branch L_rd_done{tag}")
        a.label(f"L_rd_hi{tag}")
        a(f"s_cmp_eq_u32 s{S_J}, 15")
        a(f"s_cbranch_scc1 L_rd_red{tag}")
        a(f"s_mov_b32 s{S_ROLE}, {ROLE_B}")
        a(f"s_sub_u32 s{S_RIDX}, s{S_J}, 10")
        a(f"s_branch L_rd_done{tag}")
        a.label(f"L_rd_red{tag}")
        a.label(f"L_rd_done{tag}")

    def helper_sync(self, idx):
        a = self.a
        lab = a.newlabel("L_hs")
        a("s_waitcnt lgkmcnt(0)")
        a(f"v_mov_b32 v3, {LDS_CNT + 4*idx}")
        a("v_mov_b32 v4, 1")
        a("s_mov_b64 exec, 1")
        a("ds_add_u32 v3, v4")
        a("s_mov_b64 exec, -1")
        a(f"s_mov_b32 s{S_SPIN}, 0")
        a.label(lab)
        a("ds_read_b32 v4, v3")
        a("s_waitcnt lgkmcnt(0)")
        a(f"v_readfirstlane_b32 s{S_T0}, v4")
        a(f"s_cmp_ge_u32 s{S_T0}, 8")
        a(f"s_cbranch_scc1 {lab}_done")
        self.spin(lab, self.hsleep, 0x100000)
        a.label(lab + "_done")

    def wait_tiles(self, thr):
        a = self.a
        lab = a.newlabel("L_wt")
        a(f"s_mov_b32 s{S_SPIN}, 0")
        a(f"v_mov_b32 v3, {LDS_CNT + 32}")
        a.label(lab)
        a("ds_read_b32 v4, v3")
        a("s_waitcnt lgkmcnt(0)")
        a(f"v_readfirstlane_b32 s{S_T0}, v4")
        a(f"s_cmp_ge_u32 s{S_T0}, {thr}")
        a(f"s_cbranch_scc1 {lab}_done")
        self.spin(lab, 32, 0x10000)
        a.label(lab + "_done")

    def poll_counter(self, target):
        a = self.a
        lab = a.newlabel("L_pc")
        a(f"s_mov_b32 s{S_SPIN}, 0")
        a("v_mov_b32 v3, 0")
        a.label(lab)
        a(f"global_load_dword v4, v3, {sr(S_DBG,2)} sc1")
        a("s_waitcnt vmcnt(0)")
        a(f"v_readfirstlane_b32 s{S_T0}, v4")
        a(f"s_cmp_ge_u32 s{S_T0}, {target}")
        a(f"s_cbranch_scc1 {lab}_done")
        self.spin(lab, 32, 0x10000)
        a.label(lab + "_done")

    def helper_mid(self):
        a = self.a
        KT = self.KT; TS = 32 // KT
        if not self.rearly:
            a(f"s_cmp_lg_u32 s{S_HW}, 7")
            a("s_cbranch_scc1 L_reset_done")
            self.resets("m")
            self.reset_signal()
        a.label("L_reset_done")
        if self.nors & 2: a("s_branch L_mid_done")
        self.stamp(11)
        a(f"s_cmp_eq_u32 s{S_ROLE}, {ROLE_C}")
        a("s_cbranch_scc1 L_role_c")
        a(f"s_cmp_eq_u32 s{S_ROLE}, {ROLE_NONE}")
        a("s_cbranch_scc1 L_role_none")
        self.w_prefetch()
        a(f"s_cmp_eq_u32 s{S_ROLE}, {ROLE_B}")
        a("s_cbranch_scc1 L_role_b")
        a(f"s_cmp_lg_u32 s{S_HW}, 0")
        a("s_cbranch_scc1 L_mid_done")
        self.wait_tiles(80 * TS)
        self.poll_counter(256)
        a("s_branch L_mid_done")
        a.label("L_role_b")
        self.role_b()
        a("s_branch L_mid_done")
        a.label("L_role_c")
        self.role_c()
        a("s_branch L_mid_done")
        a.label("L_role_none")
        a.label("L_mid_done")

    def resets(self, tag):
        a = self.a
        if self.nors & 1: return
        for k in range(4, 8): a(f"v_mov_b32 v{k}, -1")
        a("v_lshlrev_b32 v3, 4, v0")
        a(f"s_lshl_b32 s{S_T0}, s{S_HKV}, 4")
        a(f"s_add_u32 s{S_T0}, s{S_T0}, s{S_J}")
        a(f"s_lshl_b32 s{S_T0}, s{S_T0}, 11")
        a(f"buffer_store_dwordx4 v[4:7], v3, {sr(SRD_WS,4)}, s{S_T0} offen sc1")
        a("s_mov_b64 exec, 1")
        a(f"buffer_store_dwordx4 v[4:7], v3, {sr(SRD_WS,4)}, s{S_T0} offen offset:1024 sc1")
        a(f"s_cmp_lg_u32 s{S_SPLIT}, 0")
        a(f"s_cbranch_scc1 L_rs_np{tag}")
        a(f"s_lshl_b32 s{S_T0}, s{S_B}, 4")
        a(f"s_add_u32 s{S_T0}, s{S_T0}, s{S_HKV}")
        a(f"s_lshl_b32 s{S_T0}, s{S_T0}, 6")
        a(f"s_add_u32 s{S_T0}, s{S_T0}, {WS_PC}")
        a("v_mov_b32 v8, 0")
        a(f"buffer_store_dword v8, v3, {sr(SRD_WS,4)}, s{S_T0} offen sc1")
        a.label(f"L_rs_np{tag}")
        a("s_mov_b64 exec, -1")
        a(f"s_cmp_eq_u32 s{S_ROLE}, {ROLE_NONE}")
        a(f"s_cbranch_scc1 L_rs_end{tag}")
        a(f"s_cmp_eq_u32 s{S_ROLE}, {ROLE_C}")
        a(f"s_cbranch_scc1 L_rs_c{tag}")
        a(f"s_mul_i32 s{S_T0}, s{S_HKV}, 5")
        a(f"s_add_u32 s{S_T0}, s{S_T0}, s{S_RIDX}")
        a(f"s_lshl_b32 s{S_T0}, s{S_T0}, 12")
        a(f"s_cmp_eq_u32 s{S_ROLE}, {ROLE_A}")
        a(f"s_mov_b32 s{S_T2}, {WS_F2}")
        a(f"s_cselect_b32 s{S_T1}, {WS_P2}, s{S_T2}")
        a(f"s_add_u32 s{S_T0}, s{S_T0}, s{S_T1}")
        for k in range(4):
            a(f"buffer_store_dwordx4 v[4:7], v3, {sr(SRD_WS,4)}, s{S_T0} offen offset:{k*1024} sc1")
        a(f"s_branch L_rs_end{tag}")
        a.label(f"L_rs_c{tag}")
        self.h_addr()
        a(f"buffer_store_dwordx4 v[4:7], v8, {sr(SRD_WS,4)}, s{S_T0} offen sc1")
        a.label(f"L_rs_end{tag}")

    def reset_signal(self):
        a = self.a
        a("s_waitcnt vmcnt(0)")
        a("v_mov_b32 v3, 0")
        a("v_mov_b32 v4, 1")
        a(f"v_mov_b32 v5, {LDS_CNT + 24}")
        a("s_mov_b64 exec, 1")
        a(f"global_atomic_add v3, v4, {sr(S_DBG,2)} sc1")
        a("ds_add_u32 v5, v4")
        a("s_mov_b64 exec, -1")

    def h_addr(self):
        a = self.a
        a("v_lshrrev_b32 v8, 3, v0")
        a(f"s_movk_i32 s{S_T1}, 9216")
        a(f"v_mul_lo_u32 v8, v8, s{S_T1}")
        a("v_and_b32 v9, 7, v0")
        a("v_lshl_add_u32 v8, v9, 4, v8")
        a(f"s_lshl_b32 s{S_T0}, s{S_RIDX}, 7")
        a(f"s_add_u32 s{S_T0}, s{S_T0}, {WS_H}")

    def w_unit_to_lds(self, kb_sgpr):
        a = self.a
        a(f"s_lshl_b32 s{S_T0}, s{kb_sgpr}, 13")
        a("v_lshlrev_b32 v3, 4, v0")
        a(f"v_add_u32 v3, s{S_T0}, v3")
        a(f"v_add_u32 v3, {LDS_W}, v3")
        for c in range(4):
            for e in range(2):
                j = 2 * c + e
                T = 8 + 4 * (j & 3)
                self.perm_block(64, c, e, T)
                a(f"ds_write_b128 v3, {vr(T,4)} offset:{j*1024}")

    def w_common(self):
        a = self.a
        a(f"s_movk_i32 s{S_T1}, 1152")
        a(f"v_mul_lo_u32 v3, v3, s{S_T1}")
        a("v_and_b32 v1, 15, v0")
        a("v_lshl_add_u32 v1, v1, 4, v3")
        a(f"s_mul_i32 s{S_UOFF}, s{S_T0}, 1152")
        a(f"s_lshl_b32 s{S_T1}, s{S_RIDX}, 8")
        a(f"s_add_u32 s{S_UOFF}, s{S_UOFF}, s{S_T1}")

    def w_setup_a(self):
        a = self.a
        self.srd(SRD_W, S_WO, 0 if (self.nowt & 1) else 4096 * 1152)
        a("v_lshrrev_b32 v3, 4, v0")
        a("v_and_b32 v4, 1, v3")
        a("v_lshlrev_b32 v4, 6, v4")
        a("v_lshrrev_b32 v3, 1, v3")
        a("v_add_u32 v3, v3, v4")
        a(f"s_lshl_b32 s{S_T0}, s{S_HKV}, 8")
        a(f"s_lshr_b32 s{S_T1}, s{S_HW}, 2")
        a(f"s_lshl_b32 s{S_T1}, s{S_T1}, 7")
        a(f"s_add_u32 s{S_T0}, s{S_T0}, s{S_T1}")
        a(f"s_and_b32 s{S_T1}, s{S_HW}, 3")
        a(f"s_lshl_b32 s{S_T1}, s{S_T1}, 1")
        a(f"s_add_u32 s{S_T0}, s{S_T0}, s{S_T1}")
        a(f"s_movk_i32 s{S_STRIDE}, {8*1152}")
        self.w_common()

    def w_setup_b(self):
        a = self.a
        self.srd(SRD_W, S_WD, 0 if (self.nowt & 1) else 4608 * 1152)
        a("v_lshrrev_b32 v3, 4, v0")
        a("v_lshlrev_b32 v3, 3, v3")
        a(f"s_mul_i32 s{S_T0}, s{S_HKV}, 288")
        a(f"s_lshl_b32 s{S_T1}, s{S_HW}, 5")
        a(f"s_add_u32 s{S_T0}, s{S_T0}, s{S_T1}")
        a(f"s_movk_i32 s{S_STRIDE}, 1152")
        self.w_common()

    def w_issue(self):
        a = self.a
        a(f"s_mov_b32 s{S_T2}, s{S_UOFF}")
        for t in range(8):
            a(f"buffer_load_dwordx4 {vr(64+4*t,4)}, v1, {sr(SRD_W,4)}, s{S_T2} offen nt")
            if t < 7: a(f"s_add_u32 s{S_T2}, s{S_T2}, s{S_STRIDE}")

    def w_prefetch(self):
        a = self.a
        a(f"s_mov_b32 s{S_CNT}, s{S_HW}")
        a(f"s_cmp_eq_u32 s{S_ROLE}, {ROLE_B}")
        a("s_cbranch_scc1 L_wp_b")
        if self.vearly & 1:
            a("s_branch L_wp_fin")
        else:
            self.w_setup_a()
            a("s_branch L_wp_loop")
        a.label("L_wp_b")
        self.w_setup_b()
        a.label("L_wp_loop")
        self.w_issue()
        a.label("L_wp_fin")
        a("s_waitcnt vmcnt(0)")
        self.w_unit_to_lds(S_CNT)
        a(f"s_cmp_eq_u32 s{S_ROLE}, {ROLE_B}")
        a("s_cbranch_scc0 L_wp_done")
        a(f"s_cmp_eq_u32 s{S_CNT}, 0")
        a("s_cbranch_scc0 L_wp_done")
        a(f"s_mov_b32 s{S_CNT}, 8")
        a(f"s_add_u32 s{S_UOFF}, s{S_UOFF}, {256*1152}")
        a("s_branch L_wp_loop")
        a.label("L_wp_done")
        a("s_waitcnt lgkmcnt(0)")

    def c_setup(self):
        a = self.a
        self.srd(SRD_W, S_WG, 0 if (self.nowt & 2) else 576 * 9216)
        self.srd(SRD_W2, S_WU, 0 if (self.nowt & 2) else 576 * 9216)
        a("v_lshrrev_b32 v3, 4, v0")
        a(f"s_mov_b32 s{S_T1}, {8*9216}")
        a(f"v_mul_lo_u32 v3, v3, s{S_T1}")
        a("v_and_b32 v1, 7, v0")
        a("v_lshl_add_u32 v1, v1, 4, v3")
        a(f"s_mul_i32 s{S_UOFF}, s{S_HW}, {32*9216}")
        a(f"s_lshl_b32 s{S_T1}, s{S_RIDX}, 7")
        a(f"s_add_u32 s{S_UOFF}, s{S_UOFF}, s{S_T1}")

    def c_issue(self, buf):
        a = self.a
        a(f"s_mov_b32 s{S_T2}, s{S_UOFF}")
        a("s_mov_b32 exec_lo, 0x00ff00ff"); a("s_mov_b32 exec_hi, 0x00ff00ff")
        for t in range(8):
            a(f"buffer_load_dwordx4 {vr(buf+4*t,4)}, v1, {sr(SRD_W,4)}, s{S_T2} offen nt")
            a(f"s_add_u32 s{S_T2}, s{S_T2}, 9216")
        a(f"s_mov_b32 s{S_T2}, s{S_UOFF}")
        a("s_mov_b32 exec_lo, 0xff00ff00"); a("s_mov_b32 exec_hi, 0xff00ff00")
        for t in range(8):
            a(f"buffer_load_dwordx4 {vr(buf+4*t,4)}, v1, {sr(SRD_W2,4)}, s{S_T2} offen nt")
            a(f"s_add_u32 s{S_T2}, s{S_T2}, 9216")
        a("s_mov_b64 exec, -1")
        a(f"s_add_u32 s{S_UOFF}, s{S_UOFF}, {8*32*9216}")

    def proj(self, nkb, a_imm, a_stride, wave_sgpr, tag, preloaded=False):
        a = self.a
        if not preloaded:
            self.proj_preload(nkb, wave_sgpr)
        a("v_and_b32 v2, 7, v0")
        a(f"s_movk_i32 s{S_T0}, {a_stride}")
        a(f"v_mul_lo_u32 v2, v2, s{S_T0}")
        a("v_lshrrev_b32 v3, 4, v0")
        a("v_lshl_add_u32 v2, v3, 4, v2")
        AR = [4 + 4 * k for k in range(7)] + [100, 104]
        for kb in range(nkb):
            a(f"ds_read_b128 {vr(AR[kb],4)}, v2 offset:{a_imm + kb*64}")
        for kb in range(nkb):
            a(f"s_waitcnt lgkmcnt({nkb-1-kb})")
            c = "0" if kb == 0 else "v[32:35]"
            a(f"v_mfma_f32_16x16x32_bf16 v[32:35], {vr(AR[kb],4)}, {vr(64+4*kb,4)}, {c}")

    def proj_preload(self, nkb, wave_sgpr):
        a = self.a
        a(f"s_lshl_b32 s{S_T0}, s{wave_sgpr}, 10")
        a("v_lshlrev_b32 v3, 4, v0")
        a(f"v_add_u32 v3, s{S_T0}, v3")
        a(f"v_add_u32 v3, {LDS_W}, v3")
        for kb in range(nkb):
            if kb < 8:
                a(f"ds_read_b128 {vr(64+4*kb,4)}, v3 offset:{kb*8192}")
            else:
                a("v_add_u32 v2, 0x10000, v3")
                a(f"ds_read_b128 {vr(64+4*kb,4)}, v2 offset:{(kb-8)*8192}")

    def publish4(self, acc):
        a = self.a
        for k in range(4):
            a(f"v_min_u32 v{acc+k}, s{S_SENTM1}, v{acc+k}")
        a("v_and_b32 v3, 15, v0")
        a("v_lshlrev_b32 v3, 5, v3")
        a("v_lshrrev_b32 v2, 4, v0")
        a("v_lshl_add_u32 v3, v2, 4, v3")
        self.lane_mask_lt(32)
        a(f"buffer_store_dwordx4 {vr(acc,4)}, v3, {sr(SRD_WS,4)}, s{S_T0} offen sc1")
        self.restore_exec()

    def role_b(self):
        a = self.a
        TS = 32 // self.KT
        self.wait_tiles(48 * TS)
        self.poll_counter(256)
        a(f"s_mul_i32 s{S_T1}, s{S_HW}, 9216")
        a(f"s_mul_i32 s{S_T2}, s{S_HKV}, 576")
        a(f"s_add_u32 s{S_T1}, s{S_T1}, s{S_T2}")
        a(f"s_add_u32 s{S_T1}, s{S_T1}, {WS_H}")
        a("v_lshlrev_b32 v5, 4, v0")
        self.lane_mask_lt(36)
        a(f"s_mov_b32 s{S_SPIN}, 0")
        a.label("L_b_poll")
        a(f"buffer_load_dwordx4 v[8:11], v5, {sr(SRD_WS,4)}, s{S_T1} offen sc1")
        a("s_waitcnt vmcnt(0)")
        a("v_max3_u32 v6, v8, v9, v10")
        a("v_max_u32 v6, v6, v11")
        a("v_cmp_eq_u32 vcc, -1, v6")
        a("s_cbranch_vccz L_b_ok")
        self.spin("L_b_poll", 64, 0x8000)
        a.label("L_b_ok")
        a(f"s_mul_i32 s{S_T1}, s{S_HW}, {H_STRIDE}")
        a(f"v_add_u32 v5, s{S_T1}, v5")
        a(f"ds_write_b128 v5, v[8:11] offset:{LDS_H}")
        self.restore_exec()
        self.helper_sync(0)
        self.proj(9, LDS_H, H_STRIDE, S_HW, "b")
        a(f"s_mul_i32 s{S_T0}, s{S_HKV}, 5")
        a(f"s_add_u32 s{S_T0}, s{S_T0}, s{S_RIDX}")
        a(f"s_lshl_b32 s{S_T0}, s{S_T0}, 12")
        a(f"s_lshl_b32 s{S_T1}, s{S_HW}, 9")
        a(f"s_add_u32 s{S_T0}, s{S_T0}, s{S_T1}")
        a(f"s_add_u32 s{S_T0}, s{S_T0}, {WS_F2}")
        self.publish4(32)

    def role_c(self):
        a = self.a
        issue = self.c_issue
        if not (self.vearly & 2):
            self.c_setup()
            issue(64)
        issue(96)
        a("v_and_b32 v2, 7, v0")
        a(f"s_movk_i32 s{S_T0}, {XN_STRIDE}")
        a(f"v_mul_lo_u32 v2, v2, s{S_T0}")
        a("v_lshrrev_b32 v3, 4, v0")
        a("v_lshl_add_u32 v2, v3, 4, v2")
        a(f"s_lshl_b32 s{S_T1}, s{S_HW}, 6")
        a(f"v_add_u32 v2, s{S_T1}, v2")
        for k in range(32): a(f"v_mov_b32 v{32+k}, 0")
        def process(buf, u, vm):
            a(f"ds_read_b128 v[16:19], v2 offset:{LDS_XN + u*512}")
            a(f"s_waitcnt vmcnt({vm})")
            self.perm_block(buf, 0, 0, 8); self.perm_block(buf, 0, 1, 12)
            a("s_waitcnt lgkmcnt(0)")
            for c in range(4):
                for e in range(2):
                    j = 2 * c + e
                    a(f"v_mfma_f32_16x16x32_bf16 {vr(32+4*j,4)}, v[16:19], {vr(8+4*e,4)}, {vr(32+4*j,4)}")
                    if c < 3: self.perm_block(buf, c + 1, e, 8 + 4 * e)
        process(64, 0, 16)
        a(f"s_cmp_ge_u32 s{S_HW}, 2")
        a("s_cbranch_scc1 L_c_u1")
        issue(64)
        process(96, 1, 16)
        process(64, 2, 0)
        a("s_branch L_c_ud")
        a.label("L_c_u1")
        process(96, 1, 0)
        a.label("L_c_ud")
        a(f"s_lshl_b32 s{S_T0}, s{S_HW}, 12")
        a("v_and_b32 v3, 15, v0")
        a("v_lshlrev_b32 v3, 8, v3")
        a("v_lshrrev_b32 v4, 4, v0")
        a("v_lshl_add_u32 v3, v4, 4, v3")
        a(f"v_add_u32 v3, s{S_T0}, v3")
        self.lane_mask_lt(32)
        for j in range(8):
            a(f"ds_write_b128 v3, {vr(32+4*j,4)} offset:{LDS_FP + j*32}")
        self.restore_exec()
        self.helper_sync(1)
        a(f"s_lshl_b32 s{S_T0}, s{S_HW}, 6")
        a(f"v_add_u32 v3, s{S_T0}, v0")
        a("v_lshlrev_b32 v4, 2, v3")
        a(f"v_add_u32 v4, {LDS_FP}, v4")
        for k in range(8):
            a(f"ds_read_b32 v{8+k}, v4 offset:{k*4096}")
        for k in range(8):
            a(f"ds_read_b32 v{16+k}, v4 offset:{k*4096 + 2048}")
        a("s_waitcnt lgkmcnt(0)")
        for base in (8, 16):
            for k in range(4):
                a(f"v_add_f32 v{base+k}, v{base+k}, v{base+4+k}")
            a(f"v_add_f32 v{base}, v{base}, v{base+2}")
            a(f"v_add_f32 v{base+1}, v{base+1}, v{base+3}")
            a(f"v_add_f32 v{base}, v{base}, v{base+1}")
            self.rne(base)
        a(f"v_mul_f32 v10, s{S_LOG2E}, v8")
        a("v_exp_f32 v10, -v10")
        a("v_add_f32 v10, 1.0, v10")
        a("v_rcp_f32 v12, v10")
        a("v_mul_f32 v14, v8, v12")
        a("v_fma_f32 v18, -v14, v10, v8")
        a("v_fma_f32 v14, v18, v12, v14")
        self.rne(14)
        a("v_mul_f32 v14, v14, v16")
        a("v_cvt_pk_bf16_f32 v14, v14, v14")
        a("v_lshrrev_b32 v5, 3, v3")
        a("v_and_b32 v6, 7, v3")
        a("v_lshlrev_b32 v6, 7, v6")
        a("v_lshl_add_u32 v6, v5, 1, v6")
        a(f"ds_write_b16 v6, v14 offset:{LDS_H}")
        self.helper_sync(2)
        a(f"s_cmp_lg_u32 s{S_HW}, 0")
        a("s_cbranch_scc1 L_c_done")
        a(f"v_mov_b32 v3, {LDS_CNT + 24}")
        a(f"s_mov_b32 s{S_SPIN}, 0")
        a.label("L_c_rw")
        a("ds_read_b32 v4, v3")
        a("s_waitcnt lgkmcnt(0)")
        a(f"v_readfirstlane_b32 s{S_T0}, v4")
        a(f"s_cmp_ge_u32 s{S_T0}, 1")
        a("s_cbranch_scc1 L_c_rok")
        self.spin("L_c_rw", 4, 0x100000)
        a.label("L_c_rok")
        a("v_lshlrev_b32 v3, 4, v0")
        a(f"ds_read_b128 v[4:7], v3 offset:{LDS_H}")
        self.h_addr()
        a("s_waitcnt lgkmcnt(0)")
        for k in range(4, 8):
            a(f"v_min_u32 v{k}, s{S_SENTM1}, v{k}")
        a(f"buffer_store_dwordx4 v[4:7], v8, {sr(SRD_WS,4)}, s{S_T0} offen sc1")
        a.label("L_c_done")

    def rowsum4(self, base):
        for pat in ("quad_perm:[1,0,3,2]", "quad_perm:[2,3,0,1]", "row_half_mirror", "row_mirror"):
            for r in range(4):
                self.a(f"v_add_f32_dpp v{base+r}, v{base+r}, v{base+r} {pat} row_mask:0xf bank_mask:0xf")

    def select4(self, dst, base):
        a = self.a
        a(f"v_mov_b32 v{dst}, v{base}")
        for k in range(1, 4):
            a(f"v_cmp_eq_u32 vcc, {k}, v6")
            a(f"v_cndmask_b32 v{dst}, v{dst}, v{base+k}, vcc")

    def poll1(self, base_imm, tag, sleep):
        a = self.a
        a(f"s_mov_b32 s{S_SPIN}, 0")
        a(f"s_mov_b32 s{S_T0}, {base_imm}")
        a.label(f"L_p1_{tag}")
        a(f"buffer_load_dwordx4 v[16:19], v1, {sr(SRD_WS,4)}, s{S_T0} offen sc1")
        a("s_waitcnt vmcnt(0)")
        a("v_max3_u32 v5, v16, v17, v18")
        a("v_max_u32 v5, v5, v19")
        a("v_cmp_eq_u32 vcc, -1, v5")
        a(f"s_cbranch_vccz L_p1_{tag}_done")
        self.spin(f"L_p1_{tag}", sleep, 0x40000)
        a.label(f"L_p1_{tag}_done")

    def feeder(self):
        a = self.a
        ST, POOL, D, B = self.ST, self.POOLT, self.pD, self.pB
        INV = 4 * self.NTP
        a("v_mbcnt_lo_u32_b32 v0, -1, 0")
        a("v_mbcnt_hi_u32_b32 v0, -1, v0")
        self.wait_tiles(ST - D - 16)
        self.poll_counter(256)
        a("s_setprio 3")
        a(f"s_lshl_b32 s{S_T1}, s{S_B}, 4")
        a(f"s_add_u32 s{S_T1}, s{S_T1}, s{S_HKV}")
        a(f"s_lshl_b32 s{S_T1}, s{S_T1}, 6")
        a(f"s_add_u32 s{S_T1}, s{S_T1}, {WS_PC}")
        a(f"s_mov_b32 s{S_T2}, 0")
        a(f"s_mov_b32 s{S_SPIN}, 0")
        a(f"v_mov_b32 v3, {LDS_CNT + 32}")
        a("v_mov_b32 v2, 0")
        a.label("L_fd_loop")
        a("ds_read_b32 v4, v3")
        a("s_waitcnt lgkmcnt(0)")
        a(f"v_readfirstlane_b32 s{S_T0}, v4")
        a(f"s_add_u32 s{S_T0}, s{S_T0}, {D}")
        a(f"s_add_u32 s{S_T3}, s{S_T2}, {ST}")
        a(f"s_cmp_gt_u32 s{S_T0}, s{S_T3}")
        a("s_cbranch_scc1 L_fd_claim")
        self.spin("L_fd_loop", 2, 0x200000)
        a("s_branch L_fd_rest")
        a.label("L_fd_claim")
        a(f"v_mov_b32 v5, {B}")
        a("s_mov_b64 exec, 1")
        a(f"buffer_atomic_add v5, v2, {sr(SRD_WS,4)}, s{S_T1} offen sc0 sc1")
        a("s_mov_b64 exec, -1")
        a("s_waitcnt vmcnt(0)")
        a(f"v_readfirstlane_b32 s{S_T0}, v5")
        a(f"v_add_u32 v6, s{S_T0}, v0")
        a(f"v_add_u32 v7, {ST}, v6")
        a(f"v_mov_b32 v8, {INV}")
        a(f"v_cmp_gt_u32 vcc, {POOL}, v6")
        a("v_cndmask_b32 v7, v8, v7, vcc")
        a(f"v_add_u32 v9, s{S_T2}, v0")
        a("v_lshlrev_b32 v9, 2, v9")
        a(f"v_add_u32 v9, {LDS_TQ}, v9")
        a(f"s_mov_b64 exec, {(1 << B) - 1}")
        a("ds_write_b32 v9, v7")
        a("s_mov_b64 exec, -1")
        a(f"s_add_u32 s{S_T2}, s{S_T2}, {B}")
        a(f"s_add_u32 s{S_T0}, s{S_T0}, {B}")
        a(f"s_cmp_ge_u32 s{S_T0}, {POOL}")
        a("s_cbranch_scc1 L_fd_rest")
        a(f"s_cmp_lt_u32 s{S_T2}, {128 - B}")
        a("s_cbranch_scc1 L_fd_loop")
        a.label("L_fd_rest")
        a(f"v_mov_b32 v8, {INV}")
        for off in (0, 64):
            a(f"v_add_u32 v9, s{S_T2}, v0")
            if off: a(f"v_add_u32 v9, {off}, v9")
            a("v_cmp_gt_u32 vcc, 128, v9")
            a("v_lshlrev_b32 v9, 2, v9")
            a(f"v_add_u32 v9, {LDS_TQ}, v9")
            a(f"s_and_saveexec_b64 {sr(S_EX,2)}, vcc")
            a(f"s_cbranch_execz L_fd_e{off}")
            a("ds_write_b32 v9, v8")
            a.label(f"L_fd_e{off}")
            self.restore_exec()
        a("s_waitcnt lgkmcnt(0)")
        a("s_setprio 0")

    def reducer_pre(self):
        a = self.a
        TS = 32 // self.KT
        a("v_mbcnt_lo_u32_b32 v0, -1, 0")
        a("v_mbcnt_hi_u32_b32 v0, -1, v0")
        self.wait_tiles(100 * TS)
        self.poll_counter(256)
        a(f"s_lshr_b32 s{S_CB}, s{S_R}, 6")
        a(f"s_bfe_u32 s{S_T1}, s{S_R}, 0x30003")
        a(f"s_and_b32 s{S_T2}, s{S_R}, 7")
        a(f"s_cmp_lt_u32 s{S_R}, 256")
        a("s_cbranch_scc1 L_rp_dec")
        a(f"s_sub_u32 s{S_T3}, s{S_R}, 256")
        a(f"s_lshr_b32 s{S_T1}, s{S_T3}, 2")
        a(f"s_and_b32 s{S_T2}, s{S_T3}, 3")
        a.label("L_rp_dec")
        a(f"s_lshl_b32 s{S_T0}, s{S_CB}, 12")
        a(f"s_lshl_b32 s{S_T3}, s{S_T1}, 9")
        a(f"s_add_u32 s{S_T0}, s{S_T0}, s{S_T3}")
        a(f"s_lshl_b32 s{S_T3}, s{S_T2}, 6")
        a(f"s_add_u32 s{S_T0}, s{S_T0}, s{S_T3}")
        a("v_and_b32 v2, 15, v0")
        a(f"s_movk_i32 s{S_T3}, 20480")
        a(f"v_mul_lo_u32 v1, v2, s{S_T3}")
        a("v_lshrrev_b32 v3, 5, v0")
        a("v_bfe_u32 v4, v0, 4, 1")
        a("v_lshl_add_u32 v1, v3, 5, v1")
        a("v_lshl_add_u32 v1, v4, 4, v1")
        a(f"v_add_u32 v1, s{S_T0}, v1")
        a("v_and_b32 v6, 3, v0")
        a(f"s_lshl_b32 s{S_T0}, s{S_CB}, 7")
        a(f"s_lshl_b32 s{S_T3}, s{S_T2}, 4")
        a(f"s_add_u32 s{S_T0}, s{S_T0}, s{S_T3}")
        a(f"s_add_u32 s{S_T0}, s{S_T0}, s{S_T1}")
        a("v_lshlrev_b32 v3, 3, v3")
        a(f"v_add_u32 v3, s{S_T0}, v3")
        a("v_lshl_add_u32 v4, v4, 2, v6")
        a(f"s_movk_i32 s{S_T3}, 1152")
        a(f"v_mul_lo_u32 v4, v4, s{S_T3}")
        a("v_lshl_add_u32 v7, v3, 1, v4")
        self.srd(SRD_X, S_X, 8 * 1152)
        a(f"buffer_load_ushort v9, v7, {sr(SRD_X,4)}, 0 offen")
        self.poll1(WS_F2, "f2", 32)
        self.rowsum4(16)
        self.select4(8, 16)
        self.rne(8)
        a("v_lshlrev_b32 v9, 16, v9")

    def tail(self):
        a = self.a
        NS = self.NS
        a.label("L_B4")
        a("s_barrier")
        self.stamp(5)
        a("s_setprio 0")
        a("v_mbcnt_lo_u32_b32 v0, -1, 0")
        a("v_mbcnt_hi_u32_b32 v0, -1, v0")
        a(f"s_cmp_lg_u32 s{S_WAVE}, 0")
        a("s_cbranch_scc1 L_nomerge")
        a("v_lshlrev_b32 v2, 4, v0")
        a("v_lshrrev_b32 v3, 5, v0")
        a("v_lshlrev_b32 v3, 3, v3")
        for w in range(NS):
            a(f"ds_read_b64 {vr(16+2*w,2)}, v3 offset:{LDS_SP + w*SP_STRIDE + 1024}")
        for w in range(NS):
            a(f"ds_read_b128 {vr(32+4*w,4)}, v2 offset:{LDS_SP + w*SP_STRIDE}")
        a(f"s_waitcnt lgkmcnt({NS})")
        a("v_max_f32 v4, v16, v18")
        for w in range(2, NS):
            a(f"v_max_f32 v4, v4, v{16+2*w}")
        for w in range(NS):
            a(f"v_sub_f32 v{16+2*w}, v{16+2*w}, v4")
            a(f"v_mul_f32 v{16+2*w}, s{S_LOG2E}, v{16+2*w}")
            a(f"v_exp_f32 v{16+2*w}, v{16+2*w}")
        a("v_mul_f32 v5, v16, v17")
        for w in range(1, NS):
            a(f"v_fmac_f32 v5, v{16+2*w}, v{17+2*w}")
        a("s_waitcnt lgkmcnt(0)")
        for r in range(4):
            a(f"v_mul_f32 v{8+r}, v16, v{32+r}")
        for w in range(1, NS):
            for r in range(4):
                a(f"v_fmac_f32 v{8+r}, v{16+2*w}, v{32+4*w+r}")
        for r in range(4):
            a(f"v_min_u32 v{8+r}, s{S_SENTM1}, v{8+r}")
        a(f"v_min_u32 v4, s{S_SENTM1}, v4")
        a(f"v_min_u32 v5, s{S_SENTM1}, v5")
        a(f"s_lshl_b32 s{S_T0}, s{S_HKV}, 4")
        a(f"s_add_u32 s{S_T0}, s{S_T0}, s{S_J}")
        a(f"s_lshl_b32 s{S_T0}, s{S_T0}, 11")
        a(f"buffer_store_dwordx4 v[8:11], v2, {sr(SRD_WS,4)}, s{S_T0} offen sc1")
        a(f"v_readlane_b32 s{S_T1}, v4, 32")
        a(f"v_readlane_b32 s{S_T2}, v5, 32")
        a("v_mov_b32 v12, v4")
        a("v_mov_b32 v13, v5")
        a(f"v_mov_b32 v14, s{S_T1}")
        a(f"v_mov_b32 v15, s{S_T2}")
        a("v_mov_b32 v3, 0")
        a("s_mov_b64 exec, 1")
        a(f"buffer_store_dwordx4 v[12:15], v3, {sr(SRD_WS,4)}, s{S_T0} offen offset:1024 sc1")
        a("s_mov_b64 exec, -1")
        self.stamp(6)
        a.label("L_nomerge")
        a(f"s_cmp_lt_u32 s{S_J}, 10")
        a("s_cbranch_scc0 L_notcons")
        a(f"s_cmp_eq_u32 s{S_SPLIT}, 1")
        a("s_cbranch_scc1 L_consumer")
        a.label("L_notcons")
        a(f"s_cmp_lt_i32 s{S_R}, 0")
        a("s_cbranch_scc1 L_end")
        a("s_setprio 3")
        self.poll1(WS_P2, "p2", 1)
        self.stamp(7)
        self.rowsum4(16)
        self.select4(10, 16)
        self.rne(10)
        a("v_add_f32 v10, v9, v10")
        self.rne(10)
        a("v_add_f32 v10, v10, v8")
        a("v_cvt_pk_bf16_f32 v10, v10, v10")
        self.srd(SRD_X, S_OUT, 8 * 1152)
        a("v_and_b32 v2, 15, v0")
        a("v_cmp_gt_u32 vcc, 4, v2")
        a(f"s_and_saveexec_b64 {sr(S_EX,2)}, vcc")
        a(f"buffer_store_short v10, v7, {sr(SRD_X,4)}, 0 offen {self.ofl}")
        self.restore_exec()
        a(f"s_cmp_lg_u32 s{S_R}, 0")
        a("s_cbranch_scc1 L_end")
        a(f"s_add_u32 s{S_TA}, s{S_TA}, 0x9e3779b9")
        a(f"v_mov_b32 v3, s{S_TA}")
        a("v_mov_b32 v2, 0")
        a(f"s_mov_b32 s{S_T0}, {WS_GEN}")
        a("s_mov_b64 exec, 1")
        a(f"buffer_store_dword v3, v2, {sr(SRD_WS,4)}, s{S_T0} offen sc1")
        a("s_mov_b64 exec, -1")
        a("s_branch L_end")
        a.label("L_consumer")
        a(f"s_cmp_ge_u32 s{S_WAVE}, 8")
        a("s_cbranch_scc1 L_c_nopre")
        self.proj_preload(8, S_WAVE)
        a.label("L_c_nopre")
        a(f"s_lshr_b32 s{S_T1}, s{S_WAVE}, 1")
        a(f"s_and_b32 s{S_T2}, s{S_WAVE}, 1")
        a(f"s_lshl_b32 s{S_T0}, s{S_HKV}, 4")
        a(f"s_lshl_b32 s{S_T3}, s{S_T1}, 1")
        a(f"s_add_u32 s{S_T0}, s{S_T0}, s{S_T3}")
        a(f"s_lshl_b32 s{S_T0}, s{S_T0}, 11")
        a("v_lshrrev_b32 v2, 5, v0")
        a("v_lshlrev_b32 v2, 11, v2")
        a("v_and_b32 v3, 31, v0")
        a("v_lshl_add_u32 v3, v3, 4, v2")
        a(f"s_lshl_b32 s{S_T3}, s{S_T2}, 9")
        a(f"v_add_u32 v3, s{S_T3}, v3")
        a(f"s_mov_b32 s{S_SPIN}, 0")
        a.label("L_c_poll")
        a(f"buffer_load_dwordx4 v[8:11], v3, {sr(SRD_WS,4)}, s{S_T0} offen sc1")
        a(f"buffer_load_dwordx4 v[12:15], v2, {sr(SRD_WS,4)}, s{S_T0} offen offset:1024 sc1")
        a("s_waitcnt vmcnt(0)")
        a("v_max3_u32 v6, v8, v9, v10")
        a("v_max3_u32 v6, v6, v11, v12")
        a("v_max3_u32 v6, v6, v13, v14")
        a("v_max_u32 v6, v6, v15")
        a("v_cmp_eq_u32 vcc, -1, v6")
        a("s_cbranch_vccz L_c_ok")
        self.spin("L_c_poll", 1, 0x40000)
        a.label("L_c_ok")
        self.stamp(7)
        a(f"s_cmp_eq_u32 s{S_T2}, 0")
        a("s_cselect_b64 vcc, -1, 0")
        a("v_cndmask_b32 v4, v14, v12, vcc")
        a("v_cndmask_b32 v5, v15, v13, vcc")
        a("v_mov_b32 v6, v4")
        a("v_permlane32_swap_b32 v4, v6")
        a("v_mov_b32 v7, v5")
        a("v_permlane32_swap_b32 v5, v7")
        a("v_max_f32 v16, v4, v6")
        a("v_sub_f32 v4, v4, v16")
        a("v_sub_f32 v6, v6, v16")
        a(f"v_mul_f32 v4, s{S_LOG2E}, v4")
        a(f"v_mul_f32 v6, s{S_LOG2E}, v6")
        a("v_exp_f32 v4, v4")
        a("v_exp_f32 v6, v6")
        a("v_mul_f32 v5, v4, v5")
        a("v_fmac_f32 v5, v6, v7")
        a("v_rcp_f32 v7, v5")
        a("v_cmp_gt_u32 vcc, 32, v0")
        a("v_cndmask_b32 v4, v6, v4, vcc")
        a("v_fma_f32 v6, -v5, v7, 1.0")
        a("v_fma_f32 v7, v6, v7, v7")
        a("v_mul_f32 v4, v4, v7")
        for r in range(4):
            a(f"v_mul_f32 v{8+r}, v{8+r}, v4")
        for r in range(4):
            a(f"v_mov_b32 v{12+r}, v{8+r}")
        for r in range(4):
            a(f"v_permlane32_swap_b32 v{8+r}, v{12+r}")
        for r in range(4):
            a(f"v_add_f32 v{8+r}, v{8+r}, v{12+r}")
        a("v_cvt_pk_bf16_f32 v8, v8, v9")
        a("v_cvt_pk_bf16_f32 v9, v10, v11")
        a(f"s_mul_i32 s{S_T0}, s{S_T1}, {O_STRIDE}")
        a(f"s_lshl_b32 s{S_T3}, s{S_T2}, 8")
        a(f"s_add_u32 s{S_T0}, s{S_T0}, s{S_T3}")
        a("v_lshlrev_b32 v3, 3, v0")
        a(f"v_add_u32 v3, s{S_T0}, v3")
        self.lane_mask_lt(32)
        a(f"ds_write_b64 v3, v[8:9] offset:{LDS_O}")
        self.restore_exec()
        a("s_waitcnt lgkmcnt(0)")
        a("s_barrier")
        self.stamp(8)
        a(f"s_cmp_ge_u32 s{S_WAVE}, 8")
        a("s_cbranch_scc1 L_end")
        self.proj(8, LDS_O, O_STRIDE, S_WAVE, "a", preloaded=True)
        a(f"s_mul_i32 s{S_T0}, s{S_HKV}, 5")
        a(f"s_add_u32 s{S_T0}, s{S_T0}, s{S_B}")
        a(f"s_lshl_b32 s{S_T0}, s{S_T0}, 12")
        a(f"s_lshl_b32 s{S_T1}, s{S_WAVE}, 9")
        a(f"s_add_u32 s{S_T0}, s{S_T0}, s{S_T1}")
        a(f"s_add_u32 s{S_T0}, s{S_T0}, {WS_P2}")
        self.publish4(32)
        a.label("L_end")
        if self.diag:
            a(f"s_cmp_lt_i32 s{S_R}, 0")
            a("s_cbranch_scc1 L_dg1")
            a(f"s_and_b32 s{S_T0}, s{S_R}, 31")
            a(f"s_cmp_lg_u32 s{S_T0}, 0")
            a("s_cbranch_scc1 L_dg1")
            a(f"s_memrealtime {sr(S_TS,2)}")
            a("s_waitcnt lgkmcnt(0)")
            a(f"v_mov_b32 v8, s{S_TS}")
            a("v_mov_b32 v9, 12")
            a("s_mov_b64 exec, 1")
            a(f"global_atomic_umax v9, v8, {sr(S_DBG,2)}")
            a("s_mov_b64 exec, -1")
            a.label("L_dg1")
        self.stamp(9)
        self.stamp_flush()
        a.label("L_exit")
        a("s_endpgm")

    def build(self):
        self.prologue()
        self.stream()
        self.aux()
        self.tail()
        body = self.a.finish()
        hdr = open("cdna_kernels/" + NAME + ".s.ref").read().split("; Override launch geometry")[0]
        out = hdr
        out += "; Override launch geometry by editing the next line (default: block=256,\n"
        out += f"; @launch grid=(256,1,1) block=(1024,1,1) lds={LDS_TOTAL}\n"
        out += '.amdgcn_target "amdgcn-amd-amdhsa--gfx950"\n.text\n'
        out += f".globl {NAME}_kernel\n.p2align 8\n.type {NAME}_kernel,@function\n{NAME}_kernel:\n"
        out += body
        out += '.section .rodata,"a"\n.p2align 6\n'
        out += f".amdhsa_kernel {NAME}_kernel\n"
        out += "  .amdhsa_next_free_vgpr 128\n  .amdhsa_next_free_sgpr 100\n  .amdhsa_accum_offset 128\n"
        out += "  .amdhsa_group_segment_fixed_size 0\n  .amdhsa_kernarg_size 96\n  .amdhsa_user_sgpr_count 2\n"
        out += "  .amdhsa_user_sgpr_kernarg_segment_ptr 1\n  .amdhsa_system_sgpr_workgroup_id_x 1\n.end_amdhsa_kernel\n"
        return out

if __name__ == "__main__":
    dbg = "--debug" in sys.argv
    outp = [x for x in sys.argv[1:] if not x.startswith("--")]
    kw = {}
    for x in sys.argv[1:]:
        if x.startswith("--") and "=" in x:
            k_, v_ = x[2:].split("="); kw[k_] = int(v_)
    g = Gen(debug=dbg, stamps="--stamps" in sys.argv, **kw)
    s = g.build()
    path = outp[0] if outp else "cdna_kernels/" + NAME + ".s"
    open(path, "w").write(s)
    print("wrote", path, "lines", s.count("\n"), "nops inserted", g.a.ninserted)
```

```python
import sys
from dsl import Asm, vr, sr

NAME = "parallel_sum__gqa_block_cached__swiglu_ffn__decode"
LOG2E = 0x3fb8aa3b
SCALE = 0x3db504f3

XN_STRIDE = 1184
LDS_XN = 0
LDS_XB = LDS_XN + 8 * XN_STRIDE
LDS_QPART = LDS_XB + 1152
LDS_Q = LDS_QPART + 12 * 512
LDS_SP = LDS_Q + 512
SP_STRIDE = 1040
LDS_O = LDS_SP + 8 * SP_STRIDE
O_STRIDE = 544
LDS_CNT = LDS_O + 8 * O_STRIDE
LDS_H = LDS_CNT + 64
H_STRIDE = 608
LDS_FP = LDS_H + 8 * H_STRIDE
LDS_W = LDS_FP
LDS_QFP = LDS_W + 9 * 8192
LDS_TQ = LDS_QFP + 6 * 4096
LDS_TOTAL = LDS_TQ + 512

REC_STRIDE = 2048
WS_REC = 0
WS_P2 = 256 * REC_STRIDE
WS_F2 = WS_P2 + 16 * 5 * 4096
WS_H = WS_F2 + 16 * 5 * 4096
WS_GEN = WS_H + 8 * 9216
WS_PC = WS_GEN + 4096
WS_QP = WS_PC + 8192
WS_DBG = 0x300000
WS_STAMP = WS_DBG + (512 << 10)
WS_SIZE = WS_DBG + (1 << 20)

S_WAVE = 3
S_X, S_K, S_V, S_WQ, S_WO, S_BX, S_WG, S_WU = 4, 6, 8, 10, 12, 14, 16, 18
S_WD, S_OUT, S_DBG, S_WS = 20, 22, 24, 26
S_HKV, S_B, S_SPLIT, S_J = 28, 29, 30, 31
SRD_K, SRD_V, SRD_W, SRD_WS = 32, 36, 40, 44
S_SEL_LO, S_SEL_HI = 48, 49
S_OFF, S_OFF2, S_CNT = 50, 51, 52
S_STRIDE, S_UOFF, S_NT, S_FIRST, S_T0 = 53, 54, 55, 56, 57
S_HW, S_ROLE, S_RIDX, S_T1, S_T2, S_T3 = 58, 59, 60, 61, 62, 63
S_LOG2E, S_SCALE, S_MASKHI, S_SENTM1 = 64, 65, 66, 67
S_EX = 68
SRD_W2 = 72
SRD_X = 76
S_SPIN = 80
S_R = 81
S_CB = 82
S_NXT = 83
S_TA, S_TB = 70, 71
S_TS = 84
S_ST0 = 86
ROLE_NONE, ROLE_A, ROLE_B, ROLE_C = 0, 1, 2, 3

class Gen:
    def __init__(self, debug=False, stamps=False, NS=8, KT=32, LA=1, comp=1, map4=1, earlyV=1, earlyK=1, qsleep=8, kvtouch=1, pace=4, kpol=1, vpol=1, noq=0, nowt=0, hsleep=1, only=0, stop=0, qfix=0, qsc=1, qst=1, dC=6, dA=4, dB=4, pj0=10, emask=0xff, vearly=3, ofl=0, warm=0, nors=0, rearly=0, diag=0, pool=64, pD=6, pB=2, chk=1, wrot=0):
        self.wrot = wrot
        self.chk = chk
        self.pool = pool; self.pD = pD; self.pB = pB
        self.diag = diag
        self.rearly = rearly
        self.nors = nors
        self.ofl = {0: '', 1: 'sc1', 2: 'sc0 sc1', 3: 'nt'}[ofl]; self.warm = warm
        self.vearly = vearly
        self.emask = emask
        assert NS <= 6
        self.dC = dC; self.dA = dA; self.dB = dB; self.pj0 = pj0
        self.qst = qst
        self.qfix = qfix; self.qfl = 'sc1' if qsc else ''
        self.stop = stop
        self.only = only
        self.hsleep = hsleep
        self.nowt = nowt
        self.noq = noq
        POL = {0: '', 1: 'nt', 2: 'sc1', 3: 'sc0 sc1', 4: 'sc1 nt', 5: 'sc0'}
        self.kfl = POL[kpol]; self.vfl = POL[vpol]
        self.pace = pace
        self.kvtouch = kvtouch
        self.earlyK = earlyK
        self.qsleep = qsleep
        self.earlyV = earlyV
        self.map4 = map4
        self.a = Asm()
        self.debug = debug; self.stamps = stamps
        self.NS = NS; self.KT = KT; self.LA = LA; self.comp = comp

    def srd(self, dst, base, size, off_sgpr=None):
        a = self.a
        if off_sgpr is not None:
            a(f"s_add_u32 s{dst}, s{base}, s{off_sgpr}")
            a(f"s_addc_u32 s{dst+1}, s{base+1}, 0")
        else:
            a(f"s_mov_b32 s{dst}, s{base}")
            a(f"s_mov_b32 s{dst+1}, s{base+1}")
        a(f"s_mov_b32 s{dst+2}, {size}")
        a(f"s_mov_b32 s{dst+3}, 0x20000")

    def stamp(self, k):
        if not self.stamps: return
        a = self.a
        a(f"s_memrealtime {sr(S_TS,2)}")
        a("s_waitcnt lgkmcnt(0)")
        a(f"s_mov_b32 s{S_ST0+k}, s{S_TS}")

    def stamp_flush(self):
        if not self.stamps: return
        a = self.a
        a("s_mov_b64 exec, -1")
        a("v_mbcnt_lo_u32_b32 v0, -1, 0")
        a("v_mbcnt_hi_u32_b32 v0, -1, v0")
        a("v_mov_b32 v1, 0")
        for k in range(12):
            a(f"v_writelane_b32 v1, s{S_ST0+k}, {k}")
        a(f"s_lshl_b32 s{S_T0}, s2, 4")
        a(f"s_add_u32 s{S_T0}, s{S_T0}, s{S_WAVE}")
        a(f"s_lshl_b32 s{S_T0}, s{S_T0}, 6")
        a(f"s_add_u32 s{S_T0}, s{S_T0}, {WS_STAMP}")
        a("v_lshlrev_b32 v2, 2, v0")
        a("v_cmp_gt_u32 vcc, 16, v0")
        a(f"s_and_saveexec_b64 {sr(S_EX,2)}, vcc")
        a(f"buffer_store_dword v1, v2, {sr(SRD_WS,4)}, s{S_T0} offen")

    def wave_sum(self, x, t):
        a = self.a
        for pat in ("quad_perm:[1,0,3,2]", "quad_perm:[2,3,0,1]", "row_half_mirror", "row_mirror"):
            a(f"v_add_f32_dpp v{x}, v{x}, v{x} {pat} row_mask:0xf bank_mask:0xf")
        a(f"v_mov_b32 v{t}, v{x}")
        a(f"v_permlane16_swap_b32 v{x}, v{t}")
        a(f"v_add_f32 v{x}, v{x}, v{t}")
        a(f"v_mov_b32 v{t}, v{x}")
        a(f"v_permlane32_swap_b32 v{x}, v{t}")
        a(f"v_add_f32 v{x}, v{x}, v{t}")

    def rne(self, x):
        a = self.a
        a(f"v_cvt_pk_bf16_f32 v{x}, v{x}, v{x}")
        a(f"v_and_b32 v{x}, 0xffff0000, v{x}")

    def lane_mask_lt(self, n, lane="v0"):
        a = self.a
        a(f"v_cmp_gt_u32 vcc, {n}, {lane}")
        a(f"s_and_saveexec_b64 {sr(S_EX,2)}, vcc")
    def restore_exec(self):
        self.a(f"s_mov_b64 exec, {sr(S_EX,2)}")

    def spin(self, lab, sleep, bound):
        a = self.a
        a(f"s_sleep {sleep}")
        a(f"s_add_u32 s{S_SPIN}, s{S_SPIN}, 1")
        a(f"s_cmp_lt_u32 s{S_SPIN}, {bound}")
        a(f"s_cbranch_scc1 {lab}")

    def layernorm(self, R, X, T, vL, lds_imm, s_row=None):
        a = self.a
        t0, t1, t2, t3, t4, t5 = range(T, T + 6)
        for k in range(5):
            a(f"v_lshlrev_b32 v{X+2*k}, 16, v{R+k}")
            a(f"v_and_b32 v{X+2*k+1}, s{S_MASKHI}, v{R+k}")
        a(f"v_add_f32 v{t0}, v{X}, v{X+1}")
        for k in range(2, 10):
            a(f"v_add_f32 v{t0}, v{t0}, v{X+k}")
        self.wave_sum(t0, t1)
        a(f"s_mov_b32 s{S_T1}, 0x44100000")
        a(f"s_mov_b32 s{S_T2}, 0x3ae38e39")
        a(f"v_mul_f32 v{t1}, s{S_T2}, v{t0}")
        a(f"v_fma_f32 v{t2}, -v{t1}, s{S_T1}, v{t0}")
        a(f"v_fma_f32 v{t1}, v{t2}, s{S_T2}, v{t1}")
        a(f"v_cmp_gt_u32 vcc, 32, v{vL}")
        a(f"v_sub_f32 v{t2}, v{X+8}, v{t1}")
        a(f"v_mul_f32 v{t3}, v{t2}, v{t2}")
        a(f"v_sub_f32 v{t2}, v{X+9}, v{t1}")
        a(f"v_fmac_f32 v{t3}, v{t2}, v{t2}")
        a(f"v_cndmask_b32 v{t3}, 0, v{t3}, vcc")
        for k in range(8):
            a(f"v_sub_f32 v{t2}, v{X+k}, v{t1}")
            a(f"v_fmac_f32 v{t3}, v{t2}, v{t2}")
        self.wave_sum(t3, t2)
        a(f"v_mul_f32 v{t2}, s{S_T2}, v{t3}")
        a(f"v_fma_f32 v{t0}, -v{t2}, s{S_T1}, v{t3}")
        a(f"v_fma_f32 v{t2}, v{t0}, s{S_T2}, v{t2}")
        self.rne(t1); self.rne(t2)
        a(f"v_add_f32 v{t2}, 0x3727c5ac, v{t2}")
        self.rne(t2)
        a(f"v_sqrt_f32 v{t3}, v{t2}")
        a(f"v_rcp_f32 v{t0}, v{t3}")
        a(f"v_fma_f32 v{t4}, -v{t3}, v{t3}, v{t2}")
        a(f"v_mul_f32 v{t0}, 0.5, v{t0}")
        a(f"v_fma_f32 v{t3}, v{t4}, v{t0}, v{t3}")
        self.rne(t3)
        a(f"v_rcp_f32 v{t0}, v{t3}")
        for k in range(10):
            a(f"v_sub_f32 v{X+k}, v{X+k}, v{t1}")
        for k in range(5):
            a(f"v_cvt_pk_bf16_f32 v{R+k}, v{X+2*k}, v{X+2*k+1}")
        for k in range(5):
            a(f"v_lshlrev_b32 v{X+2*k}, 16, v{R+k}")
            a(f"v_and_b32 v{X+2*k+1}, s{S_MASKHI}, v{R+k}")
        for k in range(10):
            a(f"v_mul_f32 v{t4}, v{X+k}, v{t0}")
            a(f"v_fma_f32 v{t5}, -v{t4}, v{t3}, v{X+k}")
            a(f"v_fma_f32 v{X+k}, v{t5}, v{t0}, v{t4}")
        for k in range(5):
            a(f"v_cvt_pk_bf16_f32 v{R+k}, v{X+2*k}, v{X+2*k+1}")
        a(f"v_lshlrev_b32 v{t4}, 4, v{vL}")
        a(f"v_lshlrev_b32 v{t5}, 2, v{vL}")
        if s_row is not None:
            a(f"v_add_u32 v{t4}, s{s_row}, v{t4}")
            a(f"v_add_u32 v{t5}, s{s_row}, v{t5}")
        a(f"ds_write_b128 v{t4}, {vr(R,4)} offset:{lds_imm}")
        a(f"s_and_saveexec_b64 {sr(S_EX,2)}, vcc")
        a(f"ds_write_b32 v{t5}, v{R+4} offset:{lds_imm+1024}")
        self.restore_exec()

    def xload(self, R, vL, tmp, s_rowbytes):
        a = self.a
        self.srd(SRD_X, S_X, 1152, off_sgpr=s_rowbytes)
        a(f"v_lshlrev_b32 v{tmp}, 4, v{vL}")
        a(f"buffer_load_dwordx4 {vr(R,4)}, v{tmp}, {sr(SRD_X,4)}, 0 offen")
        a(f"v_lshlrev_b32 v{tmp}, 2, v{vL}")
        a(f"buffer_load_dword v{R+4}, v{tmp}, {sr(SRD_X,4)}, 0 offen offset:1024")

    def prologue(self):
        a = self.a
        a("s_cmp_ge_u32 s2, 256")
        a("s_cbranch_scc1 L_exit")
        a("s_load_dwordx16 s[4:19], s[0:1], 0")
        a("s_load_dwordx8 s[20:27], s[0:1], 64")
        a("v_lshrrev_b32 v1, 6, v0")
        a("v_and_b32 v0, 63, v0")
        a(f"v_readfirstlane_b32 s{S_WAVE}, v1")
        if self.wrot:
            a(f"s_add_u32 s{S_WAVE}, s{S_WAVE}, {self.wrot}")
            a(f"s_and_b32 s{S_WAVE}, s{S_WAVE}, 15")
        for k in range(2, 8): a(f"v_mov_b32 v{k}, 0")
        if self.map4 in (6, 7):
            a(f"s_bfe_u32 s{S_SPLIT}, s2, 0x10001")
            a(f"s_xor_b32 s{S_T1}, s2, s{S_SPLIT}")
            a(f"s_and_b32 s{S_T1}, s{S_T1}, 1")
            a(f"s_bfe_u32 s{S_HKV}, s2, 0x10002")
            a(f"s_lshl_b32 s{S_HKV}, s{S_HKV}, 1")
            a(f"s_add_u32 s{S_HKV}, s{S_HKV}, s{S_T1}")
            a(f"s_lshl_b32 s{S_HKV}, s{S_HKV}, 2")
            a(f"s_bfe_u32 s{S_T1}, s2, 0x20003")
            a(f"s_add_u32 s{S_HKV}, s{S_HKV}, s{S_T1}")
            a(f"s_lshr_b32 s{S_B}, s2, 5")
            if self.map4 == 7:
                a(f"s_mul_i32 s{S_T1}, s{S_SPLIT}, 7")
                a(f"s_xor_b32 s{S_B}, s{S_B}, s{S_T1}")
                a(f"s_mul_i32 s{S_T1}, s{S_SPLIT}, 3")
                a(f"s_xor_b32 s{S_HKV}, s{S_HKV}, s{S_T1}")
        elif self.map4 == 5:
            a(f"s_bfe_u32 s{S_HKV}, s2, 0x20001")
            a(f"s_lshl_b32 s{S_HKV}, s{S_HKV}, 2")
            a(f"s_bfe_u32 s{S_T1}, s2, 0x20003")
            a(f"s_add_u32 s{S_HKV}, s{S_HKV}, s{S_T1}")
            a(f"s_lshr_b32 s{S_B}, s2, 5")
            a(f"s_and_b32 s{S_SPLIT}, s2, 1")
        elif self.map4:
            a(f"s_and_b32 s{S_HKV}, s2, 3")
            a(f"s_lshl_b32 s{S_HKV}, s{S_HKV}, 2")
            a(f"s_bfe_u32 s{S_T1}, s2, 0x20003")
            a(f"s_add_u32 s{S_HKV}, s{S_HKV}, s{S_T1}")
            a(f"s_lshr_b32 s{S_B}, s2, 5")
            a(f"s_bfe_u32 s{S_SPLIT}, s2, 0x10002")
        else:
            a(f"s_and_b32 s{S_HKV}, s2, 7")
            a(f"s_lshr_b32 s{S_T0}, s2, 3")
            a(f"s_and_b32 s{S_T1}, s{S_T0}, 1")
            a(f"s_lshl_b32 s{S_HKV}, s{S_HKV}, 1")
            a(f"s_add_u32 s{S_HKV}, s{S_HKV}, s{S_T1}")
            a(f"s_lshr_b32 s{S_T0}, s{S_T0}, 1")
            a(f"s_and_b32 s{S_B}, s{S_T0}, 7")
            a(f"s_lshr_b32 s{S_SPLIT}, s{S_T0}, 3")
        a(f"s_lshl_b32 s{S_J}, s{S_B}, 1")
        a(f"s_add_u32 s{S_J}, s{S_J}, s{S_SPLIT}")
        a(f"s_mov_b32 s{S_SEL_LO}, 0x05040100")
        a(f"s_mov_b32 s{S_SEL_HI}, 0x07060302")
        a(f"s_mov_b32 s{S_LOG2E}, {LOG2E:#x}")
        a(f"s_mov_b32 s{S_SCALE}, {SCALE:#x}")
        a(f"s_mov_b32 s{S_MASKHI}, 0xffff0000")
        a(f"s_mov_b32 s{S_SENTM1}, 0xfffffffe")
        a(f"s_mov_b32 s{S_R}, -1")
        if self.stamps:
            for k in range(12): a(f"s_mov_b32 s{S_ST0+k}, 0")
        a("s_waitcnt lgkmcnt(0)")
        self.srd(SRD_WS, S_WS, WS_SIZE)
        a(f"s_add_u32 s{S_T0}, s{S_WS}, {WS_GEN}")
        a(f"s_addc_u32 s{S_T1}, s{S_WS+1}, 0")
        a(f"s_mov_b32 s{S_T2}, s{S_T0}")
        a(f"s_mov_b32 s{S_T3}, s{S_T1}")
        a(f"s_load_dword s{S_TA}, {sr(S_T2,2)}, 0")
        self.stamp(0)
        if self.diag:
            a(f"s_cmp_lg_u32 s{S_WAVE}, 0")
            a("s_cbranch_scc1 L_dg0")
            a(f"s_and_b32 s{S_T0}, s2, 31")
            a(f"s_cmp_lg_u32 s{S_T0}, 0")
            a("s_cbranch_scc1 L_dg0")
            a(f"s_memrealtime {sr(S_TS,2)}")
            a("s_waitcnt lgkmcnt(0)")
            a(f"s_not_b32 s{S_TS}, s{S_TS}")
            a(f"v_mov_b32 v8, s{S_TS}")
            a("v_mov_b32 v9, 8")
            a("s_mov_b64 exec, 1")
            a(f"global_atomic_umax v9, v8, {sr(S_DBG,2)}")
            a("s_mov_b64 exec, -1")
            a.label("L_dg0")
        a(f"s_cmp_ge_u32 s{S_WAVE}, 8")
        a("s_cbranch_scc1 L_aux")

    def touch(self, base, size, n, dst):
        a = self.a
        self.srd(SRD_W, base, size)
        a("v_lshlrev_b32 v4, 20, v0")
        self.lane_mask_lt(n)
        a(f"buffer_load_dword v{dst}, v4, {sr(SRD_W,4)}, 0 offen")
        self.restore_exec()

    def stream_setup(self):
        a = self.a
        KT = self.KT; TB = KT * 256; NTP = 8192 // KT
        self.NTP = NTP
        POOL = self.pool * (32 // KT) // 2
        self.POOLT = POOL
        ST = (NTP - POOL) // 2
        self.ST = ST
        a(f"s_cmp_eq_u32 s{S_SPLIT}, 0")
        a(f"s_cselect_b32 s{S_UOFF}, 0, {ST + POOL}")
        a(f"s_lshl_b32 s{S_T0}, s{S_B}, 4")
        a(f"s_add_u32 s{S_T0}, s{S_T0}, s{S_HKV}")
        a(f"s_lshl_b32 s{S_T0}, s{S_T0}, 21")
        self.srd(SRD_K, S_K, 0x200000, off_sgpr=S_T0)
        self.srd(SRD_V, S_V, 0x200000, off_sgpr=S_T0)
        a("v_and_b32 v4, 15, v0")
        a("v_lshrrev_b32 v5, 4, v0")
        a("v_lshlrev_b32 v6, 10, v5")
        a("v_lshl_add_u32 v1, v4, 4, v6")
        a("v_lshlrev_b32 v6, 4, v5")
        a("v_and_b32 v7, 1, v0")
        a("v_lshl_add_u32 v7, v7, 8, v6")
        a("v_lshl_add_u32 v0, v4, 8, v6")

    def issueK(self, o1=S_OFF, o2=S_OFF2):
        for u in range(self.KT // 16):
            for s_ in range(4):
                r = 64 + (u * 4 + s_) * 4
                self.a(f"buffer_load_dwordx4 {vr(r,4)}, v0, {sr(SRD_K,4)}, s{o1 if u == 0 else o2} offen offset:{s_*64} {self.kfl}")
    def issueV(self, o1=S_OFF, o2=S_OFF2):
        for u in range(self.KT // 16):
            for r_ in range(4):
                r = 96 + (u * 4 + r_) * 4
                self.a(f"buffer_load_dwordx4 {vr(r,4)}, v1, {sr(SRD_V,4)}, s{o1 if u == 0 else o2} offen offset:{r_*256} {self.vfl}")

    def stream(self):
        a = self.a
        NS, KT, LA = self.NS, self.KT, self.LA
        NU = KT // 16; NL = 4 * NU; TB = KT * 256
        VK, VV, M, L, P, S, Q, O, KB, VB = 0, 1, 2, 3, 4, 8, 16, 32, 64, 96
        a(f"s_cmp_ge_u32 s{S_WAVE}, {NS}")
        a("s_cbranch_scc1 L_idle")
        tl = {1: [(S_WS, WS_SIZE, 4), (S_WO, 4096*1152, 5), (S_OUT, 8*1152, 1)],
              2: [(S_WG, 576*9216, 6), (S_WU, 576*9216, 6), (S_DBG, 256, 1)],
              3: [(S_WD, 4608*1152, 6)]}
        for w in (1, 2, 3):
            lab = f"L_s_t{w}"
            a(f"s_cmp_lg_u32 s{S_WAVE}, {w}")
            a(f"s_cbranch_scc1 {lab}")
            for k, t in enumerate(tl[w]):
                self.touch(*t, 8 + k)
            a.label(lab)
        self.stream_setup()
        if self.kvtouch:
            a(f"s_cmp_lg_u32 s{S_WAVE}, 0")
            a("s_cbranch_scc1 L_s_nkt")
            a("v_mbcnt_lo_u32_b32 v12, -1, 0")
            a("v_mbcnt_hi_u32_b32 v12, -1, v12")
            a("v_lshlrev_b32 v12, 18, v12")
            a("s_mov_b64 exec, 0xff")
            a(f"buffer_load_dword v13, v12, {sr(SRD_K,4)}, 0 offen nt")
            a(f"buffer_load_dword v14, v12, {sr(SRD_V,4)}, 0 offen nt")
            a("s_mov_b64 exec, -1")
            a.label("L_s_nkt")
        a(f"s_add_u32 s{S_CNT}, s{S_UOFF}, s{S_WAVE}")
        a(f"s_mul_i32 s{S_OFF}, s{S_CNT}, {TB}")
        a(f"s_add_u32 s{S_OFF2}, s{S_OFF}, 4096")
        seq = []
        for u in range(NU):
            for s_ in range(4):
                seq.append(f"buffer_load_dwordx4 {vr(KB+(u*4+s_)*4,4)}, v0, {sr(SRD_K,4)}, s{S_OFF if u == 0 else S_OFF2} offen offset:{s_*64} {self.kfl}")
        for u in range(NU):
            for r_ in range(4):
                seq.append(f"buffer_load_dwordx4 {vr(VB+(u*4+r_)*4,4)}, v1, {sr(SRD_V,4)}, s{S_OFF if u == 0 else S_OFF2} offen offset:{r_*256} {self.vfl}")
        PS = self.pace
        for k0 in range(0, len(seq), PS):
            if k0 > 0: a("s_waitcnt vmcnt(0)")
            for ins in seq[k0:k0+PS]: a(ins)
            if k0 == 0:
                a("s_barrier")
                for k in range(32):
                    a(f"v_mov_b32 v{O+k}, 0")
                a(f"v_mov_b32 v{M}, 0xff800000")
                a(f"v_mov_b32 v{L}, 0")
        self.stamp(4)
        if self.only or self.noq: a("s_branch L_s_qok")
        a(f"v_mov_b32 v{P}, {LDS_CNT + 20}")
        a(f"s_mov_b32 s{S_SPIN}, 0")
        a.label("L_s_qw")
        a(f"ds_read_b32 v{P+1}, v{P}")
        a("s_waitcnt lgkmcnt(0)")
        a(f"v_readfirstlane_b32 s{S_T0}, v{P+1}")
        a(f"s_cmp_ge_u32 s{S_T0}, 2")
        a("s_cbranch_scc1 L_s_qok")
        self.spin("L_s_qw", 2, 0x100000)
        a.label("L_s_qok")
        self.stamp(1)
        for s_ in range(4):
            a(f"ds_read_b128 {vr(Q+4*s_,4)}, v7 offset:{LDS_Q + s_*64}")
        a(f"s_mov_b32 s{S_FIRST}, 0")
        a(f"s_mov_b32 s{S_STRIDE}, 0")
        a(f"v_mov_b32 v{P}, {LDS_CNT + 32}")
        a(f"v_mov_b32 v{P+1}, 1")
        a("s_mov_b64 exec, 1")
        a(f"ds_add_rtn_u32 v{P+2}, v{P}, v{P+1}")
        a("s_mov_b64 exec, -1")
        a("s_waitcnt lgkmcnt(0)")
        a(f"v_readfirstlane_b32 s{S_NXT}, v{P+2}")
        a(f"s_add_u32 s{S_NXT}, s{S_NXT}, s{S_UOFF}")
        a.label("L_sloop")
        a(f"s_mul_i32 s{S_OFF}, s{S_NXT}, {TB}")
        a(f"s_add_u32 s{S_OFF2}, s{S_OFF}, 4096")
        if LA == 2:
            a(f"s_waitcnt vmcnt({NL})")
        else:
            a("s_waitcnt vmcnt(0)")
            a(f"s_cmp_eq_u32 s{S_FIRST}, 0")
            a(f"s_mov_b32 s{S_FIRST}, 1")
            a("s_cbranch_scc1 L_skipV")
            a(f"s_mul_i32 s{S_T2}, s{S_CNT}, {TB}")
            a(f"s_add_u32 s{S_T3}, s{S_T2}, 4096")
            self.issueV(S_T2, S_T3)
            a.label("L_skipV")
        for s_ in range(4):
            for u in range(NU):
                c = "0" if s_ == 0 else vr(S + 4 * u, 4)
                a(f"v_mfma_f32_16x16x32_bf16 {vr(S+4*u,4)}, {vr(KB+(u*4+s_)*4,4)}, {vr(Q+4*s_,4)}, {c}")
        if LA == 2:
            self.issueK()
        NP = 2 * NU; NSV = 4 * NU
        for p in range(NP):
            a(f"v_cvt_pk_bf16_f32 v{P+p}, v{S+2*p}, v{S+2*p+1}")
        for p in range(NP):
            a(f"v_lshlrev_b32 v{S+2*p}, 16, v{P+p}")
            a(f"v_and_b32 v{S+2*p+1}, s{S_MASKHI}, v{P+p}")
        for k in range(NSV):
            a(f"v_mul_f32 v{S+k}, s{S_SCALE}, v{S+k}")
        for p in range(NP):
            a(f"v_cvt_pk_bf16_f32 v{P+p}, v{S+2*p}, v{S+2*p+1}")
        for p in range(NP):
            a(f"v_lshlrev_b32 v{S+2*p}, 16, v{P+p}")
            a(f"v_and_b32 v{S+2*p+1}, s{S_MASKHI}, v{P+p}")
        if NU == 2:
            a(f"v_max3_f32 v{P}, v{S}, v{S+1}, v{S+2}")
            a(f"v_max3_f32 v{P+1}, v{S+3}, v{S+4}, v{S+5}")
            a(f"v_max3_f32 v{P}, v{P}, v{S+6}, v{S+7}")
            a(f"v_max_f32 v{P}, v{P}, v{P+1}")
        else:
            a(f"v_max3_f32 v{P}, v{S}, v{S+1}, v{S+2}")
            a(f"v_max_f32 v{P}, v{P}, v{S+3}")
        a(f"v_cmp_gt_f32 vcc, v{P}, v{M}")
        a("s_cbranch_vccz L_nores")
        a(f"v_mov_b32 v{P+1}, v{P}")
        a(f"v_permlane16_swap_b32 v{P}, v{P+1}")
        a(f"v_max_f32 v{P}, v{P}, v{P+1}")
        a(f"v_mov_b32 v{P+1}, v{P}")
        a(f"v_permlane32_swap_b32 v{P}, v{P+1}")
        a(f"v_max3_f32 v{P}, v{P}, v{P+1}, v{M}")
        a(f"v_sub_f32 v{P+2}, v{M}, v{P}")
        a(f"v_mul_f32 v{P+2}, s{S_LOG2E}, v{P+2}")
        a(f"v_exp_f32 v{P+2}, v{P+2}")
        a(f"v_mov_b32 v{M}, v{P}")
        a(f"v_mov_b32 v{P+3}, v{P+2}")
        a(f"v_mul_f32 v{L}, v{L}, v{P+2}")
        for k in range(16):
            a(f"v_pk_mul_f32 {vr(O+2*k,2)}, {vr(O+2*k,2)}, {vr(P+2,2)}")
        a.label("L_nores")
        a(f"v_mul_f32 v{P}, s{S_LOG2E}, v{M}")
        for k in range(NSV):
            a(f"v_fma_f32 v{S+k}, v{S+k}, s{S_LOG2E}, -v{P}")
        for k in range(NSV):
            a(f"v_exp_f32 v{S+k}, v{S+k}")
        if NU == 2:
            a(f"v_add_f32 v{P+1}, v{S}, v{S+1}")
            a(f"v_add_f32 v{P+2}, v{S+2}, v{S+3}")
            a(f"v_add_f32 v{P+3}, v{S+4}, v{S+5}")
            a(f"v_add_f32 v{P}, v{S+6}, v{S+7}")
            a(f"v_add_f32 v{P+1}, v{P+1}, v{P+2}")
            a(f"v_add_f32 v{P+3}, v{P+3}, v{P}")
            a(f"v_add_f32 v{L}, v{L}, v{P+1}")
            a(f"v_add_f32 v{L}, v{L}, v{P+3}")
        else:
            a(f"v_add_f32 v{P+1}, v{S}, v{S+1}")
            a(f"v_add_f32 v{P+2}, v{S+2}, v{S+3}")
            a(f"v_add_f32 v{L}, v{L}, v{P+1}")
            a(f"v_add_f32 v{L}, v{L}, v{P+2}")
        for p in range(NP):
            a(f"v_cvt_pk_bf16_f32 v{P+p}, v{S+2*p}, v{S+2*p+1}")
        if LA == 2:
            a(f"s_waitcnt vmcnt({NL})")
        else:
            a("s_waitcnt vmcnt(0)")
            self.issueK()
        npp = 4 if NU == 2 else 2
        def perms(c, e):
            for p in range(npp):
                a(f"v_perm_b32 v{S+4*e+p}, v{VB+(2*p+1)*4+c}, v{VB+(2*p)*4+c}, s{S_SEL_LO if e == 0 else S_SEL_HI}")
        def pv(c, e):
            j = 2 * c + e
            if NU == 2:
                a(f"v_mfma_f32_16x16x32_bf16 {vr(O+4*j,4)}, {vr(S+4*e,4)}, {vr(P,4)}, {vr(O+4*j,4)}")
            else:
                a(f"v_mfma_f32_16x16x16_bf16 {vr(O+4*j,4)}, {vr(S+4*e,2)}, {vr(P,2)}, {vr(O+4*j,4)}")
        perms(0, 0); perms(0, 1)
        for c in range(4):
            pv(c, 0)
            if c < 3: perms(c + 1, 0)
            pv(c, 1)
            if c < 3: perms(c + 1, 1)
        a(f"v_mov_b32 v{S}, {LDS_CNT + 32}")
        a(f"v_mov_b32 v{S+1}, 1")
        a("s_mov_b64 exec, 1")
        a(f"ds_add_rtn_u32 v{S+2}, v{S}, v{S+1}")
        a("s_mov_b64 exec, -1")
        if LA == 2:
            self.issueV()
        a(f"s_mov_b32 s{S_CNT}, s{S_NXT}")
        a("s_waitcnt lgkmcnt(0)")
        a(f"v_readfirstlane_b32 s{S_NXT}, v{S+2}")
        a(f"s_cmp_lt_u32 s{S_NXT}, {self.ST}")
        a("s_cbranch_scc0 L_s_pool")
        a(f"s_add_u32 s{S_NXT}, s{S_NXT}, s{S_UOFF}")
        a.label("L_s_tile")
        if self.stamps:
            a(f"s_add_u32 s{S_STRIDE}, s{S_STRIDE}, 1")
            for slot, it in ((8, 64), (10, 128), (11, 192)):
                lab = a.newlabel("L_its")
                a(f"s_cmp_lg_u32 s{S_NXT}, {it}")
                a(f"s_cbranch_scc1 {lab}")
                self.stamp(slot)
                a.label(lab)
        a(f"s_cmp_lt_u32 s{S_CNT}, {self.NTP}")
        a("s_cbranch_scc1 L_sloop")
        a("s_branch L_s_done")
        a.label("L_s_pool")
        a(f"s_sub_u32 s{S_NXT}, s{S_NXT}, {self.ST}")
        a(f"s_cmp_lt_u32 s{S_NXT}, 128")
        a("s_cbranch_scc1 L_s_pq")
        a(f"s_mov_b32 s{S_NXT}, {4*self.NTP}")
        a("s_branch L_s_tile")
        a.label("L_s_pq")
        a(f"s_lshl_b32 s{S_T0}, s{S_NXT}, 2")
        a(f"s_add_u32 s{S_T0}, s{S_T0}, {LDS_TQ}")
        a(f"v_mov_b32 v{S}, s{S_T0}")
        a(f"s_mov_b32 s{S_SPIN}, 0")
        a.label("L_s_pqw")
        a(f"ds_read_b32 v{S+1}, v{S}")
        a("s_waitcnt lgkmcnt(0)")
        a(f"v_readfirstlane_b32 s{S_NXT}, v{S+1}")
        a(f"s_cmp_lg_u32 s{S_NXT}, -1")
        a("s_cbranch_scc1 L_s_tile")
        self.spin("L_s_pqw", 1, 0x100000)
        a(f"s_mov_b32 s{S_NXT}, {4*self.NTP}")
        a("s_branch L_s_tile")
        a.label("L_s_done")
        self.stamp(2)
        if self.only or self.stop in (1, 2, 11, 12, 13): a("s_branch L_exit")
        a(f"v_mov_b32 v{P}, v{L}")
        a(f"v_permlane16_swap_b32 v{L}, v{P}")
        a(f"v_add_f32 v{L}, v{L}, v{P}")
        a(f"v_mov_b32 v{P}, v{L}")
        a(f"v_permlane32_swap_b32 v{L}, v{P}")
        a(f"v_add_f32 v{L}, v{L}, v{P}")
        a("v_mbcnt_lo_u32_b32 v8, -1, 0")
        a("v_mbcnt_hi_u32_b32 v8, -1, v8")
        a("v_and_b32 v9, 15, v8")
        a("v_lshrrev_b32 v10, 4, v8")
        a(f"s_mul_i32 s{S_T0}, s{S_WAVE}, {SP_STRIDE}")
        a(f"s_add_u32 s{S_T0}, s{S_T0}, {LDS_SP}")
        a("v_lshlrev_b32 v11, 9, v9")
        a("v_lshl_add_u32 v11, v10, 4, v11")
        a(f"v_add_u32 v11, s{S_T0}, v11")
        a("v_cmp_gt_u32 vcc, 2, v9")
        a(f"s_and_saveexec_b64 {sr(S_EX,2)}, vcc")
        for j in range(8):
            a(f"ds_write_b128 v11, {vr(O+4*j,4)} offset:{j*64}")
        a("v_cmp_gt_u32 vcc, 2, v8")
        a("s_and_b64 exec, exec, vcc")
        a("v_lshlrev_b32 v12, 3, v9")
        a(f"v_add_u32 v12, s{S_T0}, v12")
        a(f"ds_write_b64 v12, {vr(M,2)} offset:1024")
        self.restore_exec()
        a("s_waitcnt vmcnt(0) lgkmcnt(0)")
        a("s_branch L_B4")
        a.label("L_idle")
        if self.only:
            a("s_barrier")
            a("s_branch L_exit")
        if self.rearly:
            a(f"s_cmp_lg_u32 s{S_WAVE}, 4")
            a("s_cbranch_scc1 L_id_nr")
            self.role_decode("i")
            self.resets("i")
            a("s_barrier")
            self.reset_signal()
            a("s_branch L_id_r")
            a.label("L_id_nr")
        a("s_barrier")
        if self.rearly: a.label("L_id_r")
        if self.stop in (1, 2, 11, 12, 13): a("s_branch L_exit")
        a(f"s_cmp_lg_u32 s{S_WAVE}, 5")
        a("s_cbranch_scc1 L_nofeed")
        self.feeder()
        a("s_branch L_B4")
        a.label("L_nofeed")
        if self.chk:
            a(f"s_cmp_lg_u32 s{S_WAVE}, 4")
            a("s_cbranch_scc1 L_nochk")
            self.wait_tiles(40 * (32 // self.KT))
            self.poll_counter_g(256)
            a(f"v_mov_b32 v3, {LDS_CNT + 28}")
            a("v_mov_b32 v4, 1")
            a("s_mov_b64 exec, 1")
            a("ds_write_b32 v3, v4")
            a("s_mov_b64 exec, -1")
            a("s_waitcnt lgkmcnt(0)")
            a.label("L_nochk")
        if self.warm:
            a(f"s_cmp_lg_u32 s{S_WAVE}, 4")
            a("s_cbranch_scc1 L_nowarm")
            a("v_mbcnt_lo_u32_b32 v0, -1, 0")
            a("v_mbcnt_hi_u32_b32 v0, -1, v0")
            self.wait_tiles(105 * (32 // self.KT))
            a(f"s_getpc_b64 {sr(S_T2,2)}")
            a.label("L_pc0")
            a(f"s_add_u32 s{S_T2}, s{S_T2}, L_B4-L_pc0")
            a(f"s_addc_u32 s{S_T3}, s{S_T3}, 0")
            a("v_lshlrev_b32 v3, 6, v0")
            a(f"global_load_dword v4, v3, {sr(S_T2,2)}")
            a("s_waitcnt vmcnt(0)")
            a.label("L_nowarm")
        a(f"s_cmp_lt_u32 s{S_WAVE}, 6")
        a("s_cbranch_scc1 L_B4")
        a(f"s_cmp_lt_u32 s{S_J}, 10")
        a("s_cbranch_scc0 L_rw_hi")
        a(f"s_cmp_eq_u32 s{S_SPLIT}, 0")
        a("s_cbranch_scc0 L_B4")
        a(f"s_mov_b32 s{S_T0}, s{S_B}")
        a("s_branch L_rw_go")
        a.label("L_rw_hi")
        a(f"s_sub_u32 s{S_T0}, s{S_J}, 5")
        a.label("L_rw_go")
        a(f"s_cmp_lt_u32 s{S_T0}, 9")
        a("s_cbranch_scc0 L_B4")
        a(f"s_mul_i32 s{S_R}, s{S_HKV}, 9")
        a(f"s_add_u32 s{S_R}, s{S_R}, s{S_T0}")
        a(f"s_lshl_b32 s{S_R}, s{S_R}, 1")
        a(f"s_add_u32 s{S_R}, s{S_R}, s{S_WAVE}")
        a(f"s_sub_u32 s{S_R}, s{S_R}, 6")
        self.reducer_pre()
        a("s_branch L_B4")

    def perm_block(self, buf, c, e, T):
        for p in range(4):
            self.a(f"v_perm_b32 v{T+p}, v{buf+(2*p+1)*4+c}, v{buf+(2*p)*4+c}, s{S_SEL_LO if e == 0 else S_SEL_HI}")

    def aux(self):
        a = self.a
        a.label("L_aux")
        if self.only:
            a("v_mov_b32 v8, 0")
            a("v_cmp_eq_u32 vcc, 8, v0")
            a(f"v_mov_b32 v9, {self.NS}")
            a("v_cndmask_b32 v8, v8, v9, vcc")
            a("v_lshlrev_b32 v9, 2, v0")
            self.lane_mask_lt(16)
            a(f"ds_write_b32 v9, v8 offset:{LDS_CNT}")
            self.restore_exec()
            a("s_waitcnt lgkmcnt(0)")
            a("s_barrier")
            a("s_branch L_exit")
        a("s_setprio 3")
        a(f"s_sub_u32 s{S_HW}, s{S_WAVE}, 8")
        a(f"s_mul_i32 s{S_T0}, s{S_HW}, 1152")
        self.xload(16, 0, 4, S_T0)
        a(f"s_cmp_lg_u32 s{S_HW}, 0")
        a("s_cbranch_scc1 L_a_nc")
        a("v_mov_b32 v8, 0")
        a("v_cmp_eq_u32 vcc, 8, v0")
        a(f"v_mov_b32 v9, {self.NS}")
        a("v_cndmask_b32 v8, v8, v9, vcc")
        a("v_lshlrev_b32 v9, 2, v0")
        self.lane_mask_lt(16)
        a(f"ds_write_b32 v9, v8 offset:{LDS_CNT}")
        self.restore_exec()
        a("v_mov_b32 v8, -1")
        a(f"v_add_u32 v9, {LDS_TQ}, v9")
        a("ds_write_b32 v9, v8")
        a("ds_write_b32 v9, v8 offset:256")
        a("s_waitcnt lgkmcnt(0)")
        a.label("L_a_nc")
        self.role_decode()
        a(f"s_mov_b32 s{S_FIRST}, 0")
        a(f"s_sub_u32 s{S_CB}, s{S_J}, {self.pj0}")
        a(f"s_cmp_lt_u32 s{S_CB}, 6")
        a("s_cbranch_scc0 L_a_np")
        a(f"s_mov_b32 s{S_FIRST}, 1")
        a(f"s_cmp_lt_u32 s{S_HW}, 6")
        a("s_cbranch_scc0 L_a_w0")
        self.srd(SRD_W, S_WQ, 576 * 8192)
        a("v_lshrrev_b32 v3, 4, v0")
        a("v_lshlrev_b32 v3, 16, v3")
        a("v_and_b32 v1, 15, v0")
        a("v_lshl_add_u32 v1, v1, 4, v3")
        a(f"s_lshr_b32 s{S_T1}, s{S_CB}, 1")
        a(f"s_mul_i32 s{S_T1}, s{S_T1}, 6")
        a(f"s_add_u32 s{S_T1}, s{S_T1}, s{S_HW}")
        a(f"s_mov_b32 s{S_NT}, s{S_T1}")
        a(f"s_lshl_b32 s{S_UOFF}, s{S_T1}, 18")
        a(f"s_and_b32 s{S_T2}, s{S_CB}, 1")
        a(f"s_lshl_b32 s{S_T2}, s{S_T2}, 8")
        a(f"s_lshl_b32 s{S_T3}, s{S_HKV}, 9")
        a(f"s_add_u32 s{S_UOFF}, s{S_UOFF}, s{S_T2}")
        a(f"s_add_u32 s{S_UOFF}, s{S_UOFF}, s{S_T3}")
        for t in range(8):
            a(f"buffer_load_dwordx4 {vr(64+4*t,4)}, v1, {sr(SRD_W,4)}, s{S_UOFF} offen nt")
            if t < 7: a(f"s_add_u32 s{S_UOFF}, s{S_UOFF}, 8192")
        a.label("L_a_w8")
        a("s_barrier")
        a("s_waitcnt vmcnt(8)")
        a("s_branch L_a_ln")
        a.label("L_a_np")
        if self.vearly & 1:
            a(f"s_cmp_eq_u32 s{S_ROLE}, {ROLE_A}")
            a("s_cbranch_scc0 L_a_na")
            self.w_setup_a()
            self.w_issue()
            a("s_branch L_a_w8")
            a.label("L_a_na")
        if self.vearly & 2:
            a(f"s_cmp_eq_u32 s{S_ROLE}, {ROLE_C}")
            a("s_cbranch_scc0 L_a_w0")
            self.c_setup()
            self.c_issue(64)
            a("s_barrier")
            a("s_waitcnt vmcnt(16)")
            a("s_branch L_a_ln")
        a.label("L_a_w0")
        a("s_barrier")
        a("s_waitcnt vmcnt(0)")
        a.label("L_a_ln")
        self.stamp(4)
        a(f"s_mul_i32 s{S_T3}, s{S_HW}, {XN_STRIDE}")
        self.layernorm(16, 32, 8, 0, LDS_XN, s_row=S_T3)
        self.stamp(2)
        self.helper_sync(3)
        if self.stop == 12: a("s_branch L_exit")
        a(f"s_xor_b32 s{S_TB}, s{S_TA}, 0x5bd1e995")
        a(f"s_add_u32 s{S_TB}, s{S_TB}, 0x7f4a7c15")
        a(f"s_add_u32 s{S_TA}, s{S_TA}, 0x9e3779b9")
        a(f"s_cmp_eq_u32 s{S_FIRST}, 0")
        a("s_cbranch_scc1 L_a_cons")
        a(f"s_cmp_lt_u32 s{S_HW}, 6")
        a("s_cbranch_scc0 L_a_pr")
        a("v_and_b32 v2, 7, v0")
        a(f"s_movk_i32 s{S_T0}, {XN_STRIDE}")
        a(f"v_mul_lo_u32 v2, v2, s{S_T0}")
        a("v_lshrrev_b32 v3, 4, v0")
        a("v_lshl_add_u32 v2, v3, 4, v2")
        a(f"s_lshl_b32 s{S_T1}, s{S_NT}, 6")
        a(f"v_add_u32 v2, s{S_T1}, v2")
        a(f"ds_read_b128 v[16:19], v2 offset:{LDS_XN}")
        a("s_waitcnt vmcnt(0)")
        self.stamp(7)
        self.perm_block(64, 0, 0, 8); self.perm_block(64, 0, 1, 12)
        a("s_waitcnt lgkmcnt(0)")
        for c in range(4):
            for e in range(2):
                j = 2 * c + e
                a(f"v_mfma_f32_16x16x32_bf16 {vr(32+4*j,4)}, {vr(8+4*e,4)}, v[16:19], 0")
                if c < 3: self.perm_block(64, c + 1, e, 8 + 4 * e)
        a("v_and_b32 v2, 15, v0")
        a("v_lshlrev_b32 v3, 9, v2")
        a("v_lshrrev_b32 v4, 4, v0")
        a("v_lshl_add_u32 v3, v4, 4, v3")
        a(f"s_lshl_b32 s{S_T1}, s{S_HW}, 12")
        a(f"s_add_u32 s{S_T1}, s{S_T1}, {LDS_QFP}")
        a(f"v_add_u32 v3, s{S_T1}, v3")
        a("v_cmp_gt_u32 vcc, 8, v2")
        a(f"s_and_saveexec_b64 {sr(S_EX,2)}, vcc")
        for j in range(8):
            a(f"ds_write_b128 v3, {vr(32+4*j,4)} offset:{j*64}")
        self.restore_exec()
        a.label("L_a_pr")
        self.helper_sync(4)
        a(f"s_lshl_b32 s{S_T1}, s{S_HW}, 9")
        a(f"s_add_u32 s{S_T1}, s{S_T1}, {LDS_QFP}")
        a("v_lshlrev_b32 v3, 3, v0")
        a(f"v_add_u32 v3, s{S_T1}, v3")
        for w in range(6):
            a(f"ds_read_b64 {vr(64+2*w,2)}, v3 offset:{w*4096}")
        a(f"s_lshr_b32 s{S_T0}, s{S_CB}, 1")
        a(f"s_mul_i32 s{S_T1}, s{S_HKV}, 3")
        a(f"s_add_u32 s{S_T0}, s{S_T0}, s{S_T1}")
        a(f"s_lshl_b32 s{S_T0}, s{S_T0}, 3")
        a(f"s_add_u32 s{S_T0}, s{S_T0}, s{S_HW}")
        a(f"s_lshl_b32 s{S_T0}, s{S_T0}, 11")
        a(f"s_and_b32 s{S_T1}, s{S_CB}, 1")
        a(f"s_lshl_b32 s{S_T1}, s{S_T1}, 10")
        a(f"s_add_u32 s{S_T0}, s{S_T0}, s{S_T1}")
        a(f"s_add_u32 s{S_T0}, s{S_T0}, {WS_QP}")
        a(f"v_mov_b32 v10, s{S_TA}")
        a(f"v_mov_b32 v11, s{S_TB}")
        a("v_lshlrev_b32 v3, 4, v0")
        a("s_waitcnt lgkmcnt(0)")
        for r in range(2):
            a(f"v_add_f32 v{64+r}, v{64+r}, v{66+r}")
            a(f"v_add_f32 v{68+r}, v{68+r}, v{70+r}")
            a(f"v_add_f32 v{72+r}, v{72+r}, v{74+r}")
            a(f"v_add_f32 v{64+r}, v{64+r}, v{68+r}")
            a(f"v_add_f32 v{8+r}, v{64+r}, v{72+r}")
        if self.qst == 1: a(f"buffer_store_dwordx4 v[8:11], v3, {sr(SRD_WS,4)}, s{S_T0} offen sc1")
        if self.qst == 5:
            a("s_mov_b64 exec, 0xffff")
            a(f"buffer_store_dwordx4 v[8:11], v3, {sr(SRD_WS,4)}, s{S_T0} offen sc1")
            a("s_mov_b64 exec, -1")
        if self.qst == 6:
            a(f"s_cmp_lt_u32 s{S_HW}, 2")
            a("s_cbranch_scc0 L_qst6")
            a(f"buffer_store_dwordx4 v[8:11], v3, {sr(SRD_WS,4)}, s{S_T0} offen sc1")
            a.label("L_qst6")
        if self.qst == 2: a(f"buffer_store_dwordx4 v[8:11], v3, {sr(SRD_WS,4)}, s{S_T0} offen")
        if self.qst == 3: a(f"buffer_store_dwordx4 v[8:11], v3, {sr(SRD_WS,4)}, s{S_T0} offen sc1 nt")
        if self.qst == 4: a(f"buffer_store_dwordx4 v[8:11], v3, {sr(SRD_WS,4)}, s{S_T0} offen sc0 sc1")
        self.stamp(6)
        a.label("L_a_cons")
        a(f"s_sub_u32 s{S_T3}, s{S_HW}, 2")
        a(f"s_cmp_lt_u32 s{S_T3}, 2")
        a("s_cbranch_scc0 L_a_B2")
        if self.stop == 13: a("s_branch L_exit")
        a(f"s_mul_i32 s{S_T1}, s{S_HKV}, {3*16384}")
        a(f"s_lshl_b32 s{S_T2}, s{S_B}, 11")
        a(f"s_add_u32 s{S_T1}, s{S_T1}, s{S_T2}")
        a(f"s_lshl_b32 s{S_T2}, s{S_T3}, 10")
        a(f"s_add_u32 s{S_T1}, s{S_T1}, s{S_T2}")
        a(f"s_add_u32 s{S_T1}, s{S_T1}, {WS_QP}")
        a("v_lshlrev_b32 v3, 4, v0")
        a(f"s_mov_b32 s{S_SPIN}, 0")
        a.label("L_q_poll")
        a(f"s_mov_b32 s{S_T0}, s{S_T1}")
        for p in range(3):
            a(f"buffer_load_dwordx4 {vr(96+4*p,4)}, v3, {sr(SRD_WS,4)}, s{S_T0} offen {self.qfl}")
            if p < 2: a(f"s_add_u32 s{S_T0}, s{S_T0}, 16384")
        a("s_waitcnt vmcnt(0)")
        a(f"v_xor_b32 v4, s{S_TA}, v98")
        a(f"v_xor_b32 v5, s{S_TB}, v99")
        a("v_or_b32 v4, v4, v5")
        for p in range(1, 3):
            a(f"v_xor_b32 v5, s{S_TA}, v{96+4*p+2}")
            a(f"v_xor_b32 v6, s{S_TB}, v{96+4*p+3}")
            a("v_or3_b32 v4, v4, v5, v6")
        a("v_cmp_ne_u32 vcc, 0, v4")
        if self.qfix == 0: a("s_cbranch_vccz L_q_ok")
        self.spin("L_q_poll", self.qsleep, 0x40000 if self.qfix == 0 else self.qfix)
        a.label("L_q_ok")
        self.stamp(8)
        for r in range(2):
            a(f"v_add_f32 v{96+r}, v{96+r}, v{100+r}")
            a(f"v_add_f32 v{96+r}, v{96+r}, v{104+r}")
        a("v_cvt_pk_bf16_f32 v96, v96, v97")
        a("v_lshrrev_b32 v5, 3, v0")
        a("v_and_b32 v6, 7, v0")
        a("v_lshlrev_b32 v4, 5, v6")
        a("v_lshl_add_u32 v4, v5, 1, v4")
        a(f"s_lshl_b32 s{S_T2}, s{S_T3}, 8")
        a(f"v_add_u32 v4, s{S_T2}, v4")
        a(f"ds_write_b16 v4, v96 offset:{LDS_Q}")
        a(f"ds_write_b16_d16_hi v4, v96 offset:{LDS_Q+16}")
        if self.debug:
            a("v_lshlrev_b32 v12, 16, v96")
            a("v_and_b32 v13, 0xffff0000, v96")
            a(f"s_lshl_b32 s{S_T0}, s2, 10")
            a(f"s_add_u32 s{S_T0}, s{S_T0}, {WS_DBG}")
            a("v_lshlrev_b32 v10, 1, v4")
            a(f"buffer_store_dword v12, v10, {sr(SRD_WS,4)}, s{S_T0} offen")
            a(f"buffer_store_dword v13, v10, {sr(SRD_WS,4)}, s{S_T0} offen offset:32")
        a("s_waitcnt lgkmcnt(0)")
        a(f"v_mov_b32 v3, {LDS_CNT + 20}")
        a("v_mov_b32 v4, 1")
        a("s_mov_b64 exec, 1")
        a("ds_add_u32 v3, v4")
        a("s_mov_b64 exec, -1")
        a.label("L_a_B2")
        if self.emask != 0xff:
            a(f"s_lshl_b32 s{S_T0}, 1, s{S_HW}")
            a(f"s_and_b32 s{S_T0}, s{S_T0}, {self.emask}")
            a("s_cbranch_scc1 L_a_go")
            a(f"v_mov_b32 v3, {LDS_CNT + 20}")
            a(f"s_mov_b32 s{S_SPIN}, 0")
            a.label("L_a_qw")
            a("ds_read_b32 v4, v3")
            a("s_waitcnt lgkmcnt(0)")
            a(f"v_readfirstlane_b32 s{S_T0}, v4")
            a(f"s_cmp_ge_u32 s{S_T0}, 2")
            a("s_cbranch_scc1 L_a_go")
            self.spin("L_a_qw", 4, 0x100000)
            a.label("L_a_go")
        if self.stop in (1, 13): a("s_branch L_exit")
        self.stamp(3)
        self.helper_mid()
        self.stamp(1)
        if self.stop == 2: a("s_branch L_exit")
        a("s_branch L_B4")

    def role_decode(self, tag=''):
        a = self.a
        a(f"s_mov_b32 s{S_ROLE}, {ROLE_NONE}")
        a(f"s_mov_b32 s{S_RIDX}, 0")
        a(f"s_cmp_lt_u32 s{S_J}, 10")
        a(f"s_cbranch_scc0 L_rd_hi{tag}")
        a(f"s_cmp_eq_u32 s{S_SPLIT}, 0")
        a(f"s_cbranch_scc1 L_rd_even{tag}")
        a(f"s_mov_b32 s{S_ROLE}, {ROLE_A}")
        a(f"s_mov_b32 s{S_RIDX}, s{S_B}")
        a(f"s_branch L_rd_done{tag}")
        a.label(f"L_rd_even{tag}")
        a(f"s_lshl_b32 s{S_T0}, s{S_B}, 4")
        a(f"s_add_u32 s{S_T0}, s{S_T0}, s{S_HKV}")
        a(f"s_cmp_lt_u32 s{S_T0}, 72")
        a(f"s_cbranch_scc0 L_rd_red2{tag}")
        a(f"s_mov_b32 s{S_ROLE}, {ROLE_C}")
        a(f"s_mov_b32 s{S_RIDX}, s{S_T0}")
        a(f"s_branch L_rd_done{tag}")
        a.label(f"L_rd_red2{tag}")
        a(f"s_branch L_rd_done{tag}")
        a.label(f"L_rd_hi{tag}")
        a(f"s_cmp_eq_u32 s{S_J}, 15")
        a(f"s_cbranch_scc1 L_rd_red{tag}")
        a(f"s_mov_b32 s{S_ROLE}, {ROLE_B}")
        a(f"s_sub_u32 s{S_RIDX}, s{S_J}, 10")
        a(f"s_branch L_rd_done{tag}")
        a.label(f"L_rd_red{tag}")
        a.label(f"L_rd_done{tag}")

    def helper_sync(self, idx):
        a = self.a
        lab = a.newlabel("L_hs")
        a("s_waitcnt lgkmcnt(0)")
        a(f"v_mov_b32 v3, {LDS_CNT + 4*idx}")
        a("v_mov_b32 v4, 1")
        a("s_mov_b64 exec, 1")
        a("ds_add_u32 v3, v4")
        a("s_mov_b64 exec, -1")
        a(f"s_mov_b32 s{S_SPIN}, 0")
        a.label(lab)
        a("ds_read_b32 v4, v3")
        a("s_waitcnt lgkmcnt(0)")
        a(f"v_readfirstlane_b32 s{S_T0}, v4")
        a(f"s_cmp_ge_u32 s{S_T0}, 8")
        a(f"s_cbranch_scc1 {lab}_done")
        self.spin(lab, self.hsleep, 0x100000)
        a.label(lab + "_done")

    def wait_tiles(self, thr):
        a = self.a
        lab = a.newlabel("L_wt")
        a(f"s_mov_b32 s{S_SPIN}, 0")
        a(f"v_mov_b32 v3, {LDS_CNT + 32}")
        a.label(lab)
        a("ds_read_b32 v4, v3")
        a("s_waitcnt lgkmcnt(0)")
        a(f"v_readfirstlane_b32 s{S_T0}, v4")
        a(f"s_cmp_ge_u32 s{S_T0}, {thr}")
        a(f"s_cbranch_scc1 {lab}_done")
        self.spin(lab, 32, 0x10000)
        a.label(lab + "_done")

    def poll_counter(self, target):
        if not self.chk: return self.poll_counter_g(target)
        a = self.a
        lab = a.newlabel("L_pl")
        a(f"s_mov_b32 s{S_SPIN}, 0")
        a(f"v_mov_b32 v3, {LDS_CNT + 28}")
        a.label(lab)
        a("ds_read_b32 v4, v3")
        a("s_waitcnt lgkmcnt(0)")
        a(f"v_readfirstlane_b32 s{S_T0}, v4")
        a(f"s_cmp_ge_u32 s{S_T0}, 1")
        a(f"s_cbranch_scc1 {lab}_done")
        self.spin(lab, 16, 0x40000)
        a.label(lab + "_done")

    def poll_counter_g(self, target):
        a = self.a
        lab = a.newlabel("L_pc")
        a(f"s_mov_b32 s{S_SPIN}, 0")
        a("v_mov_b32 v3, 0")
        a.label(lab)
        a(f"global_load_dword v4, v3, {sr(S_DBG,2)} sc1")
        a("s_waitcnt vmcnt(0)")
        a(f"v_readfirstlane_b32 s{S_T0}, v4")
        a(f"s_cmp_ge_u32 s{S_T0}, {target}")
        a(f"s_cbranch_scc1 {lab}_done")
        self.spin(lab, 32, 0x10000)
        a.label(lab + "_done")

    def helper_mid(self):
        a = self.a
        KT = self.KT; TS = 32 // KT
        if not self.rearly:
            a(f"s_cmp_lg_u32 s{S_HW}, 7")
            a("s_cbranch_scc1 L_reset_done")
            self.resets("m")
            self.reset_signal()
        a.label("L_reset_done")
        if self.nors & 2: a("s_branch L_mid_done")
        self.stamp(11)
        a(f"s_cmp_eq_u32 s{S_ROLE}, {ROLE_C}")
        a("s_cbranch_scc1 L_role_c")
        a(f"s_cmp_eq_u32 s{S_ROLE}, {ROLE_NONE}")
        a("s_cbranch_scc1 L_role_none")
        self.w_prefetch()
        a(f"s_cmp_eq_u32 s{S_ROLE}, {ROLE_B}")
        a("s_cbranch_scc1 L_role_b")
        a(f"s_cmp_lg_u32 s{S_HW}, 0")
        a("s_cbranch_scc1 L_mid_done")
        self.wait_tiles(80 * TS)
        self.poll_counter(256)
        a("s_branch L_mid_done")
        a.label("L_role_b")
        self.role_b()
        a("s_branch L_mid_done")
        a.label("L_role_c")
        self.role_c()
        a("s_branch L_mid_done")
        a.label("L_role_none")
        a.label("L_mid_done")

    def resets(self, tag):
        a = self.a
        if self.nors & 1: return
        for k in range(4, 8): a(f"v_mov_b32 v{k}, -1")
        a("v_lshlrev_b32 v3, 4, v0")
        a(f"s_lshl_b32 s{S_T0}, s{S_HKV}, 4")
        a(f"s_add_u32 s{S_T0}, s{S_T0}, s{S_J}")
        a(f"s_lshl_b32 s{S_T0}, s{S_T0}, 11")
        a(f"buffer_store_dwordx4 v[4:7], v3, {sr(SRD_WS,4)}, s{S_T0} offen sc1")
        a("s_mov_b64 exec, 1")
        a(f"buffer_store_dwordx4 v[4:7], v3, {sr(SRD_WS,4)}, s{S_T0} offen offset:1024 sc1")
        a(f"s_cmp_lg_u32 s{S_SPLIT}, 0")
        a(f"s_cbranch_scc1 L_rs_np{tag}")
        a(f"s_lshl_b32 s{S_T0}, s{S_B}, 4")
        a(f"s_add_u32 s{S_T0}, s{S_T0}, s{S_HKV}")
        a(f"s_lshl_b32 s{S_T0}, s{S_T0}, 6")
        a(f"s_add_u32 s{S_T0}, s{S_T0}, {WS_PC}")
        a("v_mov_b32 v8, 0")
        a(f"buffer_store_dword v8, v3, {sr(SRD_WS,4)}, s{S_T0} offen sc1")
        a.label(f"L_rs_np{tag}")
        a("s_mov_b64 exec, -1")
        a(f"s_cmp_eq_u32 s{S_ROLE}, {ROLE_NONE}")
        a(f"s_cbranch_scc1 L_rs_end{tag}")
        a(f"s_cmp_eq_u32 s{S_ROLE}, {ROLE_C}")
        a(f"s_cbranch_scc1 L_rs_c{tag}")
        a(f"s_mul_i32 s{S_T0}, s{S_HKV}, 5")
        a(f"s_add_u32 s{S_T0}, s{S_T0}, s{S_RIDX}")
        a(f"s_lshl_b32 s{S_T0}, s{S_T0}, 12")
        a(f"s_cmp_eq_u32 s{S_ROLE}, {ROLE_A}")
        a(f"s_mov_b32 s{S_T2}, {WS_F2}")
        a(f"s_cselect_b32 s{S_T1}, {WS_P2}, s{S_T2}")
        a(f"s_add_u32 s{S_T0}, s{S_T0}, s{S_T1}")
        for k in range(4):
            a(f"buffer_store_dwordx4 v[4:7], v3, {sr(SRD_WS,4)}, s{S_T0} offen offset:{k*1024} sc1")
        a(f"s_branch L_rs_end{tag}")
        a.label(f"L_rs_c{tag}")
        self.h_addr()
        a(f"buffer_store_dwordx4 v[4:7], v8, {sr(SRD_WS,4)}, s{S_T0} offen sc1")
        a.label(f"L_rs_end{tag}")

    def reset_signal(self):
        a = self.a
        a("s_waitcnt vmcnt(0)")
        a("v_mov_b32 v3, 0")
        a("v_mov_b32 v4, 1")
        a(f"v_mov_b32 v5, {LDS_CNT + 24}")
        a("s_mov_b64 exec, 1")
        a(f"global_atomic_add v3, v4, {sr(S_DBG,2)} sc1")
        a("ds_add_u32 v5, v4")
        a("s_mov_b64 exec, -1")

    def h_addr(self):
        a = self.a
        a("v_lshrrev_b32 v8, 3, v0")
        a(f"s_movk_i32 s{S_T1}, 9216")
        a(f"v_mul_lo_u32 v8, v8, s{S_T1}")
        a("v_and_b32 v9, 7, v0")
        a("v_lshl_add_u32 v8, v9, 4, v8")
        a(f"s_lshl_b32 s{S_T0}, s{S_RIDX}, 7")
        a(f"s_add_u32 s{S_T0}, s{S_T0}, {WS_H}")

    def w_unit_to_lds(self, kb_sgpr):
        a = self.a
        a(f"s_lshl_b32 s{S_T0}, s{kb_sgpr}, 13")
        a("v_lshlrev_b32 v3, 4, v0")
        a(f"v_add_u32 v3, s{S_T0}, v3")
        a(f"v_add_u32 v3, {LDS_W}, v3")
        for c in range(4):
            for e in range(2):
                j = 2 * c + e
                T = 8 + 4 * (j & 3)
                self.perm_block(64, c, e, T)
                a(f"ds_write_b128 v3, {vr(T,4)} offset:{j*1024}")

    def w_common(self):
        a = self.a
        a(f"s_movk_i32 s{S_T1}, 1152")
        a(f"v_mul_lo_u32 v3, v3, s{S_T1}")
        a("v_and_b32 v1, 15, v0")
        a("v_lshl_add_u32 v1, v1, 4, v3")
        a(f"s_mul_i32 s{S_UOFF}, s{S_T0}, 1152")
        a(f"s_lshl_b32 s{S_T1}, s{S_RIDX}, 8")
        a(f"s_add_u32 s{S_UOFF}, s{S_UOFF}, s{S_T1}")

    def w_setup_a(self):
        a = self.a
        self.srd(SRD_W, S_WO, 0 if (self.nowt & 1) else 4096 * 1152)
        a("v_lshrrev_b32 v3, 4, v0")
        a("v_and_b32 v4, 1, v3")
        a("v_lshlrev_b32 v4, 6, v4")
        a("v_lshrrev_b32 v3, 1, v3")
        a("v_add_u32 v3, v3, v4")
        a(f"s_lshl_b32 s{S_T0}, s{S_HKV}, 8")
        a(f"s_lshr_b32 s{S_T1}, s{S_HW}, 2")
        a(f"s_lshl_b32 s{S_T1}, s{S_T1}, 7")
        a(f"s_add_u32 s{S_T0}, s{S_T0}, s{S_T1}")
        a(f"s_and_b32 s{S_T1}, s{S_HW}, 3")
        a(f"s_lshl_b32 s{S_T1}, s{S_T1}, 1")
        a(f"s_add_u32 s{S_T0}, s{S_T0}, s{S_T1}")
        a(f"s_movk_i32 s{S_STRIDE}, {8*1152}")
        self.w_common()

    def w_setup_b(self):
        a = self.a
        self.srd(SRD_W, S_WD, 0 if (self.nowt & 1) else 4608 * 1152)
        a("v_lshrrev_b32 v3, 4, v0")
        a("v_lshlrev_b32 v3, 3, v3")
        a(f"s_mul_i32 s{S_T0}, s{S_HKV}, 288")
        a(f"s_lshl_b32 s{S_T1}, s{S_HW}, 5")
        a(f"s_add_u32 s{S_T0}, s{S_T0}, s{S_T1}")
        a(f"s_movk_i32 s{S_STRIDE}, 1152")
        self.w_common()

    def w_issue(self):
        a = self.a
        a(f"s_mov_b32 s{S_T2}, s{S_UOFF}")
        for t in range(8):
            a(f"buffer_load_dwordx4 {vr(64+4*t,4)}, v1, {sr(SRD_W,4)}, s{S_T2} offen nt")
            if t < 7: a(f"s_add_u32 s{S_T2}, s{S_T2}, s{S_STRIDE}")

    def w_prefetch(self):
        a = self.a
        a(f"s_mov_b32 s{S_CNT}, s{S_HW}")
        a(f"s_cmp_eq_u32 s{S_ROLE}, {ROLE_B}")
        a("s_cbranch_scc1 L_wp_b")
        if self.vearly & 1:
            a("s_branch L_wp_fin")
        else:
            self.w_setup_a()
            a("s_branch L_wp_loop")
        a.label("L_wp_b")
        self.w_setup_b()
        a.label("L_wp_loop")
        self.w_issue()
        a.label("L_wp_fin")
        a("s_waitcnt vmcnt(0)")
        self.w_unit_to_lds(S_CNT)
        a(f"s_cmp_eq_u32 s{S_ROLE}, {ROLE_B}")
        a("s_cbranch_scc0 L_wp_done")
        a(f"s_cmp_eq_u32 s{S_CNT}, 0")
        a("s_cbranch_scc0 L_wp_done")
        a(f"s_mov_b32 s{S_CNT}, 8")
        a(f"s_add_u32 s{S_UOFF}, s{S_UOFF}, {256*1152}")
        a("s_branch L_wp_loop")
        a.label("L_wp_done")
        a("s_waitcnt lgkmcnt(0)")

    def c_setup(self):
        a = self.a
        self.srd(SRD_W, S_WG, 0 if (self.nowt & 2) else 576 * 9216)
        self.srd(SRD_W2, S_WU, 0 if (self.nowt & 2) else 576 * 9216)
        a("v_lshrrev_b32 v3, 4, v0")
        a(f"s_mov_b32 s{S_T1}, {8*9216}")
        a(f"v_mul_lo_u32 v3, v3, s{S_T1}")
        a("v_and_b32 v1, 7, v0")
        a("v_lshl_add_u32 v1, v1, 4, v3")
        a(f"s_mul_i32 s{S_UOFF}, s{S_HW}, {32*9216}")
        a(f"s_lshl_b32 s{S_T1}, s{S_RIDX}, 7")
        a(f"s_add_u32 s{S_UOFF}, s{S_UOFF}, s{S_T1}")

    def c_issue(self, buf):
        a = self.a
        a(f"s_mov_b32 s{S_T2}, s{S_UOFF}")
        a("s_mov_b32 exec_lo, 0x00ff00ff"); a("s_mov_b32 exec_hi, 0x00ff00ff")
        for t in range(8):
            a(f"buffer_load_dwordx4 {vr(buf+4*t,4)}, v1, {sr(SRD_W,4)}, s{S_T2} offen nt")
            a(f"s_add_u32 s{S_T2}, s{S_T2}, 9216")
        a(f"s_mov_b32 s{S_T2}, s{S_UOFF}")
        a("s_mov_b32 exec_lo, 0xff00ff00"); a("s_mov_b32 exec_hi, 0xff00ff00")
        for t in range(8):
            a(f"buffer_load_dwordx4 {vr(buf+4*t,4)}, v1, {sr(SRD_W2,4)}, s{S_T2} offen nt")
            a(f"s_add_u32 s{S_T2}, s{S_T2}, 9216")
        a("s_mov_b64 exec, -1")
        a(f"s_add_u32 s{S_UOFF}, s{S_UOFF}, {8*32*9216}")

    def proj(self, nkb, a_imm, a_stride, wave_sgpr, tag, preloaded=False):
        a = self.a
        if not preloaded:
            self.proj_preload(nkb, wave_sgpr)
        a("v_and_b32 v2, 7, v0")
        a(f"s_movk_i32 s{S_T0}, {a_stride}")
        a(f"v_mul_lo_u32 v2, v2, s{S_T0}")
        a("v_lshrrev_b32 v3, 4, v0")
        a("v_lshl_add_u32 v2, v3, 4, v2")
        AR = [4 + 4 * k for k in range(7)] + [100, 104]
        for kb in range(nkb):
            a(f"ds_read_b128 {vr(AR[kb],4)}, v2 offset:{a_imm + kb*64}")
        for kb in range(nkb):
            a(f"s_waitcnt lgkmcnt({nkb-1-kb})")
            c = "0" if kb == 0 else "v[32:35]"
            a(f"v_mfma_f32_16x16x32_bf16 v[32:35], {vr(AR[kb],4)}, {vr(64+4*kb,4)}, {c}")

    def proj_preload(self, nkb, wave_sgpr):
        a = self.a
        a(f"s_lshl_b32 s{S_T0}, s{wave_sgpr}, 10")
        a("v_lshlrev_b32 v3, 4, v0")
        a(f"v_add_u32 v3, s{S_T0}, v3")
        a(f"v_add_u32 v3, {LDS_W}, v3")
        for kb in range(nkb):
            if kb < 8:
                a(f"ds_read_b128 {vr(64+4*kb,4)}, v3 offset:{kb*8192}")
            else:
                a("v_add_u32 v2, 0x10000, v3")
                a(f"ds_read_b128 {vr(64+4*kb,4)}, v2 offset:{(kb-8)*8192}")

    def publish4(self, acc):
        a = self.a
        for k in range(4):
            a(f"v_min_u32 v{acc+k}, s{S_SENTM1}, v{acc+k}")
        a("v_and_b32 v3, 15, v0")
        a("v_lshlrev_b32 v3, 5, v3")
        a("v_lshrrev_b32 v2, 4, v0")
        a("v_lshl_add_u32 v3, v2, 4, v3")
        self.lane_mask_lt(32)
        a(f"buffer_store_dwordx4 {vr(acc,4)}, v3, {sr(SRD_WS,4)}, s{S_T0} offen sc1")
        self.restore_exec()

    def role_b(self):
        a = self.a
        TS = 32 // self.KT
        self.wait_tiles(48 * TS)
        self.poll_counter(256)
        a(f"s_mul_i32 s{S_T1}, s{S_HW}, 9216")
        a(f"s_mul_i32 s{S_T2}, s{S_HKV}, 576")
        a(f"s_add_u32 s{S_T1}, s{S_T1}, s{S_T2}")
        a(f"s_add_u32 s{S_T1}, s{S_T1}, {WS_H}")
        a("v_lshlrev_b32 v5, 4, v0")
        self.lane_mask_lt(36)
        a(f"s_mov_b32 s{S_SPIN}, 0")
        a.label("L_b_poll")
        a(f"buffer_load_dwordx4 v[8:11], v5, {sr(SRD_WS,4)}, s{S_T1} offen sc1")
        a("s_waitcnt vmcnt(0)")
        a("v_max3_u32 v6, v8, v9, v10")
        a("v_max_u32 v6, v6, v11")
        a("v_cmp_eq_u32 vcc, -1, v6")
        a("s_cbranch_vccz L_b_ok")
        self.spin("L_b_poll", 64, 0x8000)
        a.label("L_b_ok")
        a(f"s_mul_i32 s{S_T1}, s{S_HW}, {H_STRIDE}")
        a(f"v_add_u32 v5, s{S_T1}, v5")
        a(f"ds_write_b128 v5, v[8:11] offset:{LDS_H}")
        self.restore_exec()
        self.helper_sync(0)
        self.proj(9, LDS_H, H_STRIDE, S_HW, "b")
        a(f"s_mul_i32 s{S_T0}, s{S_HKV}, 5")
        a(f"s_add_u32 s{S_T0}, s{S_T0}, s{S_RIDX}")
        a(f"s_lshl_b32 s{S_T0}, s{S_T0}, 12")
        a(f"s_lshl_b32 s{S_T1}, s{S_HW}, 9")
        a(f"s_add_u32 s{S_T0}, s{S_T0}, s{S_T1}")
        a(f"s_add_u32 s{S_T0}, s{S_T0}, {WS_F2}")
        self.publish4(32)

    def role_c(self):
        a = self.a
        issue = self.c_issue
        if not (self.vearly & 2):
            self.c_setup()
            issue(64)
        issue(96)
        a("v_and_b32 v2, 7, v0")
        a(f"s_movk_i32 s{S_T0}, {XN_STRIDE}")
        a(f"v_mul_lo_u32 v2, v2, s{S_T0}")
        a("v_lshrrev_b32 v3, 4, v0")
        a("v_lshl_add_u32 v2, v3, 4, v2")
        a(f"s_lshl_b32 s{S_T1}, s{S_HW}, 6")
        a(f"v_add_u32 v2, s{S_T1}, v2")
        for k in range(32): a(f"v_mov_b32 v{32+k}, 0")
        def process(buf, u, vm):
            a(f"ds_read_b128 v[16:19], v2 offset:{LDS_XN + u*512}")
            a(f"s_waitcnt vmcnt({vm})")
            self.perm_block(buf, 0, 0, 8); self.perm_block(buf, 0, 1, 12)
            a("s_waitcnt lgkmcnt(0)")
            for c in range(4):
                for e in range(2):
                    j = 2 * c + e
                    a(f"v_mfma_f32_16x16x32_bf16 {vr(32+4*j,4)}, v[16:19], {vr(8+4*e,4)}, {vr(32+4*j,4)}")
                    if c < 3: self.perm_block(buf, c + 1, e, 8 + 4 * e)
        process(64, 0, 16)
        a(f"s_cmp_ge_u32 s{S_HW}, 2")
        a("s_cbranch_scc1 L_c_u1")
        issue(64)
        process(96, 1, 16)
        process(64, 2, 0)
        a("s_branch L_c_ud")
        a.label("L_c_u1")
        process(96, 1, 0)
        a.label("L_c_ud")
        a(f"s_lshl_b32 s{S_T0}, s{S_HW}, 12")
        a("v_and_b32 v3, 15, v0")
        a("v_lshlrev_b32 v3, 8, v3")
        a("v_lshrrev_b32 v4, 4, v0")
        a("v_lshl_add_u32 v3, v4, 4, v3")
        a(f"v_add_u32 v3, s{S_T0}, v3")
        self.lane_mask_lt(32)
        for j in range(8):
            a(f"ds_write_b128 v3, {vr(32+4*j,4)} offset:{LDS_FP + j*32}")
        self.restore_exec()
        self.helper_sync(1)
        a(f"s_lshl_b32 s{S_T0}, s{S_HW}, 6")
        a(f"v_add_u32 v3, s{S_T0}, v0")
        a("v_lshlrev_b32 v4, 2, v3")
        a(f"v_add_u32 v4, {LDS_FP}, v4")
        for k in range(8):
            a(f"ds_read_b32 v{8+k}, v4 offset:{k*4096}")
        for k in range(8):
            a(f"ds_read_b32 v{16+k}, v4 offset:{k*4096 + 2048}")
        a("s_waitcnt lgkmcnt(0)")
        for base in (8, 16):
            for k in range(4):
                a(f"v_add_f32 v{base+k}, v{base+k}, v{base+4+k}")
            a(f"v_add_f32 v{base}, v{base}, v{base+2}")
            a(f"v_add_f32 v{base+1}, v{base+1}, v{base+3}")
            a(f"v_add_f32 v{base}, v{base}, v{base+1}")
            self.rne(base)
        a(f"v_mul_f32 v10, s{S_LOG2E}, v8")
        a("v_exp_f32 v10, -v10")
        a("v_add_f32 v10, 1.0, v10")
        a("v_rcp_f32 v12, v10")
        a("v_mul_f32 v14, v8, v12")
        a("v_fma_f32 v18, -v14, v10, v8")
        a("v_fma_f32 v14, v18, v12, v14")
        self.rne(14)
        a("v_mul_f32 v14, v14, v16")
        a("v_cvt_pk_bf16_f32 v14, v14, v14")
        a("v_lshrrev_b32 v5, 3, v3")
        a("v_and_b32 v6, 7, v3")
        a("v_lshlrev_b32 v6, 7, v6")
        a("v_lshl_add_u32 v6, v5, 1, v6")
        a(f"ds_write_b16 v6, v14 offset:{LDS_H}")
        self.helper_sync(2)
        a(f"s_cmp_lg_u32 s{S_HW}, 0")
        a("s_cbranch_scc1 L_c_done")
        a(f"v_mov_b32 v3, {LDS_CNT + 24}")
        a(f"s_mov_b32 s{S_SPIN}, 0")
        a.label("L_c_rw")
        a("ds_read_b32 v4, v3")
        a("s_waitcnt lgkmcnt(0)")
        a(f"v_readfirstlane_b32 s{S_T0}, v4")
        a(f"s_cmp_ge_u32 s{S_T0}, 1")
        a("s_cbranch_scc1 L_c_rok")
        self.spin("L_c_rw", 4, 0x100000)
        a.label("L_c_rok")
        a("v_lshlrev_b32 v3, 4, v0")
        a(f"ds_read_b128 v[4:7], v3 offset:{LDS_H}")
        self.h_addr()
        a("s_waitcnt lgkmcnt(0)")
        for k in range(4, 8):
            a(f"v_min_u32 v{k}, s{S_SENTM1}, v{k}")
        a(f"buffer_store_dwordx4 v[4:7], v8, {sr(SRD_WS,4)}, s{S_T0} offen sc1")
        a.label("L_c_done")

    def rowsum4(self, base):
        for pat in ("quad_perm:[1,0,3,2]", "quad_perm:[2,3,0,1]", "row_half_mirror", "row_mirror"):
            for r in range(4):
                self.a(f"v_add_f32_dpp v{base+r}, v{base+r}, v{base+r} {pat} row_mask:0xf bank_mask:0xf")

    def select4(self, dst, base):
        a = self.a
        a(f"v_mov_b32 v{dst}, v{base}")
        for k in range(1, 4):
            a(f"v_cmp_eq_u32 vcc, {k}, v6")
            a(f"v_cndmask_b32 v{dst}, v{dst}, v{base+k}, vcc")

    def poll1(self, base_imm, tag, sleep):
        a = self.a
        a(f"s_mov_b32 s{S_SPIN}, 0")
        a(f"s_mov_b32 s{S_T0}, {base_imm}")
        a.label(f"L_p1_{tag}")
        a(f"buffer_load_dwordx4 v[16:19], v1, {sr(SRD_WS,4)}, s{S_T0} offen sc1")
        a("s_waitcnt vmcnt(0)")
        a("v_max3_u32 v5, v16, v17, v18")
        a("v_max_u32 v5, v5, v19")
        a("v_cmp_eq_u32 vcc, -1, v5")
        a(f"s_cbranch_vccz L_p1_{tag}_done")
        self.spin(f"L_p1_{tag}", sleep, 0x40000)
        a.label(f"L_p1_{tag}_done")

    def feeder(self):
        a = self.a
        ST, POOL, D, B = self.ST, self.POOLT, self.pD, self.pB
        INV = 4 * self.NTP
        a("v_mbcnt_lo_u32_b32 v0, -1, 0")
        a("v_mbcnt_hi_u32_b32 v0, -1, v0")
        self.wait_tiles(ST - D - 16)
        self.poll_counter(256)
        a("s_setprio 3")
        a(f"s_lshl_b32 s{S_T1}, s{S_B}, 4")
        a(f"s_add_u32 s{S_T1}, s{S_T1}, s{S_HKV}")
        a(f"s_lshl_b32 s{S_T1}, s{S_T1}, 6")
        a(f"s_add_u32 s{S_T1}, s{S_T1}, {WS_PC}")
        a(f"s_mov_b32 s{S_T2}, 0")
        a(f"s_mov_b32 s{S_SPIN}, 0")
        a(f"v_mov_b32 v3, {LDS_CNT + 32}")
        a("v_mov_b32 v2, 0")
        a.label("L_fd_loop")
        a("ds_read_b32 v4, v3")
        a("s_waitcnt lgkmcnt(0)")
        a(f"v_readfirstlane_b32 s{S_T0}, v4")
        a(f"s_add_u32 s{S_T0}, s{S_T0}, {D}")
        a(f"s_add_u32 s{S_T3}, s{S_T2}, {ST}")
        a(f"s_cmp_gt_u32 s{S_T0}, s{S_T3}")
        a("s_cbranch_scc1 L_fd_claim")
        self.spin("L_fd_loop", 2, 0x200000)
        a("s_branch L_fd_rest")
        a.label("L_fd_claim")
        a(f"v_mov_b32 v5, {B}")
        a("s_mov_b64 exec, 1")
        a(f"buffer_atomic_add v5, v2, {sr(SRD_WS,4)}, s{S_T1} offen sc0 sc1")
        a("s_mov_b64 exec, -1")
        a("s_waitcnt vmcnt(0)")
        a(f"v_readfirstlane_b32 s{S_T0}, v5")
        a(f"v_add_u32 v6, s{S_T0}, v0")
        a(f"v_add_u32 v7, {ST}, v6")
        a(f"v_mov_b32 v8, {INV}")
        a(f"v_cmp_gt_u32 vcc, {POOL}, v6")
        a("v_cndmask_b32 v7, v8, v7, vcc")
        a(f"v_add_u32 v9, s{S_T2}, v0")
        a("v_lshlrev_b32 v9, 2, v9")
        a(f"v_add_u32 v9, {LDS_TQ}, v9")
        a(f"s_mov_b64 exec, {(1 << B) - 1}")
        a("ds_write_b32 v9, v7")
        a("s_mov_b64 exec, -1")
        a(f"s_add_u32 s{S_T2}, s{S_T2}, {B}")
        a(f"s_add_u32 s{S_T0}, s{S_T0}, {B}")
        a(f"s_cmp_ge_u32 s{S_T0}, {POOL}")
        a("s_cbranch_scc1 L_fd_rest")
        a(f"s_cmp_lt_u32 s{S_T2}, {128 - B}")
        a("s_cbranch_scc1 L_fd_loop")
        a.label("L_fd_rest")
        a(f"v_mov_b32 v8, {INV}")
        for off in (0, 64):
            a(f"v_add_u32 v9, s{S_T2}, v0")
            if off: a(f"v_add_u32 v9, {off}, v9")
            a("v_cmp_gt_u32 vcc, 128, v9")
            a("v_lshlrev_b32 v9, 2, v9")
            a(f"v_add_u32 v9, {LDS_TQ}, v9")
            a(f"s_and_saveexec_b64 {sr(S_EX,2)}, vcc")
            a(f"s_cbranch_execz L_fd_e{off}")
            a("ds_write_b32 v9, v8")
            a.label(f"L_fd_e{off}")
            self.restore_exec()
        a("s_waitcnt lgkmcnt(0)")
        a("s_setprio 0")

    def reducer_pre(self):
        a = self.a
        TS = 32 // self.KT
        a("v_mbcnt_lo_u32_b32 v0, -1, 0")
        a("v_mbcnt_hi_u32_b32 v0, -1, v0")
        self.wait_tiles(100 * TS)
        self.poll_counter(256)
        a(f"s_lshr_b32 s{S_CB}, s{S_R}, 6")
        a(f"s_bfe_u32 s{S_T1}, s{S_R}, 0x30003")
        a(f"s_and_b32 s{S_T2}, s{S_R}, 7")
        a(f"s_cmp_lt_u32 s{S_R}, 256")
        a("s_cbranch_scc1 L_rp_dec")
        a(f"s_sub_u32 s{S_T3}, s{S_R}, 256")
        a(f"s_lshr_b32 s{S_T1}, s{S_T3}, 2")
        a(f"s_and_b32 s{S_T2}, s{S_T3}, 3")
        a.label("L_rp_dec")
        a(f"s_lshl_b32 s{S_T0}, s{S_CB}, 12")
        a(f"s_lshl_b32 s{S_T3}, s{S_T1}, 9")
        a(f"s_add_u32 s{S_T0}, s{S_T0}, s{S_T3}")
        a(f"s_lshl_b32 s{S_T3}, s{S_T2}, 6")
        a(f"s_add_u32 s{S_T0}, s{S_T0}, s{S_T3}")
        a("v_and_b32 v2, 15, v0")
        a(f"s_movk_i32 s{S_T3}, 20480")
        a(f"v_mul_lo_u32 v1, v2, s{S_T3}")
        a("v_lshrrev_b32 v3, 5, v0")
        a("v_bfe_u32 v4, v0, 4, 1")
        a("v_lshl_add_u32 v1, v3, 5, v1")
        a("v_lshl_add_u32 v1, v4, 4, v1")
        a(f"v_add_u32 v1, s{S_T0}, v1")
        a("v_and_b32 v6, 3, v0")
        a(f"s_lshl_b32 s{S_T0}, s{S_CB}, 7")
        a(f"s_lshl_b32 s{S_T3}, s{S_T2}, 4")
        a(f"s_add_u32 s{S_T0}, s{S_T0}, s{S_T3}")
        a(f"s_add_u32 s{S_T0}, s{S_T0}, s{S_T1}")
        a("v_lshlrev_b32 v3, 3, v3")
        a(f"v_add_u32 v3, s{S_T0}, v3")
        a("v_lshl_add_u32 v4, v4, 2, v6")
        a(f"s_movk_i32 s{S_T3}, 1152")
        a(f"v_mul_lo_u32 v4, v4, s{S_T3}")
        a("v_lshl_add_u32 v7, v3, 1, v4")
        self.srd(SRD_X, S_X, 8 * 1152)
        a(f"buffer_load_ushort v9, v7, {sr(SRD_X,4)}, 0 offen")
        self.poll1(WS_F2, "f2", 32)
        self.rowsum4(16)
        self.select4(8, 16)
        self.rne(8)
        a("v_lshlrev_b32 v9, 16, v9")

    def tail(self):
        a = self.a
        NS = self.NS
        a.label("L_B4")
        a("s_barrier")
        self.stamp(5)
        a("s_setprio 0")
        a("v_mbcnt_lo_u32_b32 v0, -1, 0")
        a("v_mbcnt_hi_u32_b32 v0, -1, v0")
        a(f"s_cmp_lg_u32 s{S_WAVE}, 0")
        a("s_cbranch_scc1 L_nomerge")
        a("v_lshlrev_b32 v2, 4, v0")
        a("v_lshrrev_b32 v3, 5, v0")
        a("v_lshlrev_b32 v3, 3, v3")
        for w in range(NS):
            a(f"ds_read_b64 {vr(16+2*w,2)}, v3 offset:{LDS_SP + w*SP_STRIDE + 1024}")
        for w in range(NS):
            a(f"ds_read_b128 {vr(32+4*w,4)}, v2 offset:{LDS_SP + w*SP_STRIDE}")
        a(f"s_waitcnt lgkmcnt({NS})")
        a("v_max_f32 v4, v16, v18")
        for w in range(2, NS):
            a(f"v_max_f32 v4, v4, v{16+2*w}")
        for w in range(NS):
            a(f"v_sub_f32 v{16+2*w}, v{16+2*w}, v4")
            a(f"v_mul_f32 v{16+2*w}, s{S_LOG2E}, v{16+2*w}")
            a(f"v_exp_f32 v{16+2*w}, v{16+2*w}")
        a("v_mul_f32 v5, v16, v17")
        for w in range(1, NS):
            a(f"v_fmac_f32 v5, v{16+2*w}, v{17+2*w}")
        a("s_waitcnt lgkmcnt(0)")
        for r in range(4):
            a(f"v_mul_f32 v{8+r}, v16, v{32+r}")
        for w in range(1, NS):
            for r in range(4):
                a(f"v_fmac_f32 v{8+r}, v{16+2*w}, v{32+4*w+r}")
        for r in range(4):
            a(f"v_min_u32 v{8+r}, s{S_SENTM1}, v{8+r}")
        a(f"v_min_u32 v4, s{S_SENTM1}, v4")
        a(f"v_min_u32 v5, s{S_SENTM1}, v5")
        a(f"s_lshl_b32 s{S_T0}, s{S_HKV}, 4")
        a(f"s_add_u32 s{S_T0}, s{S_T0}, s{S_J}")
        a(f"s_lshl_b32 s{S_T0}, s{S_T0}, 11")
        a(f"buffer_store_dwordx4 v[8:11], v2, {sr(SRD_WS,4)}, s{S_T0} offen sc1")
        a(f"v_readlane_b32 s{S_T1}, v4, 32")
        a(f"v_readlane_b32 s{S_T2}, v5, 32")
        a("v_mov_b32 v12, v4")
        a("v_mov_b32 v13, v5")
        a(f"v_mov_b32 v14, s{S_T1}")
        a(f"v_mov_b32 v15, s{S_T2}")
        a("v_mov_b32 v3, 0")
        a("s_mov_b64 exec, 1")
        a(f"buffer_store_dwordx4 v[12:15], v3, {sr(SRD_WS,4)}, s{S_T0} offen offset:1024 sc1")
        a("s_mov_b64 exec, -1")
        self.stamp(6)
        a.label("L_nomerge")
        a(f"s_cmp_lt_u32 s{S_J}, 10")
        a("s_cbranch_scc0 L_notcons")
        a(f"s_cmp_eq_u32 s{S_SPLIT}, 1")
        a("s_cbranch_scc1 L_consumer")
        a.label("L_notcons")
        a(f"s_cmp_lt_i32 s{S_R}, 0")
        a("s_cbranch_scc1 L_end")
        a("s_setprio 3")
        self.poll1(WS_P2, "p2", 1)
        self.stamp(7)
        self.rowsum4(16)
        self.select4(10, 16)
        self.rne(10)
        a("v_add_f32 v10, v9, v10")
        self.rne(10)
        a("v_add_f32 v10, v10, v8")
        a("v_cvt_pk_bf16_f32 v10, v10, v10")
        self.srd(SRD_X, S_OUT, 8 * 1152)
        a("v_and_b32 v2, 15, v0")
        a("v_cmp_gt_u32 vcc, 4, v2")
        a(f"s_and_saveexec_b64 {sr(S_EX,2)}, vcc")
        a(f"buffer_store_short v10, v7, {sr(SRD_X,4)}, 0 offen {self.ofl}")
        self.restore_exec()
        a(f"s_cmp_lg_u32 s{S_R}, 0")
        a("s_cbranch_scc1 L_end")
        a(f"s_add_u32 s{S_TA}, s{S_TA}, 0x9e3779b9")
        a(f"v_mov_b32 v3, s{S_TA}")
        a("v_mov_b32 v2, 0")
        a(f"s_mov_b32 s{S_T0}, {WS_GEN}")
        a("s_mov_b64 exec, 1")
        a(f"buffer_store_dword v3, v2, {sr(SRD_WS,4)}, s{S_T0} offen sc1")
        a("s_mov_b64 exec, -1")
        a("s_branch L_end")
        a.label("L_consumer")
        a(f"s_cmp_ge_u32 s{S_WAVE}, 8")
        a("s_cbranch_scc1 L_c_nopre")
        self.proj_preload(8, S_WAVE)
        a.label("L_c_nopre")
        a(f"s_lshr_b32 s{S_T1}, s{S_WAVE}, 1")
        a(f"s_and_b32 s{S_T2}, s{S_WAVE}, 1")
        a(f"s_lshl_b32 s{S_T0}, s{S_HKV}, 4")
        a(f"s_lshl_b32 s{S_T3}, s{S_T1}, 1")
        a(f"s_add_u32 s{S_T0}, s{S_T0}, s{S_T3}")
        a(f"s_lshl_b32 s{S_T0}, s{S_T0}, 11")
        a("v_lshrrev_b32 v2, 5, v0")
        a("v_lshlrev_b32 v2, 11, v2")
        a("v_and_b32 v3, 31, v0")
        a("v_lshl_add_u32 v3, v3, 4, v2")
        a(f"s_lshl_b32 s{S_T3}, s{S_T2}, 9")
        a(f"v_add_u32 v3, s{S_T3}, v3")
        a(f"s_mov_b32 s{S_SPIN}, 0")
        a.label("L_c_poll")
        a(f"buffer_load_dwordx4 v[8:11], v3, {sr(SRD_WS,4)}, s{S_T0} offen sc1")
        a(f"buffer_load_dwordx4 v[12:15], v2, {sr(SRD_WS,4)}, s{S_T0} offen offset:1024 sc1")
        a("s_waitcnt vmcnt(0)")
        a("v_max3_u32 v6, v8, v9, v10")
        a("v_max3_u32 v6, v6, v11, v12")
        a("v_max3_u32 v6, v6, v13, v14")
        a("v_max_u32 v6, v6, v15")
        a("v_cmp_eq_u32 vcc, -1, v6")
        a("s_cbranch_vccz L_c_ok")
        self.spin("L_c_poll", 1, 0x40000)
        a.label("L_c_ok")
        self.stamp(7)
        a(f"s_cmp_eq_u32 s{S_T2}, 0")
        a("s_cselect_b64 vcc, -1, 0")
        a("v_cndmask_b32 v4, v14, v12, vcc")
        a("v_cndmask_b32 v5, v15, v13, vcc")
        a("v_mov_b32 v6, v4")
        a("v_permlane32_swap_b32 v4, v6")
        a("v_mov_b32 v7, v5")
        a("v_permlane32_swap_b32 v5, v7")
        a("v_max_f32 v16, v4, v6")
        a("v_sub_f32 v4, v4, v16")
        a("v_sub_f32 v6, v6, v16")
        a(f"v_mul_f32 v4, s{S_LOG2E}, v4")
        a(f"v_mul_f32 v6, s{S_LOG2E}, v6")
        a("v_exp_f32 v4, v4")
        a("v_exp_f32 v6, v6")
        a("v_mul_f32 v5, v4, v5")
        a("v_fmac_f32 v5, v6, v7")
        a("v_rcp_f32 v7, v5")
        a("v_cmp_gt_u32 vcc, 32, v0")
        a("v_cndmask_b32 v4, v6, v4, vcc")
        a("v_fma_f32 v6, -v5, v7, 1.0")
        a("v_fma_f32 v7, v6, v7, v7")
        a("v_mul_f32 v4, v4, v7")
        for r in range(4):
            a(f"v_mul_f32 v{8+r}, v{8+r}, v4")
        for r in range(4):
            a(f"v_mov_b32 v{12+r}, v{8+r}")
        for r in range(4):
            a(f"v_permlane32_swap_b32 v{8+r}, v{12+r}")
        for r in range(4):
            a(f"v_add_f32 v{8+r}, v{8+r}, v{12+r}")
        a("v_cvt_pk_bf16_f32 v8, v8, v9")
        a("v_cvt_pk_bf16_f32 v9, v10, v11")
        a(f"s_mul_i32 s{S_T0}, s{S_T1}, {O_STRIDE}")
        a(f"s_lshl_b32 s{S_T3}, s{S_T2}, 8")
        a(f"s_add_u32 s{S_T0}, s{S_T0}, s{S_T3}")
        a("v_lshlrev_b32 v3, 3, v0")
        a(f"v_add_u32 v3, s{S_T0}, v3")
        self.lane_mask_lt(32)
        a(f"ds_write_b64 v3, v[8:9] offset:{LDS_O}")
        self.restore_exec()
        a("s_waitcnt lgkmcnt(0)")
        a("s_barrier")
        self.stamp(8)
        a(f"s_cmp_ge_u32 s{S_WAVE}, 8")
        a("s_cbranch_scc1 L_end")
        self.proj(8, LDS_O, O_STRIDE, S_WAVE, "a", preloaded=True)
        a(f"s_mul_i32 s{S_T0}, s{S_HKV}, 5")
        a(f"s_add_u32 s{S_T0}, s{S_T0}, s{S_B}")
        a(f"s_lshl_b32 s{S_T0}, s{S_T0}, 12")
        a(f"s_lshl_b32 s{S_T1}, s{S_WAVE}, 9")
        a(f"s_add_u32 s{S_T0}, s{S_T0}, s{S_T1}")
        a(f"s_add_u32 s{S_T0}, s{S_T0}, {WS_P2}")
        self.publish4(32)
        a.label("L_end")
        if self.diag:
            a(f"s_cmp_lt_i32 s{S_R}, 0")
            a("s_cbranch_scc1 L_dg1")
            a(f"s_and_b32 s{S_T0}, s{S_R}, 31")
            a(f"s_cmp_lg_u32 s{S_T0}, 0")
            a("s_cbranch_scc1 L_dg1")
            a(f"s_memrealtime {sr(S_TS,2)}")
            a("s_waitcnt lgkmcnt(0)")
            a(f"v_mov_b32 v8, s{S_TS}")
            a("v_mov_b32 v9, 12")
            a("s_mov_b64 exec, 1")
            a(f"global_atomic_umax v9, v8, {sr(S_DBG,2)}")
            a("s_mov_b64 exec, -1")
            a.label("L_dg1")
        self.stamp(9)
        self.stamp_flush()
        a.label("L_exit")
        a("s_endpgm")

    def build(self):
        self.prologue()
        self.stream()
        self.aux()
        self.tail()
        body = self.a.finish()
        hdr = open("cdna_kernels/" + NAME + ".s.ref").read().split("; Override launch geometry")[0]
        out = hdr
        out += "; Override launch geometry by editing the next line (default: block=256,\n"
        out += f"; @launch grid=(256,1,1) block=(1024,1,1) lds={LDS_TOTAL}\n"
        out += '.amdgcn_target "amdgcn-amd-amdhsa--gfx950"\n'
        out += """; Fused decode step: out = x + attn(LN(x)) + swiglu_ffn(LN(x)).  One persistent launch, 256 workgroups x 16 waves.
"""
        out += '.text\n'
        out += f".globl {NAME}_kernel\n.p2align 8\n.type {NAME}_kernel,@function\n{NAME}_kernel:\n"
        out += body
        out += '.section .rodata,"a"\n.p2align 6\n'
        out += f".amdhsa_kernel {NAME}_kernel\n"
        out += "  .amdhsa_next_free_vgpr 128\n  .amdhsa_next_free_sgpr 100\n  .amdhsa_accum_offset 128\n"
        out += "  .amdhsa_group_segment_fixed_size 0\n  .amdhsa_kernarg_size 96\n  .amdhsa_user_sgpr_count 2\n"
        out += "  .amdhsa_user_sgpr_kernarg_segment_ptr 1\n  .amdhsa_system_sgpr_workgroup_id_x 1\n.end_amdhsa_kernel\n"
        return out

if __name__ == "__main__":
    dbg = "--debug" in sys.argv
    outp = [x for x in sys.argv[1:] if not x.startswith("--")]
    kw = {}
    for x in sys.argv[1:]:
        if x.startswith("--") and "=" in x:
            k_, v_ = x[2:].split("="); kw[k_] = int(v_)
    g = Gen(debug=dbg, stamps="--stamps" in sys.argv, **kw)
    s = g.build()
    path = outp[0] if outp else "cdna_kernels/" + NAME + ".s"
    open(path, "w").write(s)
    print("wrote", path, "lines", s.count("\n"), "nops inserted", g.a.ninserted)
```
